```python
import torch

def _softmax(x, axis=-1):
    return torch.softmax(x, dim=axis)
def _gelu(x):
    return torch.nn.functional.gelu(x, approximate="tanh")
def _silu(x):
    return torch.nn.functional.silu(x)
def _sigmoid(x):
    return torch.sigmoid(x)
def _layernorm(x, axis=-1, eps=1e-5):
    m = x.mean(dim=axis, keepdim=True)
    v = x.var(dim=axis, keepdim=True, unbiased=False)
    return (x - m) / torch.sqrt(v + eps)
def _scatter_add(tgt, idx, src, axis=0):
    return tgt.clone().index_add_(axis, idx, src)
def _segment_sum(src, seg, n):
    out = torch.zeros((n,) + src.shape[1:], dtype=src.dtype)
    return out.index_add_(0, seg, src)
def _pad(x, pw):
    flat = tuple(v for pair in reversed(pw) for v in pair)
    return torch.nn.functional.pad(x, flat)

kernel_name = 'recurrent_scan__compressed_kv_cla__glu_gated_swiglu__decode'

def setup_inputs():

    _w = (lambda a: (lambda t: t.to(torch.bfloat16) if t.is_floating_point() else t)(torch.as_tensor(a)))
    def _A_setup():
        B, H, Sq, Sk, D, M = 2, 32, 1, 8192, 128, 512
        Dc = 4 * D
        return {
            "x": _w((lambda *s: torch.randn(*s, dtype=torch.bfloat16) * 0.05)(B, Sq, M)),
            "c_kv": _w((lambda *s: torch.randn(*s, dtype=torch.bfloat16) * 1.6)(B, Sk, Dc)),
            "w_q": _w((lambda *s: torch.randn(*s, dtype=torch.bfloat16) * 1.6)(M, H, D) * (M ** -0.5)),
            "w_uk": _w((lambda *s: torch.randn(*s, dtype=torch.bfloat16) * 1.6)(Dc, H, D) * (Dc ** -0.5)),
            "w_uv": _w((lambda *s: torch.randn(*s, dtype=torch.bfloat16) * 1.6)(Dc, H, D) * (Dc ** -0.5)),
            "w_o": _w((lambda *s: torch.randn(*s, dtype=torch.bfloat16) * 1.6)(H, D, M) * ((H * D) ** -0.5)),
        }
    _A_in = _A_setup()

    def _B_setup():
        B, S, D, F = 2, 1, 512, 1376
        return {
            "x": _w((lambda *s: torch.randn(*s, dtype=torch.bfloat16) * 0.05)(B, S, D)),
            "w1": _w((lambda *s: torch.randn(*s, dtype=torch.bfloat16) * 0.2)(D, F) * (2.0 / D) ** 0.5),
            "w3": _w((lambda *s: torch.randn(*s, dtype=torch.bfloat16) * 0.2)(D, F) * (2.0 / D) ** 0.5),
            "w2": _w((lambda *s: torch.randn(*s, dtype=torch.bfloat16) * 0.2)(F, D) * (2.0 / F) ** 0.5),
        }
    _B_in = _B_setup()

    return {
        "A_x": _A_in["x"],
        "A_c_kv": _A_in["c_kv"],
        "A_w_q": _A_in["w_q"],
        "A_w_uk": _A_in["w_uk"],
        "A_w_uv": _A_in["w_uv"],
        "A_w_o": _A_in["w_o"],
        "B_x": _B_in["x"],
        "B_w1": _B_in["w1"],
        "B_w3": _B_in["w3"],
        "B_w2": _B_in["w2"],
    }

def reference(A_x, A_c_kv, A_w_q, A_w_uk, A_w_uv, A_w_o, B_x, B_w1, B_w3, B_w2):
    def _A_ref(x, c_kv, w_q, w_uk, w_uv, w_o):
        B, Sq, M = x.shape[0], x.shape[1], x.shape[2]
        Sk = c_kv.shape[1]
        H, D = w_q.shape[1], w_q.shape[2]
        q = torch.einsum("bqm,mhd->bhqd", x, w_q)
        k = torch.einsum("bkc,chd->bhkd", c_kv, w_uk)
        v = torch.einsum("bkc,chd->bhkd", c_kv, w_uv)
        scores = torch.einsum("bhqd,bhkd->bhqk", q, k) * (D ** -0.5)
        off = Sk - Sq
        qi = torch.arange(Sq)[:, None]
        kj = torch.arange(Sk)[None, :]
        cmask = kj <= (qi + off)
        scores = torch.where(cmask[None, None], scores, -1e9)
        p = _softmax(scores, axis=-1)
        ctx = torch.einsum("bhqk,bhkd->bhqd", p, v)
        return torch.einsum("bhqd,hdm->bqm", ctx, w_o)

    def _B_ref(x, w1, w3, w2):
        gate = torch.einsum("bsd,df->bsf", x, w1)
        up = torch.einsum("bsd,df->bsf", x, w3)
        h = _silu(gate) * up
        out = torch.einsum("bsf,fd->bsd", h, w2)
        return out

    x = A_x
    xn = _layernorm(x, axis=-1)
    s = _A_ref(xn, A_c_kv, A_w_q, A_w_uk, A_w_uv, A_w_o)
    g = _silu(_B_ref(xn, B_w1, B_w3, B_w2))
    return x + s * g
```

```python
NAME = "recurrent_scan__compressed_kv_cla__glu_gated_swiglu__decode"
HEADER = """; Kernarg layout (104 bytes): 0 A_x | 8 A_c_kv | 16 A_w_q | 24 A_w_uk | 32 A_w_uv | 40 A_w_o | 48 B_x | 56 B_w1 | 64 B_w3 | 72 B_w2 | 80 d_out | 88 d_debug | 96 d_ws
"""
class Asm:
    def __init__(self):
        self.lines = []
        self.nlab = 0
    def __call__(self, s=""):
        for l in s.split("\n"):
            self.lines.append(l if l.strip().endswith(":") and not l.strip().startswith(";") else "    " + l.strip())
    def label(self, base="L"):
        self.nlab += 1
        return f".{base}_{self.nlab}"
    def text(self):
        return "\n".join(self.lines) + "\n"

def kernel_begin(name):
    return f""".globl {name}
.p2align 8
.type {name},@function
{name}:
"""
def kernel_desc(name, vgpr, sgpr=102, accum=None, extra=""):
    if accum is None:
        accum = min(256, (vgpr + 3) // 4 * 4)
    return f""".p2align 6
.amdhsa_kernel {name}
  .amdhsa_next_free_vgpr {vgpr}
  .amdhsa_next_free_sgpr {sgpr}
  .amdhsa_accum_offset {accum}
  .amdhsa_group_segment_fixed_size 0
  .amdhsa_kernarg_size 104
  .amdhsa_user_sgpr_count 2
  .amdhsa_user_sgpr_kernarg_segment_ptr 1
  .amdhsa_system_sgpr_workgroup_id_x 1
{extra}.end_amdhsa_kernel
"""
def assemble(launches, kernels):
    s = HEADER
    if len(launches) == 1 and launches[0][0] == NAME + "_kernel":
        k, g, b, lds = launches[0]
        s += f"; @launch grid=({g},1,1) block=({b},1,1) lds={lds}\n"
    else:
        for k, g, b, lds in launches:
            s += f"; @launch kernel={k} grid=({g},1,1) block=({b},1,1) lds={lds}\n"
    s += '.amdgcn_target "amdgcn-amd-amdhsa--gfx950"\n.text\n'
    for name, body, vgpr, sgpr, accum, extra in kernels:
        s += kernel_begin(name) + body
    s += '.section .rodata,"a"\n'
    for name, body, vgpr, sgpr, accum, extra in kernels:
        s += kernel_desc(name, vgpr, sgpr, accum, extra)
    return s
```

```python
import re
def regs_of(tok):
    tok = tok.strip()
    tok = tok.lstrip('-')
    if tok.startswith('abs(') or tok.startswith('|'):
        tok = tok.replace('abs(', '').replace(')', '').replace('|', '')
    m = re.fullmatch(r'([vsa])\[(\d+):(\d+)\]', tok)
    if m: return {(m.group(1), i) for i in range(int(m.group(2)), int(m.group(3)) + 1)}
    m = re.fullmatch(r'([vsa])(\d+)', tok)
    if m: return {(m.group(1), int(m.group(2)))}
    if tok == 'vcc': return {('s', 'vcc')}
    if tok in ('vcc_lo', 'vcc_hi'): return {('s', 'vcc')}
    if tok in ('exec', 'exec_lo', 'exec_hi'): return {('s', 'exec')}
    if tok == 'm0': return {('s', 'm0')}
    return set()
TRANS = ('v_exp_', 'v_log_', 'v_rcp_', 'v_rsq_', 'v_sqrt_', 'v_sin_', 'v_cos_')
def parse(line):
    line = line.split(';')[0].strip()
    if not line or line.endswith(':') or line.startswith('.'): return None
    parts = line.split(None, 1)
    op = parts[0]
    ops = []
    if len(parts) > 1:
        rest = parts[1]
        ops = [t.strip() for t in rest.split(',')]
        last = ops[-1].split()
        mods = last[1:]
        ops[-1] = last[0] if last else ''
    else:
        mods = []
    d = dict(op=op, ops=ops, mods=mods, text=line)
    W = set(); R = set()
    isv = op.startswith('v_')
    if op.startswith('v_mfma'):
        W = regs_of(ops[0]); d['A'] = regs_of(ops[1]); d['B'] = regs_of(ops[2]); d['C'] = regs_of(ops[3]); R = d['A'] | d['B'] | d['C']
        d['cls'] = 'mfma'; d['passes'] = 8 if '32x32' in op else 4
    elif op.startswith('v_cmp'):
        W = regs_of(ops[0]); R = set().union(*[regs_of(o) for o in ops[1:]]); d['cls'] = 'valu'
        if op.startswith('v_cmpx'): W |= {('s', 'exec')}
    elif op.startswith('v_readfirstlane') or op.startswith('v_readlane'):
        W = regs_of(ops[0]); R = set().union(*[regs_of(o) for o in ops[1:]]); d['cls'] = 'valu'; d['rl'] = True
    elif op.startswith('v_permlane'):
        W = regs_of(ops[0]) | regs_of(ops[1]); R = set(W); d['cls'] = 'valu'; d['perm'] = True
    elif isv:
        W = regs_of(ops[0]); rs = ops[1:]
        if '_co_' in op or op.startswith('v_div_scale') or op.startswith('v_mad_u64'):
            W |= regs_of(ops[1]); rs = ops[2:]
        R = set().union(*[regs_of(o) for o in rs]) if rs else set()
        if op.startswith('v_fmac') or op.startswith('v_dot2c') or op.startswith('v_writelane') : R |= W
        if '_dpp' in op or any(m.startswith(('quad_perm', 'row_')) for m in mods):
            d['dpp'] = True; d['dppsrc'] = regs_of(ops[1]); R |= regs_of(ops[0])
        if op.startswith('v_cndmask') and len(ops) == 3: R |= {('s', 'vcc')}
        d['cls'] = 'valu'
        d['trans'] = op.startswith(TRANS)
    elif op.startswith(('buffer_', 'global_')):
        d['cls'] = 'vmem'
        lds = 'lds' in mods or 'lds' in op.split('_')
        st = 'store' in op or ('atomic' in op)
        if lds:
            R = set().union(*[regs_of(o) for o in ops]) | {('s', 'm0')}; d['ldsdma'] = True
        elif op.startswith('buffer_'):
            if st: R = set().union(*[regs_of(o) for o in ops]); d['sdata'] = regs_of(ops[0])
            else: W = regs_of(ops[0]); R = set().union(*[regs_of(o) for o in ops[1:]])
            if 'atomic' in op and 'sc0' in mods: W = regs_of(ops[0])
        else:
            if st: R = set().union(*[regs_of(o) for o in ops]); d['sdata'] = regs_of(ops[1])
            else: W = regs_of(ops[0]); R = set().union(*[regs_of(o) for o in ops[1:]])
        d['wide'] = st and ('x3' in op or 'x4' in op)
    elif op.startswith('ds_'):
        d['cls'] = 'ds'
        if 'read' in op or 'permute' in op or 'swizzle' in op:
            W = regs_of(ops[0]); R = set().union(*[regs_of(o) for o in ops[1:]])
        else:
            R = set().union(*[regs_of(o) for o in ops])
    elif op.startswith('s_'):
        d['cls'] = 'salu'
        if op in ('s_nop',): d['nop'] = int(ops[0], 0) + 1
        elif op.startswith(('s_cmp', 's_cbranch', 's_branch', 's_waitcnt', 's_barrier', 's_endpgm', 's_sleep', 's_setprio', 's_bitcmp')):
            R = set().union(*[regs_of(o) for o in ops]) if ops else set()
        else:
            W = regs_of(ops[0]); R = set().union(*[regs_of(o) for o in ops[1:]]) if len(ops) > 1 else set()
            if 'saveexec' in op: W |= {('s', 'exec')}
    else:
        d['cls'] = 'other'
    d['W'] = W; d['R'] = R
    return d
def check(text):
    ins = []
    for n, l in enumerate(text.split('\n'), 1):
        p = parse(l)
        if p: p['n'] = n; ins.append(p)
        elif l.strip().endswith(':') and not l.strip().startswith(';'):
            ins.append(dict(op='label', cls='label', W=set(), R=set(), n=n, text=l.strip(), nop=0))
    probs = []
    for i, c in enumerate(ins):
        if c['cls'] == 'label': continue
        dist = 0
        for j in range(i - 1, max(-1, i - 40), -1):
            p = ins[j]
            if p['op'] in ('s_endpgm', 's_branch'): break
            need = 0; why = ''
            vW = {r for r in p['W'] if r[0] in 'va'}; sW = {r for r in p['W'] if r[0] == 's'}
            if p['cls'] == 'valu':
                if c['cls'] == 'mfma' and vW & c['R']: need, why = 2, 'valu->mfma'
                if c.get('dpp') and vW & c['dppsrc']: need, why = max(need, 2), 'valu->dpp'
                if c.get('perm') and vW & c['R']: need, why = max(need, 2), 'valu->permlane'
                if c.get('rl') and vW & c['R']: need, why = max(need, 1), 'valu->readlane'
                if p.get('trans') and c['cls'] in ('valu', 'mfma') and not c.get('trans') and vW & c['R']: need, why = max(need, 1), 'trans->valu'
                if c['cls'] == 'vmem' and sW & c['R']: need, why = max(need, 5), 'valu sgpr->vmem'
                if c['cls'] == 'valu' and (sW - {('s', 'exec')}) & c['R']: need, why = max(need, 4 if c.get('rl') else 2), 'valu sgpr->valu'
                if ('s', 'exec') in sW and (c.get('dpp')): need, why = max(need, 5), 'valu exec->dpp'
                if ('s', 'exec') in sW and (c['cls'] == 'mfma' or c.get('perm') or c.get('rl')): need, why = max(need, 4), 'valu exec->mfma/perm'
            if p['cls'] == 'mfma':
                ps = p['passes']
                big = {4: 8, 8: 12}[ps]
                if c['cls'] in ('valu', 'vmem', 'ds') and vW & (c['R'] | c['W']): need, why = big, 'mfma D->valu/mem'
                if c['cls'] == 'mfma':
                    if vW & (c['A'] | c['B']): need, why = big, 'mfma D->mfma AB'
                    elif vW & c['C'] and (vW != c['C'] or c['passes'] != ps): need, why = {4: 6, 8: 10}[ps], 'mfma D->mfma C overlap'
                if c['cls'] == 'valu' and p['C'] & c['W']: need, why = max(need, {4: 3, 8: 7}[ps]), 'mfma C WAR'
            if p['cls'] == 'salu' and ('s', 'm0') in p['W'] and c.get('ldsdma'): need, why = 1, 'm0->dma'
            if p['cls'] == 'vmem' and p.get('wide') and c['cls'] in ('valu',) and p['sdata'] & c['W']: need, why = 2, 'store data WAR'
            if p['cls'] == 'vmem' and p.get('wide') and c['cls'] in ('ds', 'vmem') and p['sdata'] & c['W']: need, why = 1, 'store data WAR'
            if need > dist:
                probs.append(f"line {c['n']}: '{c['text']}' needs {need} states after line {p['n']} '{p['text']}' ({why}), has {dist}")
            dist += p.get('nop', 1) if p['cls'] != 'label' else 0
            if dist >= 20: break
    return probs
if __name__ == "__main__":
    import sys
    for p in check(open(sys.argv[1]).read()): print(p)
```

```python
import sys
from asmlib import *
import hazard

WS_H1 = 0x000000
WS_Q  = 0x080000
WS_QF = 0x0A0000
WS_GO = 0x0B0000
WS_ML = 0x100000
WS_S  = 0x200000
WS_F  = 0x300000
WS_O  = 0x400000
WS_TS = 0x1000000
WS_SIZE = 268435456
LOG2E = 1.4426950408889634
QSCALE = LOG2E * 128 ** -0.5
import struct
def f2u(x): return struct.unpack("<I", struct.pack("<f", x))[0]

class Cfg:
    ts = False
    npre = 2
    go_cnt = 8
    cwin = 0
    nsamp = 7
    samp_sleep = 3
    prefetch = True
    poll_sleep = 1
    nt = "nt"
    nt_wo = "nt"
    spin = 30000

def gen(cfg=Cfg):
    a = Asm()
    K = NAME + "_kernel"
    NT = cfg.nt
    tsn = [0]
    def ts(idx):
        if cfg.ts:
            a(f"s_memrealtime s[{64+2*idx}:{65+2*idx}]")
    def ts_flush(nmax=16):
        if not cfg.ts: return
        a("s_waitcnt lgkmcnt(0)")
        a("s_lshl_b32 s44, s2, 3\ns_add_u32 s44, s44, s3\ns_lshl_b32 s44, s44, 6")
        a(f"s_add_u32 s44, s44, {WS_TS}")
        a("s_mov_b64 exec, 1")
        a("v_mov_b32 v1, 0")
        for q in range(4):
            for k in range(4):
                a(f"v_mov_b32 v{4+k}, s{64+2*(4*q+k)}")
            a(f"buffer_store_dwordx4 v[4:7], v1, s[8:11], s44 offen offset:{16*q}")
            a("s_nop 1")
        a("s_waitcnt vmcnt(0)")
    def srd(base, size):
        a(f"s_mov_b32 s{base+2}, {size}\ns_mov_b32 s{base+3}, 0x20000")
    def allreduce16(v, t, op):
        for r in (8, 4, 2, 1):
            a("s_nop 1")
            a(f"{op}_dpp v{v}, v{v}, v{v} row_ror:{r} row_mask:0xf bank_mask:0xf")
        for sw in ("v_permlane16_swap_b32", "v_permlane32_swap_b32"):
            a(f"v_mov_b32 v{t}, v{v}")
            a("s_nop 1")
            a(f"{sw} v{v}, v{t}")
            a(f"{op} v{v}, v{v}, v{t}")
    def layernorm(vx, vo, vt):
        f = [vt + i for i in range(8)]
        s, t, u = vt + 8, vt + 9, vt + 10
        for i in range(4):
            a(f"v_lshlrev_b32 v{f[2*i]}, 16, v{vx+i}")
            a(f"v_and_b32 v{f[2*i+1]}, 0xffff0000, v{vx+i}")
        a(f"v_add_f32 v{s}, v{f[0]}, v{f[1]}")
        a(f"v_add_f32 v{t}, v{f[2]}, v{f[3]}")
        a(f"v_add_f32 v{u}, v{f[4]}, v{f[5]}")
        a(f"v_add_f32 v{s}, v{s}, v{f[6]}")
        a(f"v_add_f32 v{t}, v{t}, v{f[7]}")
        a(f"v_add_f32 v{s}, v{s}, v{u}")
        a(f"v_add_f32 v{s}, v{s}, v{t}")
        allreduce16(s, t, "v_add_f32")
        a(f"v_mul_f32 v{s}, {hex(f2u(1/512))}, v{s}")
        m2 = vt + 11
        a(f"v_sub_f32 v{t}, v{f[0]}, v{s}")
        a(f"v_mul_f32 v{m2}, v{t}, v{t}")
        for i in range(1, 8):
            a(f"v_sub_f32 v{t}, v{f[i]}, v{s}")
            a(f"v_fmac_f32 v{m2}, v{t}, v{t}")
        allreduce16(m2, t, "v_add_f32")
        a(f"v_mul_f32 v{m2}, {hex(f2u(1/512))}, v{m2}")
        a(f"v_cvt_pk_bf16_f32 v{t}, v{s}, v{m2}")
        a(f"v_lshlrev_b32 v{s}, 16, v{t}")
        a(f"v_and_b32 v{m2}, 0xffff0000, v{t}")
        a(f"v_add_f32 v{m2}, {hex(f2u(1e-5))}, v{m2}")
        a(f"v_cvt_pk_bf16_f32 v{m2}, v{m2}, v{m2}")
        a(f"v_and_b32 v{m2}, 0xffff0000, v{m2}")
        a(f"v_sqrt_f32 v{m2}, v{m2}")
        for i in range(8):
            a(f"v_sub_f32 v{f[i]}, v{f[i]}, v{s}")
        a(f"v_cvt_pk_bf16_f32 v{m2}, v{m2}, v{m2}")
        a(f"v_and_b32 v{m2}, 0xffff0000, v{m2}")
        a(f"v_rcp_f32 v{m2}, v{m2}")
        for i in range(4):
            a(f"v_cvt_pk_bf16_f32 v{vo+i}, v{f[2*i]}, v{f[2*i+1]}")
        for i in range(4):
            a(f"v_lshlrev_b32 v{f[2*i]}, 16, v{vo+i}")
            a(f"v_and_b32 v{f[2*i+1]}, 0xffff0000, v{vo+i}")
        for i in range(8):
            a(f"v_mul_f32 v{f[i]}, v{f[i]}, v{m2}")
        for i in range(4):
            a(f"v_cvt_pk_bf16_f32 v{vo+i}, v{f[2*i]}, v{f[2*i+1]}")
    def psleep():
        if cfg.poll_sleep: a(f"s_sleep {cfg.poll_sleep}")
    def budget():
        a(f"s_movk_i32 s96, {cfg.spin}")
    def spend(exit_label):
        a("s_sub_u32 s96, s96, 1")
        a(f"s_cbranch_scc1 {exit_label}")

    if cfg.ts:
        for i in range(1, 16): a(f"s_mov_b32 s{64+2*i}, 0")
    ts(0)
    a("s_cmp_ge_u32 s2, 128")
    a("s_cbranch_scc1 .L_A")
    XN = 32768
    XNS = 1088
    NL = XN + 2304
    QV = NL + 64
    QS = QV + 576
    a("s_load_dwordx2 s[16:17], s[0:1], 16")
    a("s_load_dwordx2 s[4:5], s[0:1], 0")
    a("s_load_dwordx2 s[12:13], s[0:1], 88")
    a("s_load_dwordx2 s[20:21], s[0:1], 24")
    a("s_load_dwordx2 s[8:9], s[0:1], 96")
    a("s_load_dwordx2 s[24:25], s[0:1], 32")
    a("s_load_dwordx2 s[28:29], s[0:1], 40")
    a("v_lshrrev_b32 v1, 6, v0")
    a("v_and_b32 v0, 63, v0")
    a("v_readfirstlane_b32 s3, v1")
    a("s_and_b32 s41, s2, 7\ns_lshl_b32 s41, s41, 2\ns_lshr_b32 s43, s2, 5\ns_add_u32 s41, s41, s43")
    a("s_bfe_u32 s42, s2, 0x20003")
    srd(16, 4194304); srd(4, 2048); srd(12, 256); srd(20, 4194304); srd(8, WS_SIZE); srd(24, 4194304); srd(28, 4194304)
    a("v_lshrrev_b32 v2, 4, v0")
    a("v_and_b32 v3, 15, v0")
    a("v_lshlrev_b32 v4, 1, v2")
    a("v_xor_b32 v4, v3, v4")
    a("v_lshlrev_b32 v4, 4, v4")
    a("v_lshl_add_u32 v5, v2, 13, v4")
    a("v_xor_b32 v6, 0x80, v5")
    a("v_xor_b32 v7, v3, v2")
    a("v_lshlrev_b32 v7, 4, v7")
    a("v_lshl_add_u32 v7, v2, 13, v7")
    a("s_lshl_b32 s44, s42, 7\ns_lshl_b32 s45, s3, 4\ns_add_u32 s44, s44, s45\ns_lshl_b32 s44, s44, 13")
    a("s_lshl_b32 s45, s41, 8\ns_add_u32 s44, s44, s45")
    a("s_lshl_b32 s46, s3, 12")
    a("v_lshlrev_b32 v8, 4, v0")
    a("v_mov_b32 v9, 0")
    a("s_lshl_b32 s47, s3, 10")
    a("s_waitcnt lgkmcnt(0)")
    ts(1)
    a("s_cmp_gt_u32 s3, 1")
    a("s_cbranch_scc1 .LW_nox")
    a("buffer_load_dwordx4 v[12:15], v8, s[4:7], s47 offen")
    a(".LW_nox:")
    a("s_cmp_lg_u32 s3, 2")
    a("s_cbranch_scc1 .LW_non0")
    a("s_cmp_lg_u32 s2, 0")
    a("s_cbranch_scc1 .LW_nogen")
    a("s_memrealtime s[48:49]")
    a("s_waitcnt lgkmcnt(0)")
    a("s_mul_i32 s48, s48, 0x9E3779B1")
    a("s_lshr_b32 s49, s48, 15\ns_xor_b32 s48, s48, s49")
    a("s_mul_i32 s48, s48, 0x85EBCA6B")
    a("s_lshr_b32 s49, s48, 13\ns_xor_b32 s48, s48, s49")
    a("s_max_u32 s48, s48, 1")
    a("v_mov_b32 v10, s48")
    a("s_mov_b64 exec, 1")
    a("buffer_store_dword v10, v9, s[12:15], 0 offen sc1")
    a("s_mov_b64 exec, -1")
    a(".LW_nogen:")
    a("buffer_load_dword v12, v9, s[12:15], 0 offen sc1")
    a(".LW_non0:")
    a("s_mov_b32 m0, s46")
    a("s_mov_b32 s45, s44")
    for i in range(4):
        a(f"buffer_load_dwordx4 v{5 if i < 2 else 6}, s[16:19], s45 offen {NT} lds")
        if i < 3:
            a("s_add_u32 m0, m0, 1024\ns_add_u32 s45, s45, 32768")
    ts(2)
    a("s_add_u32 s46, s46, 65536")
    a("s_cmp_gt_u32 s3, 2")
    a("s_cbranch_scc1 .LW_win")
    a("s_cmp_eq_u32 s3, 2")
    a("s_cbranch_scc1 .LW_samp")
    a("s_waitcnt vmcnt(4)")
    layernorm(12, 16, 20)
    a(f"s_mul_i32 s45, s3, {XNS}\ns_add_u32 s45, s45, {XN}")
    a("v_add_u32 v10, s45, v8")
    a("ds_write_b128 v10, v[16:19]")
    a("s_branch .LW_win")
    a(".LW_samp:")
    for k in range(1, cfg.nsamp):
        a(f"s_sleep {cfg.samp_sleep}")
        a(f"buffer_load_dword v{12+k}, v9, s[12:15], 0 offen sc1")
    a("s_mov_b32 m0, s46\ns_mov_b32 s45, s44")
    for i in range(4):
        if i: a(f"v_xor_b32 v10, {64*i}, v7")
        a(f"buffer_load_dwordx4 v{10 if i else 7}, s[20:23], s45 offen {NT} lds")
        if i < 3:
            a("s_add_u32 m0, m0, 1024\ns_add_u32 s45, s45, 32768")
    a("s_waitcnt vmcnt(4)")
    for k in range(1, cfg.nsamp):
        a(f"v_max_u32 v12, v12, v{12+k}")
    budget()
    a(".LW_nchk:")
    a("s_nop 0")
    a("v_readfirstlane_b32 s40, v12")
    a("s_cmp_lg_u32 s40, 0")
    a("s_cbranch_scc1 .LW_ngot")
    spend(".LW_ngot")
    a("buffer_load_dword v12, v9, s[12:15], 0 offen sc1")
    a("s_waitcnt vmcnt(0)")
    a("s_branch .LW_nchk")
    a(".LW_ngot:")
    a(f"v_mov_b32 v10, {NL}")
    a("ds_write_b32 v10, v12")
    a("s_branch .LW_b1")
    a(".LW_win:")
    a("s_mov_b32 m0, s46\ns_mov_b32 s45, s44")
    for i in range(4):
        if i: a(f"v_xor_b32 v10, {64*i}, v7")
        a("s_waitcnt vmcnt(3)")
        a(f"buffer_load_dwordx4 v{10 if i else 7}, s[20:23], s45 offen {NT} lds")
        if i < 3:
            a("s_add_u32 m0, m0, 1024\ns_add_u32 s45, s45, 32768")
    a(".LW_b1:")
    a("v_lshrrev_b32 v20, 2, v3")
    a("v_and_b32 v21, 1, v2")
    a("v_lshlrev_b32 v21, 3, v21")
    a("v_lshl_add_u32 v21, v20, 1, v21")
    a("v_bfe_u32 v22, v0, 1, 1")
    a("s_lshl_b32 s45, s3, 1")
    a("v_add_u32 v23, s45, v22")
    a("v_xor_b32 v23, v23, v21")
    a("v_lshlrev_b32 v23, 4, v23")
    a("v_lshl_add_u32 v24, v2, 3, v20")
    a("v_lshl_add_u32 v23, v24, 8, v23")
    a("v_and_b32 v25, 1, v0")
    a("v_lshl_add_u32 v11, v25, 3, v23")
    a(f"v_mul_u32_u24 v26, {XNS}, v25")
    a("v_lshl_add_u32 v26, v2, 4, v26")
    a(f"s_lshl_b32 s45, s42, 8\ns_add_u32 s45, s45, {XN}")
    a("v_add_u32 v26, s45, v26")
    a("s_waitcnt vmcnt(4) lgkmcnt(0)")
    ts(3)
    a("s_barrier")
    ts(4)
    a(f"v_mov_b32 v27, {NL}")
    a("ds_read_b32 v27, v27")
    for s in range(4):
        a(f"ds_read_b128 v[{32+4*s}:{35+4*s}], v26 offset:{64*s}")
        a(f"ds_read_b64_tr_b16 v[{48+4*s}:{49+4*s}], v11 offset:{(32*s)*256}")
        a(f"ds_read_b64_tr_b16 v[{50+4*s}:{51+4*s}], v11 offset:{(32*s+4)*256}")
    a("v_lshlrev_b32 v28, 9, v25")
    a("v_lshl_add_u32 v28, v2, 4, v28")
    a("s_lshl_b32 s50, s41, 2\ns_add_u32 s50, s50, s42")
    a(f"s_lshl_b32 s45, s50, 10\ns_lshl_b32 s47, s3, 6\ns_add_u32 s45, s45, s47")
    if WS_H1: a(f"s_add_u32 s45, s45, {WS_H1}")
    a("v_lshlrev_b32 v29, 3, v2")
    a("s_waitcnt lgkmcnt(9)")
    a("v_mfma_f32_16x16x32_bf16 v[64:67], v[48:51], v[32:35], 0")
    a("v_readfirstlane_b32 s40, v27")
    a("v_lshrrev_b32 v29, v29, v27")
    a("s_waitcnt lgkmcnt(6)")
    a("v_mfma_f32_16x16x32_bf16 v[64:67], v[52:55], v[36:39], v[64:67]")
    a("v_lshrrev_b32 v30, 2, v29")
    a("s_waitcnt lgkmcnt(3)")
    a("v_mfma_f32_16x16x32_bf16 v[64:67], v[56:59], v[40:43], v[64:67]")
    a("v_lshrrev_b32 v31, 4, v29")
    a("s_waitcnt lgkmcnt(0)")
    a("v_mfma_f32_16x16x32_bf16 v[64:67], v[60:63], v[44:47], v[64:67]")
    a("v_lshrrev_b32 v27, 6, v29")
    a("s_mov_b32 exec_lo, 0x00030003\ns_mov_b32 exec_hi, 0x00030003")
    a("s_nop 4")
    a("v_bfi_b32 v64, 3, v29, v64\nv_bfi_b32 v65, 3, v30, v65\nv_bfi_b32 v66, 3, v31, v66\nv_bfi_b32 v67, 3, v27, v67")
    a("buffer_store_dwordx4 v[64:67], v28, s[8:11], s45 offen sc1")
    a("s_mov_b64 exec, -1")
    ts(5)
    a("v_xor_b32 v20, v2, v3")
    a("v_lshlrev_b32 v20, 4, v20")
    a("v_lshl_add_u32 v20, v3, 8, v20")
    a("s_lshl_b32 s45, s3, 12\ns_add_u32 s45, s45, 65536")
    a("v_add_u32 v20, s45, v20")
    a("s_cmp_lg_u32 s3, 0")
    a("s_cbranch_scc1 .LW_h1w")
    a("v_and_b32 v21, 3, v0\nv_lshlrev_b32 v21, 3, v21")
    a("v_mov_b32 v22, s40")
    a("v_lshrrev_b32 v22, v21, v22")
    a("v_lshrrev_b32 v23, 2, v22\nv_lshrrev_b32 v24, 4, v22\nv_lshrrev_b32 v21, 6, v22")
    a(f"s_lshl_b32 s45, s41, 12")
    if WS_H1: a(f"s_add_u32 s45, s45, {WS_H1}")
    budget()
    a(".LW_h1p:")
    spend(".LW_h1g")
    for i in range(4):
        a(f"buffer_load_dwordx4 v[{32+4*i}:{35+4*i}], v8, s[8:11], s45 offen offset:{1024*i} sc1")
    a("s_waitcnt vmcnt(3)")
    a("v_xor_b32 v48, v32, v22")
    a("v_bitop3_b32 v48, v48, v33, v23 bitop3:0xf6\nv_bitop3_b32 v48, v48, v34, v24 bitop3:0xf6\nv_bitop3_b32 v48, v48, v35, v21 bitop3:0xf6")
    for i in range(1, 4):
        a(f"s_waitcnt vmcnt({3-i})")
        for k, e in enumerate((22, 23, 24, 21)):
            a(f"v_bitop3_b32 v48, v48, v{32+4*i+k}, v{e} bitop3:0xf6")
        for k in range(4):
            a(f"v_add_f32 v{32+k}, v{32+k}, v{32+4*i+k}")
    a("v_and_b32 v48, 3, v48")
    a("v_cmp_ne_u32 vcc, 0, v48")
    a("s_cbranch_vccnz .LW_h1p")
    a(".LW_h1g:")
    a("v_cvt_pk_bf16_f32 v32, v32, v33\nv_cvt_pk_bf16_f32 v33, v34, v35")
    a("v_lshrrev_b32 v34, 5, v0\nv_mul_u32_u24 v34, 272, v34\nv_and_b32 v35, 31, v0\nv_lshl_add_u32 v34, v35, 3, v34")
    a(f"ds_write_b64 v34, v[32:33] offset:{QV}")
    a(".LW_h1w:")
    a("s_waitcnt vmcnt(0)")
    for s in range(4):
        if s: a(f"v_xor_b32 v21, {64*s}, v20")
        a(f"ds_read_b128 v[{48+4*s}:{51+4*s}], v{21 if s else 20}")
    a("v_mul_u32_u24 v26, 272, v25")
    a("v_lshl_add_u32 v26, v2, 4, v26")
    a("s_waitcnt lgkmcnt(0)")
    ts(6)
    a("s_barrier")
    for s in range(4):
        a(f"ds_read_b128 v[{32+4*s}:{35+4*s}], v26 offset:{QV+64*s}")
    a("v_lshlrev_b32 v27, 8, v25")
    a("v_lshl_add_u32 v27, v2, 3, v27")
    a("s_lshl_b32 s45, s3, 5")
    a("v_add_u32 v27, s45, v27")
    a(f"s_mov_b32 s47, {hex(f2u(QSCALE))}")
    for s in range(4):
        a(f"s_waitcnt lgkmcnt({3-s})")
        a(f"v_mfma_f32_16x16x32_bf16 v[64:67], v[{48+4*s}:{51+4*s}], v[{32+4*s}:{35+4*s}], {'0' if s == 0 else 'v[64:67]'}")
    a("s_mov_b32 exec_lo, 0x00030003\ns_mov_b32 exec_hi, 0x00030003")
    a("s_nop 5")
    for k in range(4): a(f"v_mul_f32 v{64+k}, s47, v{64+k}")
    a("v_cvt_pk_bf16_f32 v64, v64, v65\nv_cvt_pk_bf16_f32 v65, v66, v67")
    a(f"ds_write_b64 v27, v[64:65] offset:{QS}")
    a("s_mov_b64 exec, -1")
    a("s_waitcnt lgkmcnt(0)")
    a("s_barrier")
    a("s_cmp_lg_u32 s3, 0")
    a("s_cbranch_scc1 .LW_go")
    a(f"ds_read_b128 v[32:35], v8 offset:{QS}")
    a("v_lshlrev_b32 v36, 15, v2\nv_lshl_add_u32 v36, v3, 4, v36")
    a(f"s_lshl_b32 s45, s41, 10\ns_lshl_b32 s47, s42, 8\ns_add_u32 s45, s45, s47\ns_add_u32 s45, s45, {WS_Q}")
    a("s_mov_b32 exec_hi, 0")
    a("s_waitcnt lgkmcnt(0)")
    a("buffer_store_dwordx4 v[32:35], v36, s[8:11], s45 offen sc1")
    a(f"s_lshl_b32 s45, s50, 7\ns_add_u32 s45, s45, {WS_QF}")
    a("v_mov_b32 v37, s40")
    a("s_mov_b32 exec_lo, 1")
    a("s_waitcnt vmcnt(0)")
    a("buffer_store_dword v37, v9, s[8:11], s45 offen sc1")
    ts(7)
    a(f"s_lshl_b32 s45, s2, 7\ns_add_u32 s45, s45, {WS_GO}")
    budget()
    a(".LW_gop:")
    spend(".LW_gog")
    a("buffer_load_dword v37, v9, s[8:11], s45 offen sc1")
    a("s_waitcnt vmcnt(0)")
    a("v_readfirstlane_b32 s47, v37")
    a("s_cmp_eq_u32 s47, s40")
    a("s_cbranch_scc1 .LW_gog")
    psleep()
    a("s_branch .LW_gop")
    a(".LW_gog:")
    a("s_mov_b64 exec, -1")
    a(".LW_go:")
    a("v_and_b32 v20, 1, v2\nv_lshlrev_b32 v20, 5, v20\nv_lshrrev_b32 v21, 1, v2\nv_add_u32 v20, v20, v21")
    a("v_lshl_add_u32 v20, v20, 13, v4")
    a("v_xor_b32 v21, 0x80, v20")
    a("s_lshl_b32 s44, s42, 7\ns_lshr_b32 s45, s3, 2\ns_lshl_b32 s45, s45, 6\ns_add_u32 s44, s44, s45")
    a("s_and_b32 s45, s3, 3\ns_lshl_b32 s45, s45, 3\ns_add_u32 s44, s44, s45\ns_lshl_b32 s44, s44, 13")
    a("s_lshl_b32 s45, s41, 8\ns_add_u32 s44, s44, s45")
    a("s_lshl_b32 s46, s3, 12\ns_add_u32 s46, s46, 131072")
    a("s_barrier")
    ts(8)
    a("s_mov_b32 m0, s46")
    for i in range(4):
        if i == 0: a("s_nop 0")
        a(f"buffer_load_dwordx4 v{20 if i < 2 else 21}, s[24:27], s44 offen {NT} lds")
        if i < 3:
            a("s_add_u32 m0, m0, 1024\ns_add_u32 s44, s44, 16384")
    a("s_lshl_b32 s46, s3, 14")
    a("s_lshl_b32 s44, s41, 17\ns_add_u32 s44, s44, s46")
    a("s_mov_b32 m0, s46")
    for i in range(16):
        f1 = 2 * ((i & 3) + 4 * ((i >> 3) & 1))
        if i % 4 == 0 and i:
            a("s_add_u32 m0, m0, 4096\ns_add_u32 s44, s44, 4096")
        a(f"v_xor_b32 v22, {16*f1}, v8")
        a(f"buffer_load_dwordx4 v22, s[28:31], s44 offen offset:{1024*(i&3)} {cfg.nt_wo} lds")
    a("v_lshrrev_b32 v20, 2, v3")
    a("v_and_b32 v21, 1, v2\nv_lshlrev_b32 v21, 3, v21\nv_lshl_add_u32 v21, v20, 1, v21")
    a("v_bfe_u32 v22, v0, 1, 1")
    a("s_lshl_b32 s45, s3, 3")
    a("v_add_u32 v23, s45, v22")
    a("v_xor_b32 v23, v23, v21\nv_lshlrev_b32 v23, 4, v23")
    a("v_lshl_add_u32 v24, v2, 3, v20")
    a("v_lshl_add_u32 v23, v24, 10, v23")
    a("v_lshl_add_u32 v12, v25, 3, v23")
    a("v_xor_b32 v13, 32, v12\nv_xor_b32 v14, 64, v12\nv_xor_b32 v15, 96, v12")
    for k in range(4): a(f"v_add_u32 v{16+k}, 0x10000, v{12+k}")
    a("v_add_u32 v20, 0x20000, v11")
    a("s_waitcnt vmcnt(0)")
    ts(9)
    a("s_barrier")
    cnt = 0
    for s in range(4):
        a(f"ds_read_b64_tr_b16 v[{96+4*s}:{97+4*s}], v20 offset:{(32*s)*256}")
        a(f"ds_read_b64_tr_b16 v[{98+4*s}:{99+4*s}], v20 offset:{(32*s+4)*256}")
    for jb in range(4):
        for s in range(4):
            base = (12 if s < 2 else 16) + jb
            r = 112 + 4 * (jb * 4 + s)
            a(f"ds_read_b64_tr_b16 v[{r}:{r+1}], v{base} offset:{(32*(s&1))*1024}")
            a(f"ds_read_b64_tr_b16 v[{r+2}:{r+3}], v{base} offset:{(32*(s&1)+4)*1024}")
    SC = 32768; XX = SC + 512; YY = XX + 576; FL = YY + 576
    a("v_lshl_add_u32 v12, v2, 8, v4")
    a("v_xor_b32 v13, 0x80, v12")
    a(f"s_lshl_b32 s44, s50, 15\ns_lshl_b32 s46, s3, 12\ns_add_u32 s44, s44, s46\ns_add_u32 s44, s44, {WS_O}")
    a("s_and_b32 s45, s3, 1\ns_lshl_b32 s45, s45, 4")
    a("v_add_u32 v14, s45, v3")
    a("v_mov_b32 v15, s40")
    a("v_lshrrev_b32 v14, v14, v15")
    a("v_and_b32 v14, 1, v14")
    a("v_mul_u32_u24 v14, 0x10001, v14")
    a("v_lshrrev_b32 v16, 1, v3\nv_lshlrev_b32 v16, 6, v16\nv_lshl_add_u32 v16, v25, 11, v16\nv_lshl_add_u32 v16, v2, 4, v16")
    a(f"s_lshl_b32 s51, s2, 12\ns_lshl_b32 s45, s3, 8\ns_add_u32 s51, s51, s45\ns_add_u32 s51, s51, {WS_S}")
    a("v_lshlrev_b32 v17, 3, v2\nv_lshrrev_b32 v17, v17, v15")
    a("v_lshrrev_b32 v18, 2, v17\nv_lshrrev_b32 v19, 4, v17\nv_lshrrev_b32 v20, 6, v17")
    a("v_mul_u32_u24 v21, 272, v25\nv_lshl_add_u32 v21, v2, 3, v21\ns_lshl_b32 s45, s3, 5\nv_add_u32 v21, s45, v21")
    a("v_lshlrev_b32 v22, 4, v2")
    a("s_lshl_b32 s45, s3, 2\nv_mov_b32 v23, s45")
    a("s_mov_b32 s52, 0xaaaaaaaa\ns_mov_b32 s53, 0xaaaaaaaa")
    a("s_mov_b32 s54, 0xcccccccc\ns_mov_b32 s55, 0xcccccccc")
    a("s_mov_b32 s56, 0xf0f0f0f0\ns_mov_b32 s57, 0xf0f0f0f0")
    a("s_cmp_lg_u32 s3, 0")
    a("s_cbranch_scc1 .LW_mlw")
    a("v_lshlrev_b32 v24, 11, v0")
    a(f"s_lshl_b32 s45, s42, 9\ns_lshl_b32 s47, s41, 4\ns_add_u32 s45, s45, s47\ns_add_u32 s45, s45, {WS_ML}\ns_add_u32 s47, s45, {64*2048}")
    budget()
    a(".LW_mlp:")
    spend(".LW_mlw")
    a("buffer_load_dwordx4 v[32:35], v24, s[8:11], s45 offen sc1")
    a("buffer_load_dwordx4 v[36:39], v24, s[8:11], s47 offen sc1")
    a("s_waitcnt vmcnt(0)")
    a("v_cmp_ne_u32 vcc, s40, v34")
    a("v_cmp_ne_u32 s[58:59], s40, v38")
    a("s_or_b64 vcc, vcc, s[58:59]")
    a("s_cbranch_vccz .LW_mlw")
    psleep()
    a("s_branch .LW_mlp")
    a(".LW_mlw:")
    a("s_waitcnt lgkmcnt(0)")
    budget()
    a(".LW_retry:")
    a("s_barrier")
    ts(10)
    a("s_mov_b32 m0, s46")
    for i in range(4):
        if i == 0: a("s_nop 0")
        a(f"buffer_load_dwordx4 v{12 if i < 2 else 13}, s[8:11], s44 offen offset:{1024*i} sc1 lds")
    a("s_cmp_lg_u32 s3, 0")
    a("s_cbranch_scc1 .LW_scw")
    a("v_mov_b32 v40, v32\nv_mov_b32 v41, v36")
    allreduce16(40, 42, "v_max_f32")
    allreduce16(41, 42, "v_max_f32")
    a("v_sub_f32 v40, v32, v40\nv_sub_f32 v41, v36, v41")
    a("v_exp_f32 v40, v40\nv_exp_f32 v41, v41")
    a("s_nop 0")
    a("v_mul_f32 v43, v40, v33\nv_mul_f32 v44, v41, v37")
    allreduce16(43, 42, "v_add_f32")
    allreduce16(44, 42, "v_add_f32")
    a("v_rcp_f32 v43, v43\nv_rcp_f32 v44, v44")
    a("s_nop 0")
    a("v_mul_f32 v40, v40, v43\nv_mul_f32 v41, v41, v44")
    a("v_cvt_pk_bf16_f32 v40, v40, v41")
    a("v_lshlrev_b32 v42, 1, v0")
    a(f"ds_write_b16 v42, v40 offset:{SC}")
    a(f"ds_write_b16_d16_hi v42, v40 offset:{SC+128}")
    a(".LW_scw:")
    a("s_waitcnt vmcnt(0) lgkmcnt(0)")
    ts(11)
    a("s_barrier")
    for s in range(4):
        a(f"ds_read_b128 v[{48+4*s}:{51+4*s}], v22 offset:{SC+64*s}")
        a(f"ds_read_b64_tr_b16 v[{64+4*s}:{65+4*s}], v11 offset:{(32*s)*256}")
        a(f"ds_read_b64_tr_b16 v[{66+4*s}:{67+4*s}], v11 offset:{(32*s+4)*256}")
    a("s_waitcnt lgkmcnt(9)")
    a("v_mfma_f32_16x16x32_bf16 v[80:83], v[64:67], v[48:51], 0")
    a("v_xor_b32 v27, v64, v14")
    for k in (65, 66, 67): a(f"v_bitop3_b32 v27, v27, v{k}, v14 bitop3:0xf6")
    a("s_waitcnt lgkmcnt(6)")
    a("v_mfma_f32_16x16x32_bf16 v[80:83], v[68:71], v[52:55], v[80:83]")
    for k in range(68, 72): a(f"v_bitop3_b32 v27, v27, v{k}, v14 bitop3:0xf6")
    a("s_waitcnt lgkmcnt(3)")
    a("v_mfma_f32_16x16x32_bf16 v[84:87], v[72:75], v[56:59], 0")
    for k in range(72, 76): a(f"v_bitop3_b32 v27, v27, v{k}, v14 bitop3:0xf6")
    a("s_waitcnt lgkmcnt(0)")
    a("v_mfma_f32_16x16x32_bf16 v[84:87], v[76:79], v[60:63], v[84:87]")
    for k in range(76, 80): a(f"v_bitop3_b32 v27, v27, v{k}, v14 bitop3:0xf6")
    a("v_and_b32 v27, 0x10001, v27")
    a("v_cmp_ne_u32 vcc, 0, v27")
    a("s_or_b32 s45, vcc_lo, vcc_hi")
    a("v_mov_b32 v27, s45")
    a("s_mov_b32 exec_lo, 0x00030003\ns_mov_b32 exec_hi, 0x00030003")
    for k in range(4): a(f"v_cndmask_b32 v{80+k}, v{80+k}, v{84+k}, s[52:53]")
    a("v_cvt_pk_bf16_f32 v80, v80, v81\nv_cvt_pk_bf16_f32 v81, v82, v83")
    a(f"ds_write_b64 v21, v[80:81] offset:{XX}")
    a(f"ds_write_b32 v23, v27 offset:{FL}")
    a("s_mov_b64 exec, -1")
    a("s_waitcnt lgkmcnt(0)")
    a("s_barrier")
    for s in range(4):
        a(f"ds_read_b128 v[{48+4*s}:{51+4*s}], v26 offset:{XX+64*s}")
    a(f"ds_read_b128 v[64:67], v9 offset:{FL}")
    a(f"ds_read_b128 v[68:71], v9 offset:{FL+16}")
    for s in range(4):
        a(f"s_waitcnt lgkmcnt({5-s})")
        a(f"v_mfma_f32_16x16x32_bf16 v[80:83], v[{96+4*s}:{99+4*s}], v[{48+4*s}:{51+4*s}], {'0' if s == 0 else 'v[80:83]'}")
    a("s_waitcnt lgkmcnt(0)")
    a("v_or3_b32 v64, v64, v65, v66\nv_or3_b32 v64, v64, v67, v68\nv_or3_b32 v64, v64, v69, v70\nv_or_b32 v64, v64, v71")
    a("s_mov_b32 exec_lo, 0x00030003\ns_mov_b32 exec_hi, 0x00030003")
    a("v_readfirstlane_b32 s45, v64")
    a("v_cvt_pk_bf16_f32 v80, v80, v81\nv_cvt_pk_bf16_f32 v81, v82, v83")
    a(f"ds_write_b64 v21, v[80:81] offset:{YY}")
    a("s_mov_b64 exec, -1")
    a("s_waitcnt lgkmcnt(0)")
    a("s_cmp_eq_u32 s45, 0")
    a("s_cbranch_scc1 .LW_rok")
    a("s_sub_u32 s96, s96, 1")
    a("s_cbranch_scc0 .LW_retry")
    a(".LW_rok:")
    a("s_barrier")
    for s in range(4):
        a(f"ds_read_b128 v[{48+4*s}:{51+4*s}], v26 offset:{YY+64*s}")
    for s in range(4):
        a(f"s_waitcnt lgkmcnt({3-s})")
        for jb in range(4):
            r = 112 + 4 * (jb * 4 + s)
            a(f"v_mfma_f32_16x16x32_bf16 v[{64+4*jb}:{67+4*jb}], v[{r}:{r+3}], v[{48+4*s}:{51+4*s}], {'0' if s == 0 else f'v[{64+4*jb}:{67+4*jb}]'}")
    a("s_mov_b32 exec_lo, 0x00ff00ff\ns_mov_b32 exec_hi, 0x00ff00ff")
    a("s_nop 3")
    for k in range(4): a(f"v_cndmask_b32 v{64+k}, v{64+k}, v{68+k}, s[54:55]")
    for k in range(4): a(f"v_cndmask_b32 v{72+k}, v{72+k}, v{76+k}, s[54:55]")
    for k in range(4): a(f"v_cndmask_b32 v{64+k}, v{64+k}, v{72+k}, s[56:57]")
    for k in range(4): a(f"v_bfi_b32 v{64+k}, 3, v{17+k}, v{64+k}")
    a("buffer_store_dwordx4 v[64:67], v16, s[8:11], s51 offen sc1")
    ts(12)
    if cfg.ts:
        a("s_waitcnt vmcnt(0)")
        ts(13)
    ts_flush()
    a("s_endpgm")

    QR = 131072
    MX = QR; LS = QR + 512; NLA = QR + 1024 - 16; PX = QR + 1024
    FXN = QR + 16384; FG = FXN + 2304; FH = FG + 8192
    a(".L_A:")
    a("s_cmp_ge_u32 s2, 256")
    a("s_cbranch_scc1 .L_end")
    a("s_load_dwordx2 s[16:17], s[0:1], 8")
    a("s_load_dwordx2 s[12:13], s[0:1], 88")
    a("s_load_dwordx2 s[8:9], s[0:1], 96")
    a("s_load_dwordx2 s[4:5], s[0:1], 0")
    a("s_load_dwordx2 s[20:21], s[0:1], 56")
    a("s_load_dwordx2 s[24:25], s[0:1], 64")
    a("s_load_dwordx2 s[28:29], s[0:1], 72")
    a("v_lshrrev_b32 v1, 6, v0")
    a("v_and_b32 v0, 63, v0")
    a("v_readfirstlane_b32 s3, v1")
    a("s_sub_u32 s43, s2, 128")
    a("s_bfe_u32 s41, s43, 0x10002")
    a("s_lshr_b32 s42, s43, 3\ns_lshl_b32 s42, s42, 2\ns_and_b32 s44, s43, 3\ns_add_u32 s42, s42, s44")
    a("s_lshl_b32 s44, s41, 6\ns_add_u32 s42, s42, s44")
    srd(16, 16777216); srd(12, 256); srd(8, WS_SIZE); srd(4, 2048); srd(20, 1409024); srd(24, 1409024); srd(28, 1409024)
    a("v_lshlrev_b32 v8, 4, v0")
    a("v_mov_b32 v9, 0")
    a("s_cmp_lt_u32 s3, 4")
    a("s_cbranch_scc1 .LA_comp")
    a("s_sub_u32 s47, s3, 4")
    a("s_lshl_b32 s46, s47, 15")
    a("s_lshl_b32 s44, s42, 17\ns_add_u32 s44, s44, s46")
    a("s_mov_b32 m0, s46")
    a("s_waitcnt lgkmcnt(0)")
    ts(1)
    a("s_lshl_b32 s45, s47, 10")
    a("buffer_load_dwordx4 v[12:15], v8, s[4:7], s45 offen")
    def crow(i):
        f = ((i & 3) << 2) | ((i >> 2) & 3)
        if i % 4 == 0 and i:
            a("s_add_u32 m0, m0, 4096\ns_add_u32 s44, s44, 4096")
        a(f"v_xor_b32 v10, {16*f}, v8")
        a(f"buffer_load_dwordx4 v10, s[16:19], s44 offen offset:{1024*(i&3)} {NT} lds")
    for i in range(cfg.npre): crow(i)
    a("s_barrier")
    ts(2)
    for i in range(cfg.npre, 32):
        if cfg.cwin and i >= cfg.cwin: a(f"s_waitcnt vmcnt({cfg.cwin-1})")
        crow(i)
    ts(3)
    a(f"v_mov_b32 v10, {NLA}")
    a("ds_read_b32 v11, v10")
    a(f"s_lshl_b32 s45, s43, 7\ns_add_u32 s45, s45, {WS_GO}")
    a("s_cmp_lg_u32 s3, 4")
    a("s_cbranch_scc1 .LH_nogo")
    a(f"s_waitcnt vmcnt({cfg.go_cnt}) lgkmcnt(0)")
    a("s_mov_b64 exec, 1")
    a("buffer_store_dword v11, v9, s[8:11], s45 offen sc1")
    a("s_mov_b64 exec, -1")
    a(".LH_nogo:")
    a("s_waitcnt lgkmcnt(0)")
    a("v_readfirstlane_b32 s40, v11")
    a("s_cmp_lt_u32 s43, 43")
    a("s_cbranch_scc1 .LH_F")
    a("s_waitcnt vmcnt(0)")
    ts(4)
    a("s_barrier\ns_barrier\ns_barrier\ns_barrier")
    ts_flush()
    a("s_endpgm")
    a(".LH_F:")
    a("s_waitcnt vmcnt(32)")
    layernorm(12, 16, 20)
    a("v_lshrrev_b32 v2, 4, v0\nv_and_b32 v3, 15, v0\nv_and_b32 v25, 1, v0")
    a("v_lshrrev_b32 v4, 2, v3\nv_lshlrev_b32 v4, 5, v4\nv_lshl_add_u32 v4, v2, 3, v4\nv_mul_u32_u24 v4, 2752, v4")
    a("v_and_b32 v5, 3, v3\nv_lshl_add_u32 v4, v5, 4, v4")
    a(f"s_mul_i32 s44, s47, {128*2752}\ns_lshl_b32 s45, s43, 6\ns_add_u32 s44, s44, s45")
    a("v_lshlrev_b32 v5, 13, v2\nv_lshl_add_u32 v5, v3, 4, v5")
    a("s_lshl_b32 s46, s43, 15\ns_lshl_b32 s45, s47, 8\ns_add_u32 s46, s46, s45")
    a("s_waitcnt vmcnt(0)")
    ts(4)
    a("s_barrier")
    for m, srdn in ((0, 20), (1, 24)):
        a("s_mov_b32 s45, s44")
        for i in range(8):
            r = 32 + 32 * m + 4 * i
            a(f"buffer_load_dwordx4 v[{r}:{r+3}], v4, s[{srdn}:{srdn+3}], s45 offen {NT}")
            if i < 7: a("s_add_u32 s45, s45, 2752")
    a("s_barrier\ns_barrier\ns_barrier")
    for i in range(8):
        r = 96 + 4 * i
        if i == 4: a("s_add_u32 s46, s46, 4096")
        a(f"buffer_load_dwordx4 v[{r}:{r+3}], v5, s[28:31], s46 offen offset:{1024*(i&3)} {NT}")
    a("s_cmp_gt_u32 s47, 1")
    a("s_cbranch_scc1 .LF_noxn")
    a(f"s_mul_i32 s45, s47, {XNS}\ns_add_u32 s45, s45, {FXN}")
    a("v_add_u32 v10, s45, v8")
    a("ds_write_b128 v10, v[16:19]")
    a(".LF_noxn:")
    a(f"v_mul_u32_u24 v6, {XNS}, v25\nv_bfe_u32 v7, v3, 1, 2\nv_lshl_add_u32 v6, v7, 6, v6\nv_lshl_add_u32 v6, v2, 4, v6")
    a(f"s_lshl_b32 s45, s47, 8\ns_add_u32 s45, s45, {FXN}\nv_add_u32 v6, s45, v6")
    a("s_mov_b32 s52, 0x05040100\ns_mov_b32 s53, 0x07060302")
    def transpose8(src, dst):
        for j in range(8):
            for e in range(4):
                a(f"v_perm_b32 v{dst+4*j+e}, v{src+4*(2*e+1)+(j>>1)}, v{src+4*(2*e)+(j>>1)}, s{52+(j&1)}")
    a("s_waitcnt vmcnt(16)")
    transpose8(32, 128)
    a("s_waitcnt vmcnt(8)")
    transpose8(64, 160)
    a("s_waitcnt lgkmcnt(0)")
    a("s_barrier")
    ts(5)
    a("ds_read_b128 v[20:23], v6")
    a("v_lshlrev_b32 v7, 9, v2\nv_lshl_add_u32 v7, v25, 8, v7")
    a(f"s_lshl_b32 s45, s47, 11\ns_add_u32 s45, s45, {FG}\nv_add_u32 v7, s45, v7")
    a("s_waitcnt lgkmcnt(0)")
    for j in range(16):
        a(f"v_mfma_f32_16x16x32_bf16 v[{32+4*j}:{35+4*j}], v[{128+4*j}:{131+4*j}], v[20:23], 0")
    a("s_mov_b32 exec_lo, 0x000c0003\ns_mov_b32 exec_hi, 0x00c00030")
    a("s_nop 5")
    for j in range(16):
        a(f"ds_write_b128 v7, v[{32+4*j}:{35+4*j}] offset:{16*j}")
    a("s_mov_b64 exec, -1")
    a("s_waitcnt vmcnt(0)")
    transpose8(96, 128)
    a("s_waitcnt lgkmcnt(0)")
    a("s_barrier")
    a("s_cmp_lg_u32 s47, 0")
    a("s_cbranch_scc1 .LF_hw")
    a("v_lshrrev_b32 v10, 5, v0\nv_lshlrev_b32 v10, 8, v10\nv_and_b32 v11, 31, v0\nv_lshl_add_u32 v10, v11, 2, v10")
    a(f"v_add_u32 v10, {FG}, v10")
    for pt in range(16):
        if pt: a("v_add_u32 v10, 512, v10")
        if pt == 14: a("s_waitcnt lgkmcnt(12)")
        a(f"ds_read2_b32 v[{32+2*pt}:{33+2*pt}], v10 offset0:0 offset1:32")
    for pt in range(1, 16):
        a(f"s_waitcnt lgkmcnt({min(15, 15-pt)})")
        a(f"v_add_f32 v32, v32, v{32+2*pt}\nv_add_f32 v33, v33, v{33+2*pt}")
    a("v_cvt_pk_bf16_f32 v32, v32, v33")
    a("v_and_b32 v33, 0xffff0000, v32")
    a("v_lshlrev_b32 v32, 16, v32")
    a(f"v_mul_f32 v34, {hex(f2u(-LOG2E))}, v32")
    a("v_exp_f32 v34, v34")
    a("s_nop 0")
    a("v_add_f32 v34, 1.0, v34")
    a("v_rcp_f32 v34, v34")
    a("s_nop 0")
    a("v_mul_f32 v32, v32, v34")
    a("v_cvt_pk_bf16_f32 v32, v32, v32")
    a("v_lshlrev_b32 v32, 16, v32")
    a("v_mul_f32 v32, v32, v33")
    a("v_cvt_pk_bf16_f32 v32, v32, v32")
    a("v_and_b32 v33, 3, v11\nv_lshrrev_b32 v34, 2, v11\nv_lshl_add_u32 v33, v33, 3, v34")
    a("v_lshrrev_b32 v34, 5, v0\nv_lshlrev_b32 v34, 6, v34\nv_lshl_add_u32 v33, v33, 1, v34")
    a(f"v_add_u32 v33, {FH}, v33")
    a("ds_write_b16 v33, v32")
    a(".LF_hw:")
    a(f"v_lshlrev_b32 v10, 6, v25\nv_lshl_add_u32 v10, v2, 4, v10\nv_add_u32 v10, {FH}, v10")
    a("v_lshrrev_b32 v11, 1, v2\nv_lshlrev_b32 v11, 11, v11\nv_lshl_add_u32 v11, v3, 5, v11\nv_and_b32 v12, 1, v2\nv_lshl_add_u32 v11, v12, 4, v11")
    a("v_lshl_add_u32 v12, v25, 1, v12\nv_lshlrev_b32 v12, 3, v12\nv_mov_b32 v13, s40\nv_lshrrev_b32 v12, v12, v13")
    a("v_lshrrev_b32 v13, 2, v12\nv_lshrrev_b32 v14, 4, v12\nv_lshrrev_b32 v15, 6, v12")
    a(f"s_lshl_b32 s45, s43, 12\ns_lshl_b32 s46, s47, 9\ns_add_u32 s45, s45, s46\ns_add_u32 s45, s45, {WS_F}")
    a("s_mov_b32 s54, 0xffff0000\ns_mov_b32 s55, 0xffff0000")
    a("s_mov_b32 s56, 0\ns_mov_b32 s57, -1")
    a("s_waitcnt lgkmcnt(0)")
    a("s_barrier")
    a("ds_read_b128 v[20:23], v10")
    a("s_waitcnt lgkmcnt(0)")
    for j in range(8):
        a(f"v_mfma_f32_16x16x32_bf16 v[{32+4*j}:{35+4*j}], v[20:23], v[{128+4*j}:{131+4*j}], 0")
    a("s_nop 4")
    for k in range(4):
        a(f"v_cndmask_b32 v{64+k}, v{32+4*k}, v{32+4*(4+k)}, s[54:55]")
    for k in range(4):
        a(f"v_cndmask_b32 v{68+k}, v{33+4*k}, v{33+4*(4+k)}, s[54:55]")
    for k in range(4):
        a(f"v_cndmask_b32 v{64+k}, v{64+k}, v{68+k}, s[56:57]")
    for k in range(4):
        a(f"v_bfi_b32 v{64+k}, 3, v{12+k}, v{64+k}")
    a("buffer_store_dwordx4 v[64:67], v11, s[8:11], s45 offen sc1")
    ts(6)
    ts_flush()
    a("s_endpgm")

    a(".LA_comp:")
    a("s_load_dwordx2 s[32:33], s[0:1], 80")
    srd(32, 2048)
    a("s_waitcnt lgkmcnt(0)")
    ts(1)
    if cfg.prefetch:
        a("s_cmp_lg_u32 s3, 1")
        a("s_cbranch_scc1 .LA_nopf")
        a("s_getpc_b64 s[36:37]")
        a(".LA_pc:")
        a(f"s_sub_u32 s36, s36, .LA_pc-{K}\ns_subb_u32 s37, s37, 0")
        a(f"s_mov_b32 s38, .L_codeend-{K}\ns_mov_b32 s39, 0x20000")
        a("s_mov_b32 s45, 0")
        a(".LA_pfl:")
        a("buffer_load_dwordx4 v[12:15], v8, s[36:39], s45 offen")
        a("s_add_u32 s45, s45, 1024")
        a(f"s_cmp_lt_u32 s45, .L_codeend-{K}")
        a("s_cbranch_scc1 .LA_pfl")
        a(".LA_nopf:")
    a("s_cmp_lg_u32 s3, 0")
    a("s_cbranch_scc1 .LA_b0")
    budget()
    a(".LA_np:")
    spend(".LA_ng")
    a("buffer_load_dword v12, v9, s[12:15], 0 offen sc1")
    a("s_waitcnt vmcnt(0)")
    a("v_readfirstlane_b32 s40, v12")
    a("s_cmp_eq_u32 s40, 0")
    a("s_cbranch_scc1 .LA_np")
    a(".LA_ng:")
    a(f"v_mov_b32 v10, {NLA}")
    a("ds_write_b32 v10, v12")
    a("s_waitcnt lgkmcnt(0)")
    a(".LA_b0:")
    a("s_barrier")
    ts(2)
    a(f"v_mov_b32 v10, {NLA}")
    a("ds_read_b32 v11, v10")
    a("v_lshrrev_b32 v2, 5, v0")
    a("v_and_b32 v3, 31, v0")
    a("v_and_b32 v4, 3, v3\nv_lshlrev_b32 v4, 2, v4\nv_bfe_u32 v5, v3, 2, 2\nv_or_b32 v4, v4, v5")
    a("v_xor_b32 v4, v4, v2\nv_lshlrev_b32 v4, 4, v4\nv_lshl_add_u32 v4, v3, 10, v4")
    a("s_lshl_b32 s45, s3, 15")
    a("v_add_u32 v16, s45, v4")
    a(f"v_add_u32 v24, {QR}, v4")
    for k in range(1, 8):
        a(f"v_xor_b32 v{16+k}, {32*k}, v16\nv_xor_b32 v{24+k}, {32*k}, v24")
    a("v_bfe_u32 v4, v0, 2, 2")
    a("v_lshl_add_u32 v5, v2, 2, v4\nv_lshlrev_b32 v5, 10, v5\nv_lshl_add_u32 v5, v4, 6, v5")
    a("v_bfe_u32 v6, v0, 4, 1\nv_bfe_u32 v7, v0, 1, 1\nv_lshl_add_u32 v6, v6, 1, v7\nv_xor_b32 v6, v6, v2\nv_lshl_add_u32 v5, v6, 4, v5")
    a("v_and_b32 v6, 1, v0\nv_lshl_add_u32 v5, v6, 3, v5")
    a("s_lshl_b32 s45, s3, 8")
    a("v_add_u32 v32, s45, v5")
    for jj in range(4):
        for q in range(2):
            if jj or q: a(f"v_xor_b32 v{32+2*jj+q}, {64*jj + 32*q}, v32")
    for k in range(8): a(f"v_add_u32 v{40+k}, 0x10000, v{32+k}")
    a(f"s_lshl_b32 s45, s3, 7\ns_add_u32 s45, s45, {MX}")
    a("v_lshlrev_b32 v48, 2, v3")
    a(f"v_add_u32 v49, {MX}, v48")
    a("v_add_u32 v48, s45, v48")
    a(f"s_lshl_b32 s45, s3, 11\ns_add_u32 s45, s45, {PX}")
    a("v_add_u32 v50, s45, v8")
    a(f"v_add_u32 v51, {PX}, v8")
    a("v_lshlrev_b32 v52, 19, v2\nv_lshl_add_u32 v52, v3, 2, v52")
    a(f"s_lshl_b32 s44, s3, 15\ns_lshl_b32 s45, s42, 8\ns_add_u32 s44, s44, s45\ns_add_u32 s44, s44, {WS_O}")
    for r in range(16):
        a(f"s_add_u32 s{48+r}, s44, {((r & 3) + 8 * (r >> 2)) * 131072}")
    a("s_waitcnt lgkmcnt(0)")
    a("v_readfirstlane_b32 s40, v11")
    a("v_and_b32 v4, 15, v0\nv_lshlrev_b32 v4, 1, v4\nv_lshrrev_b32 v4, v4, v11\nv_and_b32 v5, 1, v4\nv_bfe_u32 v4, v4, 1, 1\nv_lshl_or_b32 v53, v4, 16, v5")
    a("v_lshlrev_b32 v54, 4, v3")
    a(f"s_lshl_b32 s46, s42, 11\ns_lshl_b32 s45, s3, 9\ns_add_u32 s46, s46, s45\ns_add_u32 s46, s46, {WS_ML}")
    a("v_lshlrev_b32 v4, 7, v3")
    a(f"s_lshl_b32 s45, s3, 12\ns_add_u32 s45, s45, {WS_QF}")
    budget()
    a(".LA_qp:")
    spend(".LA_qg")
    a("buffer_load_dword v5, v4, s[8:11], s45 offen sc1")
    a("s_waitcnt vmcnt(0)")
    a("v_cmp_ne_u32 vcc, s40, v5")
    a("s_cbranch_vccz .LA_qg")
    psleep()
    a("s_branch .LA_qp")
    a(".LA_qg:")
    ts(3)
    a(f"s_lshl_b32 s45, s3, 13\ns_add_u32 m0, s45, {QR}")
    a(f"s_lshl_b32 s47, s41, 15\ns_add_u32 s45, s45, s47\ns_add_u32 s45, s45, {WS_Q}")
    a("s_and_b32 s47, s3, 1\ns_lshl_b32 s47, s47, 5")
    a("v_xor_b32 v4, s47, v8")
    for i in range(8):
        if i == 4: a("s_add_u32 m0, m0, 4096\ns_add_u32 s45, s45, 4096")
        a(f"v_xor_b32 v5, {16*(((i&3)<<2) | (i>>2))}, v4")
        a(f"buffer_load_dwordx4 v5, s[8:11], s45 offen offset:{1024*(i&3)} sc1 lds")
    a("s_mov_b32 s47, 0x00010001")
    a("s_waitcnt vmcnt(0)")
    ts(4)
    a("s_barrier")
    ts(5)
    LA = 4
    def sread(s):
        r = 80 + 8 * (s % LA)
        a(f"ds_read_b128 v[{r}:{r+3}], v{16+(s&7)} offset:{256*(s>>3)}")
        a(f"ds_read_b128 v[{r+4}:{r+7}], v{24+(s&7)} offset:{256*(s>>3)}")
    for s in range(LA): sread(s)
    for s in range(32):
        r = 80 + 8 * (s % LA)
        outstanding = min(LA, 32 - s)
        a(f"s_waitcnt lgkmcnt({2*(outstanding-1)})")
        if s == 31: a("s_barrier")
        a(f"v_mfma_f32_32x32x16_bf16 v[64:79], v[{r}:{r+3}], v[{r+4}:{r+7}], {'0' if s == 0 else 'v[64:79]'}")
        if s + LA < 32: sread(s + LA)
    ts(6)
    a("s_nop 11" if not cfg.ts else "s_nop 10")
    a("v_max3_f32 v4, v64, v65, v66\nv_max3_f32 v5, v67, v68, v69\nv_max3_f32 v6, v70, v71, v72\nv_max3_f32 v7, v73, v74, v75")
    a("v_max3_f32 v4, v4, v76, v77\nv_max3_f32 v5, v5, v78, v79\nv_max3_f32 v4, v4, v6, v7\nv_max_f32 v4, v4, v5")
    a("v_mov_b32 v5, v4\ns_nop 1\nv_permlane32_swap_b32 v4, v5\nv_max_f32 v4, v4, v5")
    a("ds_write_b32 v48, v4")
    a("s_waitcnt lgkmcnt(0)")
    a("s_barrier")
    a("ds_read2_b32 v[4:5], v49 offset0:0 offset1:32")
    a("ds_read2_b32 v[6:7], v49 offset0:64 offset1:96")
    a("s_waitcnt lgkmcnt(0)")
    a("v_max3_f32 v4, v4, v5, v6\nv_max_f32 v56, v4, v7")
    for r in range(16): a(f"v_sub_f32 v{64+r}, v{64+r}, v56")
    for r in range(16): a(f"v_exp_f32 v{64+r}, v{64+r}")
    a("s_nop 0")
    for e in range(8): a(f"v_cvt_pk_bf16_f32 v{80+e}, v{64+2*e}, v{65+2*e}")
    a("ds_write_b128 v50, v[80:83]")
    a("ds_write_b128 v50, v[84:87] offset:1024")
    for e in range(8): a(f"v_add_f32 v{64+e}, v{64+e}, v{72+e}")
    for e in range(4): a(f"v_add_f32 v{64+e}, v{64+e}, v{68+e}")
    a("v_add_f32 v64, v64, v66\nv_add_f32 v65, v65, v67\nv_add_f32 v64, v64, v65")
    a("v_mov_b32 v65, v64\ns_nop 1\nv_permlane32_swap_b32 v64, v65\nv_add_f32 v64, v64, v65")
    a("ds_write_b32 v48, v64 offset:512")
    a("s_waitcnt lgkmcnt(0)")
    a("s_barrier")
    ts(7)
    for k in range(8):
        a(f"ds_read_b128 v[{64+4*k}:{67+4*k}], v51 offset:{1024*k}")
    seq = [(tp, k, jj) for tp in range(2) for k in range(8) for jj in (2*tp, 2*tp+1)]
    LB = 5
    def tread(n):
        tp, k, jj = seq[n]
        kb, t = k >> 1, k & 1
        r = 160 + 4 * (n % LB)
        base = (32 if kb < 2 else 40) + 2 * jj
        off = (32 * (kb & 1) + 16 * t) * 1024
        a(f"ds_read_b64_tr_b16 v[{r}:{r+1}], v{base} offset:{off}")
        a(f"ds_read_b64_tr_b16 v[{r+2}:{r+3}], v{base+1} offset:{off+8192}")
    a("s_waitcnt lgkmcnt(5)")
    for n in range(LB): tread(n)
    def epi(tp, r):
        a(f"v_cvt_pk_bf16_f32 v{184+(r&7)}, v{96+32*tp+r}, v{112+32*tp+r}")
        a(f"v_bfi_b32 v{184+(r&7)}, s47, v53, v{184+(r&7)}")
        a(f"buffer_store_dword v{184+(r&7)}, v52, s[8:11], s{48+r} offen offset:{128*tp} sc1")
    for n in range(32):
        tp, k, jj = seq[n]
        r = 160 + 4 * (n % LB)
        outstanding = min(LB, 32 - n)
        a(f"s_waitcnt lgkmcnt({2*(outstanding-1)})")
        acc = 96 + 16 * jj
        a(f"v_mfma_f32_32x32x16_bf16 v[{acc}:{acc+15}], v[{64+4*k}:{67+4*k}], v[{r}:{r+3}], {'0' if k == 0 else f'v[{acc}:{acc+15}]'}")
        if n + LB < 32: tread(n + LB)
        if n >= 20 and n - 20 < 12:
            epi(0, n - 20)
    for r in range(12, 16): epi(0, r)
    a("ds_read2_b32 v[4:5], v49 offset0:128 offset1:160")
    a("ds_read2_b32 v[6:7], v49 offset0:192 offset1:224")
    for r in range(16): epi(1, r)
    a("s_waitcnt lgkmcnt(0)")
    a("v_add_f32 v4, v4, v5\nv_add_f32 v6, v6, v7\nv_add_f32 v57, v4, v6")
    a("v_mov_b32 v58, s40\nv_mov_b32 v59, 0")
    a("s_mov_b32 exec_hi, 0")
    a("buffer_store_dwordx4 v[56:59], v54, s[8:11], s46 offen sc1")
    a("s_mov_b64 exec, -1")
    ts(8)
    a("s_cmp_lg_u32 s3, 0")
    a("s_cbranch_scc1 .LA_exit")
    a("s_cmp_lt_u32 s43, 96")
    a("s_cbranch_scc1 .LA_exit")
    a("s_sub_u32 s44, s43, 96")
    a("v_and_b32 v3, 7, v0\nv_lshrrev_b32 v2, 3, v0")
    a("v_lshlrev_b32 v4, 12, v2\nv_lshl_add_u32 v4, v3, 4, v4")
    a("v_and_b32 v5, 3, v0\nv_lshlrev_b32 v5, 3, v5\nv_mov_b32 v6, s40\nv_lshrrev_b32 v10, v5, v6")
    a("v_lshrrev_b32 v11, 2, v10\nv_lshrrev_b32 v12, 4, v10\nv_lshrrev_b32 v13, 6, v10")
    a("s_lshl_b32 s45, s44, 6")
    a("v_lshlrev_b32 v14, 3, v3")
    a("buffer_load_dwordx2 v[16:17], v14, s[4:7], s45 offen")
    a(f"s_lshl_b32 s46, s44, 7\ns_add_u32 s47, s46, {WS_F}\ns_add_u32 s46, s46, {WS_S}")
    def gather(n, sbase, lab, lastmask=None):
        budget()
        a(f"{lab}:")
        spend(f"{lab}_ok")
        a(f"s_mov_b32 s48, {sbase}")
        for i in range(n):
            if lastmask is not None and i == n - 1:
                for k in range(4): a(f"v_mov_b32 v{32+4*i+k}, v{10+k}")
                a(f"s_mov_b32 exec_lo, {lastmask}\ns_mov_b32 exec_hi, 0")
            a(f"buffer_load_dwordx4 v[{32+4*i}:{35+4*i}], v4, s[8:11], s48 offen sc1")
            if i < n - 1: a("s_add_u32 s48, s48, 32768")
        if lastmask is not None: a("s_mov_b64 exec, -1")
        for i in range(n):
            a(f"s_waitcnt vmcnt({n-1-i})")
            for k in range(4):
                if i == 0 and k == 0: a(f"v_xor_b32 v20, v32, v10")
                else: a(f"v_bitop3_b32 v20, v20, v{32+4*i+k}, v{10+k} bitop3:0xf6")
            if lastmask is not None and i == n - 1:
                a(f"s_mov_b32 exec_lo, {lastmask}\ns_mov_b32 exec_hi, 0")
            if i:
                for k in range(4): a(f"v_add_f32 v{32+k}, v{32+k}, v{32+4*i+k}")
            if lastmask is not None and i == n - 1: a("s_mov_b64 exec, -1")
        a("v_and_b32 v20, 3, v20")
        a("v_cmp_ne_u32 vcc, 0, v20")
        a(f"s_cbranch_vccz {lab}_ok")
        psleep()
        a(f"s_branch {lab}")
        a(f"{lab}_ok:")
        for k in range(4):
            a(f"v_add_f32_dpp v{32+k}, v{32+k}, v{32+k} row_ror:8 row_mask:0xf bank_mask:0xf")
        for sw in ("v_permlane16_swap_b32", "v_permlane32_swap_b32"):
            for k in range(4): a(f"v_mov_b32 v{36+k}, v{32+k}")
            a("s_nop 0")
            for k in range(4): a(f"{sw} v{32+k}, v{36+k}")
            for k in range(4): a(f"v_add_f32 v{32+k}, v{32+k}, v{36+k}")
    gather(6, "s47", ".LZ_f", lastmask=0x00ffffff)
    ts(9)
    a("v_cvt_pk_bf16_f32 v32, v32, v33\nv_cvt_pk_bf16_f32 v34, v34, v35")
    a("v_lshlrev_b32 v24, 16, v32\nv_and_b32 v25, 0xffff0000, v32\nv_lshlrev_b32 v26, 16, v34\nv_and_b32 v27, 0xffff0000, v34")
    for k in range(4): a(f"v_mul_f32 v{32+k}, {hex(f2u(-LOG2E))}, v{24+k}")
    for k in range(4): a(f"v_exp_f32 v{32+k}, v{32+k}")
    a("s_nop 0")
    for k in range(4): a(f"v_add_f32 v{32+k}, 1.0, v{32+k}")
    for k in range(4): a(f"v_rcp_f32 v{32+k}, v{32+k}")
    a("s_nop 0")
    for k in range(4): a(f"v_mul_f32 v{24+k}, v{24+k}, v{32+k}")
    a("v_cvt_pk_bf16_f32 v32, v24, v25\nv_cvt_pk_bf16_f32 v34, v26, v27")
    a("v_lshlrev_b32 v24, 16, v32\nv_and_b32 v25, 0xffff0000, v32\nv_lshlrev_b32 v26, 16, v34\nv_and_b32 v27, 0xffff0000, v34")
    a("v_lshlrev_b32 v28, 16, v16\nv_and_b32 v29, 0xffff0000, v16\nv_lshlrev_b32 v30, 16, v17\nv_and_b32 v31, 0xffff0000, v17")
    gather(16, "s46", ".LZ_s")
    ts(10)
    a("v_cvt_pk_bf16_f32 v32, v32, v33\nv_cvt_pk_bf16_f32 v34, v34, v35")
    a("v_and_b32 v33, 0xffff0000, v32\nv_lshlrev_b32 v32, 16, v32\nv_and_b32 v35, 0xffff0000, v34\nv_lshlrev_b32 v34, 16, v34")
    for k in range(4): a(f"v_mul_f32 v{32+k}, v{32+k}, v{24+k}")
    a("v_cvt_pk_bf16_f32 v32, v32, v33\nv_cvt_pk_bf16_f32 v34, v34, v35")
    a("v_and_b32 v33, 0xffff0000, v32\nv_lshlrev_b32 v32, 16, v32\nv_and_b32 v35, 0xffff0000, v34\nv_lshlrev_b32 v34, 16, v34")
    for k in range(4): a(f"v_add_f32 v{32+k}, v{32+k}, v{28+k}")
    a("v_cvt_pk_bf16_f32 v32, v32, v33\nv_cvt_pk_bf16_f32 v33, v34, v35")
    a("s_mov_b64 exec, 0xff")
    a("buffer_store_dwordx2 v[32:33], v14, s[32:35], s45 offen")
    ts(11)
    a(".LA_exit:")
    ts_flush()
    a(".L_end:")
    a("s_endpgm")
    a(".L_codeend:")
    body = a.text()
    return assemble([(K, 256, 512, 163840)], [(K, body, 256, 102, 256, "")]), body

if __name__ == "__main__":
    import argparse
    ap = argparse.ArgumentParser()
    ap.add_argument("-o", default="k.s")
    ap.add_argument("--set", action="append", default=[])
    args = ap.parse_args()
    for s in args.set:
        k, v = s.split("=")
        setattr(Cfg, k, eval(v))
    txt, body = gen(Cfg)
    open(args.o, "w").write(txt)
    for p in hazard.check(txt): print("HAZARD", p)
```

```python
import sys
from asmlib import *
import hazard

WS_H1 = 0x000000
WS_Q  = 0x080000
WS_QF = 0x0A0000
WS_GO = 0x0B0000
WS_ML = 0x100000
WS_S  = 0x200000
WS_F  = 0x300000
WS_O  = 0x400000
WS_TS = 0x1000000
WS_SIZE = 268435456
LOG2E = 1.4426950408889634
QSCALE = LOG2E * 128 ** -0.5
import struct
def f2u(x): return struct.unpack("<I", struct.pack("<f", x))[0]

class Cfg:
    ts = False
    npre = 2
    go_cnt = 8
    cwin = 0
    nsamp = 7
    samp_sleep = 3
    prefetch = True
    poll_sleep = 1
    nt = "nt"
    nt_wo = "nt"
    spin = 30000
    dbgt = False

def gen(cfg=Cfg):
    a = Asm()
    K = NAME + "_kernel"
    NT = cfg.nt
    tsn = [0]
    def ts(idx):
        if cfg.ts:
            a(f"s_memrealtime s[{64+2*idx}:{65+2*idx}]")
    def ts_flush(nmax=16):
        if not cfg.ts: return
        a("s_waitcnt lgkmcnt(0)")
        a("s_lshl_b32 s44, s2, 3\ns_add_u32 s44, s44, s3\ns_lshl_b32 s44, s44, 6")
        a(f"s_add_u32 s44, s44, {WS_TS}")
        a("s_mov_b64 exec, 1")
        a("v_mov_b32 v1, 0")
        for q in range(4):
            for k in range(4):
                a(f"v_mov_b32 v{4+k}, s{64+2*(4*q+k)}")
            a(f"buffer_store_dwordx4 v[4:7], v1, s[8:11], s44 offen offset:{16*q}")
            a("s_nop 1")
        a("s_waitcnt vmcnt(0)")
    def srd(base, size):
        a(f"s_mov_b32 s{base+2}, {size}\ns_mov_b32 s{base+3}, 0x20000")
    def allreduce16(v, t, op):
        for r in (8, 4, 2, 1):
            a("s_nop 1")
            a(f"{op}_dpp v{v}, v{v}, v{v} row_ror:{r} row_mask:0xf bank_mask:0xf")
        for sw in ("v_permlane16_swap_b32", "v_permlane32_swap_b32"):
            a(f"v_mov_b32 v{t}, v{v}")
            a("s_nop 1")
            a(f"{sw} v{v}, v{t}")
            a(f"{op} v{v}, v{v}, v{t}")
    def layernorm(vx, vo, vt):
        f = [vt + i for i in range(8)]
        s, t, u = vt + 8, vt + 9, vt + 10
        for i in range(4):
            a(f"v_lshlrev_b32 v{f[2*i]}, 16, v{vx+i}")
            a(f"v_and_b32 v{f[2*i+1]}, 0xffff0000, v{vx+i}")
        a(f"v_add_f32 v{s}, v{f[0]}, v{f[1]}")
        a(f"v_add_f32 v{t}, v{f[2]}, v{f[3]}")
        a(f"v_add_f32 v{u}, v{f[4]}, v{f[5]}")
        a(f"v_add_f32 v{s}, v{s}, v{f[6]}")
        a(f"v_add_f32 v{t}, v{t}, v{f[7]}")
        a(f"v_add_f32 v{s}, v{s}, v{u}")
        a(f"v_add_f32 v{s}, v{s}, v{t}")
        allreduce16(s, t, "v_add_f32")
        a(f"v_mul_f32 v{s}, {hex(f2u(1/512))}, v{s}")
        m2 = vt + 11
        a(f"v_sub_f32 v{t}, v{f[0]}, v{s}")
        a(f"v_mul_f32 v{m2}, v{t}, v{t}")
        for i in range(1, 8):
            a(f"v_sub_f32 v{t}, v{f[i]}, v{s}")
            a(f"v_fmac_f32 v{m2}, v{t}, v{t}")
        allreduce16(m2, t, "v_add_f32")
        a(f"v_mul_f32 v{m2}, {hex(f2u(1/512))}, v{m2}")
        a(f"v_cvt_pk_bf16_f32 v{t}, v{s}, v{m2}")
        a(f"v_lshlrev_b32 v{s}, 16, v{t}")
        a(f"v_and_b32 v{m2}, 0xffff0000, v{t}")
        a(f"v_add_f32 v{m2}, {hex(f2u(1e-5))}, v{m2}")
        a(f"v_cvt_pk_bf16_f32 v{m2}, v{m2}, v{m2}")
        a(f"v_and_b32 v{m2}, 0xffff0000, v{m2}")
        a(f"v_sqrt_f32 v{m2}, v{m2}")
        for i in range(8):
            a(f"v_sub_f32 v{f[i]}, v{f[i]}, v{s}")
        a(f"v_cvt_pk_bf16_f32 v{m2}, v{m2}, v{m2}")
        a(f"v_and_b32 v{m2}, 0xffff0000, v{m2}")
        a(f"v_rcp_f32 v{m2}, v{m2}")
        for i in range(4):
            a(f"v_cvt_pk_bf16_f32 v{vo+i}, v{f[2*i]}, v{f[2*i+1]}")
        for i in range(4):
            a(f"v_lshlrev_b32 v{f[2*i]}, 16, v{vo+i}")
            a(f"v_and_b32 v{f[2*i+1]}, 0xffff0000, v{vo+i}")
        for i in range(8):
            a(f"v_mul_f32 v{f[i]}, v{f[i]}, v{m2}")
        for i in range(4):
            a(f"v_cvt_pk_bf16_f32 v{vo+i}, v{f[2*i]}, v{f[2*i+1]}")
    def psleep():
        if cfg.poll_sleep: a(f"s_sleep {cfg.poll_sleep}")
    def budget():
        a(f"s_movk_i32 s96, {cfg.spin}")
    def spend(exit_label):
        a("s_sub_u32 s96, s96, 1")
        a(f"s_cbranch_scc1 {exit_label}")

    if cfg.ts:
        for i in range(1, 16): a(f"s_mov_b32 s{64+2*i}, 0")
    ts(0)
    a("s_cmp_ge_u32 s2, 128")
    a("s_cbranch_scc1 .L_A")
    XN = 32768
    XNS = 1088
    NL = XN + 2304
    QV = NL + 64
    QS = QV + 576
    a("s_load_dwordx2 s[16:17], s[0:1], 16")
    a("s_load_dwordx2 s[4:5], s[0:1], 0")
    a("s_load_dwordx2 s[12:13], s[0:1], 88")
    a("s_load_dwordx2 s[20:21], s[0:1], 24")
    a("s_load_dwordx2 s[8:9], s[0:1], 96")
    a("s_load_dwordx2 s[24:25], s[0:1], 32")
    a("s_load_dwordx2 s[28:29], s[0:1], 40")
    a("v_lshrrev_b32 v1, 6, v0")
    a("v_and_b32 v0, 63, v0")
    a("v_readfirstlane_b32 s3, v1")
    a("s_and_b32 s41, s2, 7\ns_lshl_b32 s41, s41, 2\ns_lshr_b32 s43, s2, 5\ns_add_u32 s41, s41, s43")
    a("s_bfe_u32 s42, s2, 0x20003")
    srd(16, 4194304); srd(4, 2048); srd(12, 256); srd(20, 4194304); srd(8, WS_SIZE); srd(24, 4194304); srd(28, 4194304)
    a("v_lshrrev_b32 v2, 4, v0")
    a("v_and_b32 v3, 15, v0")
    a("v_lshlrev_b32 v4, 1, v2")
    a("v_xor_b32 v4, v3, v4")
    a("v_lshlrev_b32 v4, 4, v4")
    a("v_lshl_add_u32 v5, v2, 13, v4")
    a("v_xor_b32 v6, 0x80, v5")
    a("v_xor_b32 v7, v3, v2")
    a("v_lshlrev_b32 v7, 4, v7")
    a("v_lshl_add_u32 v7, v2, 13, v7")
    a("s_lshl_b32 s44, s42, 7\ns_lshl_b32 s45, s3, 4\ns_add_u32 s44, s44, s45\ns_lshl_b32 s44, s44, 13")
    a("s_lshl_b32 s45, s41, 8\ns_add_u32 s44, s44, s45")
    a("s_lshl_b32 s46, s3, 12")
    a("v_lshlrev_b32 v8, 4, v0")
    a("v_mov_b32 v9, 0")
    a("s_lshl_b32 s47, s3, 10")
    a("s_waitcnt lgkmcnt(0)")
    ts(1)
    a("s_cmp_gt_u32 s3, 1")
    a("s_cbranch_scc1 .LW_nox")
    a("buffer_load_dwordx4 v[12:15], v8, s[4:7], s47 offen")
    a(".LW_nox:")
    a("s_cmp_lg_u32 s3, 2")
    a("s_cbranch_scc1 .LW_non0")
    a("s_cmp_lg_u32 s2, 0")
    a("s_cbranch_scc1 .LW_nogen")
    a("s_memrealtime s[48:49]")
    a("s_waitcnt lgkmcnt(0)")
    if cfg.dbgt:
        a("v_mov_b32 v10, s48")
        a("buffer_store_dword v10, v9, s[12:15], 0 offen offset:4")
    a("s_mul_i32 s48, s48, 0x9E3779B1")
    a("s_lshr_b32 s49, s48, 15\ns_xor_b32 s48, s48, s49")
    a("s_mul_i32 s48, s48, 0x85EBCA6B")
    a("s_lshr_b32 s49, s48, 13\ns_xor_b32 s48, s48, s49")
    a("s_max_u32 s48, s48, 1")
    a("v_mov_b32 v10, s48")
    a("s_mov_b64 exec, 1")
    a("buffer_store_dword v10, v9, s[12:15], 0 offen sc1")
    a("s_mov_b64 exec, -1")
    a(".LW_nogen:")
    a("buffer_load_dword v12, v9, s[12:15], 0 offen sc1")
    a(".LW_non0:")
    a("s_mov_b32 m0, s46")
    a("s_mov_b32 s45, s44")
    for i in range(4):
        a(f"buffer_load_dwordx4 v{5 if i < 2 else 6}, s[16:19], s45 offen {NT} lds")
        if i < 3:
            a("s_add_u32 m0, m0, 1024\ns_add_u32 s45, s45, 32768")
    ts(2)
    a("s_add_u32 s46, s46, 65536")
    a("s_cmp_gt_u32 s3, 2")
    a("s_cbranch_scc1 .LW_win")
    a("s_cmp_eq_u32 s3, 2")
    a("s_cbranch_scc1 .LW_samp")
    a("s_waitcnt vmcnt(4)")
    layernorm(12, 16, 20)
    a(f"s_mul_i32 s45, s3, {XNS}\ns_add_u32 s45, s45, {XN}")
    a("v_add_u32 v10, s45, v8")
    a("ds_write_b128 v10, v[16:19]")
    a("s_branch .LW_win")
    a(".LW_samp:")
    for k in range(1, cfg.nsamp):
        a(f"s_sleep {cfg.samp_sleep}")
        a(f"buffer_load_dword v{12+k}, v9, s[12:15], 0 offen sc1")
    a("s_mov_b32 m0, s46\ns_mov_b32 s45, s44")
    for i in range(4):
        if i: a(f"v_xor_b32 v10, {64*i}, v7")
        a(f"buffer_load_dwordx4 v{10 if i else 7}, s[20:23], s45 offen {NT} lds")
        if i < 3:
            a("s_add_u32 m0, m0, 1024\ns_add_u32 s45, s45, 32768")
    a("s_waitcnt vmcnt(4)")
    for k in range(1, cfg.nsamp):
        a(f"v_max_u32 v12, v12, v{12+k}")
    budget()
    a(".LW_nchk:")
    a("s_nop 0")
    a("v_readfirstlane_b32 s40, v12")
    a("s_cmp_lg_u32 s40, 0")
    a("s_cbranch_scc1 .LW_ngot")
    spend(".LW_ngot")
    a("buffer_load_dword v12, v9, s[12:15], 0 offen sc1")
    a("s_waitcnt vmcnt(0)")
    a("s_branch .LW_nchk")
    a(".LW_ngot:")
    a(f"v_mov_b32 v10, {NL}")
    a("ds_write_b32 v10, v12")
    a("s_branch .LW_b1")
    a(".LW_win:")
    a("s_mov_b32 m0, s46\ns_mov_b32 s45, s44")
    for i in range(4):
        if i: a(f"v_xor_b32 v10, {64*i}, v7")
        a("s_waitcnt vmcnt(3)")
        a(f"buffer_load_dwordx4 v{10 if i else 7}, s[20:23], s45 offen {NT} lds")
        if i < 3:
            a("s_add_u32 m0, m0, 1024\ns_add_u32 s45, s45, 32768")
    a(".LW_b1:")
    a("v_lshrrev_b32 v20, 2, v3")
    a("v_and_b32 v21, 1, v2")
    a("v_lshlrev_b32 v21, 3, v21")
    a("v_lshl_add_u32 v21, v20, 1, v21")
    a("v_bfe_u32 v22, v0, 1, 1")
    a("s_lshl_b32 s45, s3, 1")
    a("v_add_u32 v23, s45, v22")
    a("v_xor_b32 v23, v23, v21")
    a("v_lshlrev_b32 v23, 4, v23")
    a("v_lshl_add_u32 v24, v2, 3, v20")
    a("v_lshl_add_u32 v23, v24, 8, v23")
    a("v_and_b32 v25, 1, v0")
    a("v_lshl_add_u32 v11, v25, 3, v23")
    a(f"v_mul_u32_u24 v26, {XNS}, v25")
    a("v_lshl_add_u32 v26, v2, 4, v26")
    a(f"s_lshl_b32 s45, s42, 8\ns_add_u32 s45, s45, {XN}")
    a("v_add_u32 v26, s45, v26")
    a("s_waitcnt vmcnt(4) lgkmcnt(0)")
    ts(3)
    a("s_barrier")
    ts(4)
    a(f"v_mov_b32 v27, {NL}")
    a("ds_read_b32 v27, v27")
    for s in range(4):
        a(f"ds_read_b128 v[{32+4*s}:{35+4*s}], v26 offset:{64*s}")
        a(f"ds_read_b64_tr_b16 v[{48+4*s}:{49+4*s}], v11 offset:{(32*s)*256}")
        a(f"ds_read_b64_tr_b16 v[{50+4*s}:{51+4*s}], v11 offset:{(32*s+4)*256}")
    a("v_lshlrev_b32 v28, 9, v25")
    a("v_lshl_add_u32 v28, v2, 4, v28")
    a("s_lshl_b32 s50, s41, 2\ns_add_u32 s50, s50, s42")
    a(f"s_lshl_b32 s45, s50, 10\ns_lshl_b32 s47, s3, 6\ns_add_u32 s45, s45, s47")
    if WS_H1: a(f"s_add_u32 s45, s45, {WS_H1}")
    a("v_lshlrev_b32 v29, 3, v2")
    a("s_waitcnt lgkmcnt(9)")
    a("v_mfma_f32_16x16x32_bf16 v[64:67], v[48:51], v[32:35], 0")
    a("v_readfirstlane_b32 s40, v27")
    a("v_lshrrev_b32 v29, v29, v27")
    a("s_waitcnt lgkmcnt(6)")
    a("v_mfma_f32_16x16x32_bf16 v[64:67], v[52:55], v[36:39], v[64:67]")
    a("v_lshrrev_b32 v30, 2, v29")
    a("s_waitcnt lgkmcnt(3)")
    a("v_mfma_f32_16x16x32_bf16 v[64:67], v[56:59], v[40:43], v[64:67]")
    a("v_lshrrev_b32 v31, 4, v29")
    a("s_waitcnt lgkmcnt(0)")
    a("v_mfma_f32_16x16x32_bf16 v[64:67], v[60:63], v[44:47], v[64:67]")
    a("v_lshrrev_b32 v27, 6, v29")
    a("s_mov_b32 exec_lo, 0x00030003\ns_mov_b32 exec_hi, 0x00030003")
    a("s_nop 4")
    a("v_bfi_b32 v64, 3, v29, v64\nv_bfi_b32 v65, 3, v30, v65\nv_bfi_b32 v66, 3, v31, v66\nv_bfi_b32 v67, 3, v27, v67")
    a("buffer_store_dwordx4 v[64:67], v28, s[8:11], s45 offen sc1")
    a("s_mov_b64 exec, -1")
    ts(5)
    a("v_xor_b32 v20, v2, v3")
    a("v_lshlrev_b32 v20, 4, v20")
    a("v_lshl_add_u32 v20, v3, 8, v20")
    a("s_lshl_b32 s45, s3, 12\ns_add_u32 s45, s45, 65536")
    a("v_add_u32 v20, s45, v20")
    a("s_cmp_lg_u32 s3, 0")
    a("s_cbranch_scc1 .LW_h1w")
    a("v_and_b32 v21, 3, v0\nv_lshlrev_b32 v21, 3, v21")
    a("v_mov_b32 v22, s40")
    a("v_lshrrev_b32 v22, v21, v22")
    a("v_lshrrev_b32 v23, 2, v22\nv_lshrrev_b32 v24, 4, v22\nv_lshrrev_b32 v21, 6, v22")
    a(f"s_lshl_b32 s45, s41, 12")
    if WS_H1: a(f"s_add_u32 s45, s45, {WS_H1}")
    budget()
    a(".LW_h1p:")
    spend(".LW_h1g")
    for i in range(4):
        a(f"buffer_load_dwordx4 v[{32+4*i}:{35+4*i}], v8, s[8:11], s45 offen offset:{1024*i} sc1")
    a("s_waitcnt vmcnt(3)")
    a("v_xor_b32 v48, v32, v22")
    a("v_bitop3_b32 v48, v48, v33, v23 bitop3:0xf6\nv_bitop3_b32 v48, v48, v34, v24 bitop3:0xf6\nv_bitop3_b32 v48, v48, v35, v21 bitop3:0xf6")
    for i in range(1, 4):
        a(f"s_waitcnt vmcnt({3-i})")
        for k, e in enumerate((22, 23, 24, 21)):
            a(f"v_bitop3_b32 v48, v48, v{32+4*i+k}, v{e} bitop3:0xf6")
        for k in range(4):
            a(f"v_add_f32 v{32+k}, v{32+k}, v{32+4*i+k}")
    a("v_and_b32 v48, 3, v48")
    a("v_cmp_ne_u32 vcc, 0, v48")
    a("s_cbranch_vccnz .LW_h1p")
    a(".LW_h1g:")
    a("v_cvt_pk_bf16_f32 v32, v32, v33\nv_cvt_pk_bf16_f32 v33, v34, v35")
    a("v_lshrrev_b32 v34, 5, v0\nv_mul_u32_u24 v34, 272, v34\nv_and_b32 v35, 31, v0\nv_lshl_add_u32 v34, v35, 3, v34")
    a(f"ds_write_b64 v34, v[32:33] offset:{QV}")
    a(".LW_h1w:")
    a("s_waitcnt vmcnt(0)")
    for s in range(4):
        if s: a(f"v_xor_b32 v21, {64*s}, v20")
        a(f"ds_read_b128 v[{48+4*s}:{51+4*s}], v{21 if s else 20}")
    a("v_mul_u32_u24 v26, 272, v25")
    a("v_lshl_add_u32 v26, v2, 4, v26")
    a("s_waitcnt lgkmcnt(0)")
    ts(6)
    a("s_barrier")
    for s in range(4):
        a(f"ds_read_b128 v[{32+4*s}:{35+4*s}], v26 offset:{QV+64*s}")
    a("v_lshlrev_b32 v27, 8, v25")
    a("v_lshl_add_u32 v27, v2, 3, v27")
    a("s_lshl_b32 s45, s3, 5")
    a("v_add_u32 v27, s45, v27")
    a(f"s_mov_b32 s47, {hex(f2u(QSCALE))}")
    for s in range(4):
        a(f"s_waitcnt lgkmcnt({3-s})")
        a(f"v_mfma_f32_16x16x32_bf16 v[64:67], v[{48+4*s}:{51+4*s}], v[{32+4*s}:{35+4*s}], {'0' if s == 0 else 'v[64:67]'}")
    a("s_mov_b32 exec_lo, 0x00030003\ns_mov_b32 exec_hi, 0x00030003")
    a("s_nop 5")
    for k in range(4): a(f"v_mul_f32 v{64+k}, s47, v{64+k}")
    a("v_cvt_pk_bf16_f32 v64, v64, v65\nv_cvt_pk_bf16_f32 v65, v66, v67")
    a(f"ds_write_b64 v27, v[64:65] offset:{QS}")
    a("s_mov_b64 exec, -1")
    a("s_waitcnt lgkmcnt(0)")
    a("s_barrier")
    a("s_cmp_lg_u32 s3, 0")
    a("s_cbranch_scc1 .LW_go")
    a(f"ds_read_b128 v[32:35], v8 offset:{QS}")
    a("v_lshlrev_b32 v36, 15, v2\nv_lshl_add_u32 v36, v3, 4, v36")
    a(f"s_lshl_b32 s45, s41, 10\ns_lshl_b32 s47, s42, 8\ns_add_u32 s45, s45, s47\ns_add_u32 s45, s45, {WS_Q}")
    a("s_mov_b32 exec_hi, 0")
    a("s_waitcnt lgkmcnt(0)")
    a("buffer_store_dwordx4 v[32:35], v36, s[8:11], s45 offen sc1")
    a(f"s_lshl_b32 s45, s50, 7\ns_add_u32 s45, s45, {WS_QF}")
    a("v_mov_b32 v37, s40")
    a("s_mov_b32 exec_lo, 1")
    a("s_waitcnt vmcnt(0)")
    a("buffer_store_dword v37, v9, s[8:11], s45 offen sc1")
    ts(7)
    a(f"s_lshl_b32 s45, s2, 7\ns_add_u32 s45, s45, {WS_GO}")
    budget()
    a(".LW_gop:")
    spend(".LW_gog")
    a("buffer_load_dword v37, v9, s[8:11], s45 offen sc1")
    a("s_waitcnt vmcnt(0)")
    a("v_readfirstlane_b32 s47, v37")
    a("s_cmp_eq_u32 s47, s40")
    a("s_cbranch_scc1 .LW_gog")
    psleep()
    a("s_branch .LW_gop")
    a(".LW_gog:")
    a("s_mov_b64 exec, -1")
    a(".LW_go:")
    a("v_and_b32 v20, 1, v2\nv_lshlrev_b32 v20, 5, v20\nv_lshrrev_b32 v21, 1, v2\nv_add_u32 v20, v20, v21")
    a("v_lshl_add_u32 v20, v20, 13, v4")
    a("v_xor_b32 v21, 0x80, v20")
    a("s_lshl_b32 s44, s42, 7\ns_lshr_b32 s45, s3, 2\ns_lshl_b32 s45, s45, 6\ns_add_u32 s44, s44, s45")
    a("s_and_b32 s45, s3, 3\ns_lshl_b32 s45, s45, 3\ns_add_u32 s44, s44, s45\ns_lshl_b32 s44, s44, 13")
    a("s_lshl_b32 s45, s41, 8\ns_add_u32 s44, s44, s45")
    a("s_lshl_b32 s46, s3, 12\ns_add_u32 s46, s46, 131072")
    a("s_barrier")
    ts(8)
    a("s_mov_b32 m0, s46")
    for i in range(4):
        if i == 0: a("s_nop 0")
        a(f"buffer_load_dwordx4 v{20 if i < 2 else 21}, s[24:27], s44 offen {NT} lds")
        if i < 3:
            a("s_add_u32 m0, m0, 1024\ns_add_u32 s44, s44, 16384")
    a("s_lshl_b32 s46, s3, 14")
    a("s_lshl_b32 s44, s41, 17\ns_add_u32 s44, s44, s46")
    a("s_mov_b32 m0, s46")
    for i in range(16):
        f1 = 2 * ((i & 3) + 4 * ((i >> 3) & 1))
        if i % 4 == 0 and i:
            a("s_add_u32 m0, m0, 4096\ns_add_u32 s44, s44, 4096")
        a(f"v_xor_b32 v22, {16*f1}, v8")
        a(f"buffer_load_dwordx4 v22, s[28:31], s44 offen offset:{1024*(i&3)} {cfg.nt_wo} lds")
    a("v_lshrrev_b32 v20, 2, v3")
    a("v_and_b32 v21, 1, v2\nv_lshlrev_b32 v21, 3, v21\nv_lshl_add_u32 v21, v20, 1, v21")
    a("v_bfe_u32 v22, v0, 1, 1")
    a("s_lshl_b32 s45, s3, 3")
    a("v_add_u32 v23, s45, v22")
    a("v_xor_b32 v23, v23, v21\nv_lshlrev_b32 v23, 4, v23")
    a("v_lshl_add_u32 v24, v2, 3, v20")
    a("v_lshl_add_u32 v23, v24, 10, v23")
    a("v_lshl_add_u32 v12, v25, 3, v23")
    a("v_xor_b32 v13, 32, v12\nv_xor_b32 v14, 64, v12\nv_xor_b32 v15, 96, v12")
    for k in range(4): a(f"v_add_u32 v{16+k}, 0x10000, v{12+k}")
    a("v_add_u32 v20, 0x20000, v11")
    a("s_waitcnt vmcnt(0)")
    ts(9)
    a("s_barrier")
    cnt = 0
    for s in range(4):
        a(f"ds_read_b64_tr_b16 v[{96+4*s}:{97+4*s}], v20 offset:{(32*s)*256}")
        a(f"ds_read_b64_tr_b16 v[{98+4*s}:{99+4*s}], v20 offset:{(32*s+4)*256}")
    for jb in range(4):
        for s in range(4):
            base = (12 if s < 2 else 16) + jb
            r = 112 + 4 * (jb * 4 + s)
            a(f"ds_read_b64_tr_b16 v[{r}:{r+1}], v{base} offset:{(32*(s&1))*1024}")
            a(f"ds_read_b64_tr_b16 v[{r+2}:{r+3}], v{base} offset:{(32*(s&1)+4)*1024}")
    SC = 32768; XX = SC + 512; YY = XX + 576; FL = YY + 576
    a("v_lshl_add_u32 v12, v2, 8, v4")
    a("v_xor_b32 v13, 0x80, v12")
    a(f"s_lshl_b32 s44, s50, 15\ns_lshl_b32 s46, s3, 12\ns_add_u32 s44, s44, s46\ns_add_u32 s44, s44, {WS_O}")
    a("s_and_b32 s45, s3, 1\ns_lshl_b32 s45, s45, 4")
    a("v_add_u32 v14, s45, v3")
    a("v_mov_b32 v15, s40")
    a("v_lshrrev_b32 v14, v14, v15")
    a("v_and_b32 v14, 1, v14")
    a("v_mul_u32_u24 v14, 0x10001, v14")
    a("v_lshrrev_b32 v16, 1, v3\nv_lshlrev_b32 v16, 6, v16\nv_lshl_add_u32 v16, v25, 11, v16\nv_lshl_add_u32 v16, v2, 4, v16")
    a(f"s_lshl_b32 s51, s2, 12\ns_lshl_b32 s45, s3, 8\ns_add_u32 s51, s51, s45\ns_add_u32 s51, s51, {WS_S}")
    a("v_lshlrev_b32 v17, 3, v2\nv_lshrrev_b32 v17, v17, v15")
    a("v_lshrrev_b32 v18, 2, v17\nv_lshrrev_b32 v19, 4, v17\nv_lshrrev_b32 v20, 6, v17")
    a("v_mul_u32_u24 v21, 272, v25\nv_lshl_add_u32 v21, v2, 3, v21\ns_lshl_b32 s45, s3, 5\nv_add_u32 v21, s45, v21")
    a("v_lshlrev_b32 v22, 4, v2")
    a("s_lshl_b32 s45, s3, 2\nv_mov_b32 v23, s45")
    a("s_mov_b32 s52, 0xaaaaaaaa\ns_mov_b32 s53, 0xaaaaaaaa")
    a("s_mov_b32 s54, 0xcccccccc\ns_mov_b32 s55, 0xcccccccc")
    a("s_mov_b32 s56, 0xf0f0f0f0\ns_mov_b32 s57, 0xf0f0f0f0")
    a("s_cmp_lg_u32 s3, 0")
    a("s_cbranch_scc1 .LW_mlw")
    a("v_lshlrev_b32 v24, 11, v0")
    a(f"s_lshl_b32 s45, s42, 9\ns_lshl_b32 s47, s41, 4\ns_add_u32 s45, s45, s47\ns_add_u32 s45, s45, {WS_ML}\ns_add_u32 s47, s45, {64*2048}")
    budget()
    a(".LW_mlp:")
    spend(".LW_mlw")
    a("buffer_load_dwordx4 v[32:35], v24, s[8:11], s45 offen sc1")
    a("buffer_load_dwordx4 v[36:39], v24, s[8:11], s47 offen sc1")
    a("s_waitcnt vmcnt(0)")
    a("v_cmp_ne_u32 vcc, s40, v34")
    a("v_cmp_ne_u32 s[58:59], s40, v38")
    a("s_or_b64 vcc, vcc, s[58:59]")
    a("s_cbranch_vccz .LW_mlw")
    psleep()
    a("s_branch .LW_mlp")
    a(".LW_mlw:")
    a("s_waitcnt lgkmcnt(0)")
    budget()
    a(".LW_retry:")
    a("s_barrier")
    ts(10)
    a("s_mov_b32 m0, s46")
    for i in range(4):
        if i == 0: a("s_nop 0")
        a(f"buffer_load_dwordx4 v{12 if i < 2 else 13}, s[8:11], s44 offen offset:{1024*i} sc1 lds")
    a("s_cmp_lg_u32 s3, 0")
    a("s_cbranch_scc1 .LW_scw")
    a("v_mov_b32 v40, v32\nv_mov_b32 v41, v36")
    allreduce16(40, 42, "v_max_f32")
    allreduce16(41, 42, "v_max_f32")
    a("v_sub_f32 v40, v32, v40\nv_sub_f32 v41, v36, v41")
    a("v_exp_f32 v40, v40\nv_exp_f32 v41, v41")
    a("s_nop 0")
    a("v_mul_f32 v43, v40, v33\nv_mul_f32 v44, v41, v37")
    allreduce16(43, 42, "v_add_f32")
    allreduce16(44, 42, "v_add_f32")
    a("v_rcp_f32 v43, v43\nv_rcp_f32 v44, v44")
    a("s_nop 0")
    a("v_mul_f32 v40, v40, v43\nv_mul_f32 v41, v41, v44")
    a("v_cvt_pk_bf16_f32 v40, v40, v41")
    a("v_lshlrev_b32 v42, 1, v0")
    a(f"ds_write_b16 v42, v40 offset:{SC}")
    a(f"ds_write_b16_d16_hi v42, v40 offset:{SC+128}")
    a(".LW_scw:")
    a("s_waitcnt vmcnt(0) lgkmcnt(0)")
    ts(11)
    a("s_barrier")
    for s in range(4):
        a(f"ds_read_b128 v[{48+4*s}:{51+4*s}], v22 offset:{SC+64*s}")
        a(f"ds_read_b64_tr_b16 v[{64+4*s}:{65+4*s}], v11 offset:{(32*s)*256}")
        a(f"ds_read_b64_tr_b16 v[{66+4*s}:{67+4*s}], v11 offset:{(32*s+4)*256}")
    a("s_waitcnt lgkmcnt(9)")
    a("v_mfma_f32_16x16x32_bf16 v[80:83], v[64:67], v[48:51], 0")
    a("v_xor_b32 v27, v64, v14")
    for k in (65, 66, 67): a(f"v_bitop3_b32 v27, v27, v{k}, v14 bitop3:0xf6")
    a("s_waitcnt lgkmcnt(6)")
    a("v_mfma_f32_16x16x32_bf16 v[80:83], v[68:71], v[52:55], v[80:83]")
    for k in range(68, 72): a(f"v_bitop3_b32 v27, v27, v{k}, v14 bitop3:0xf6")
    a("s_waitcnt lgkmcnt(3)")
    a("v_mfma_f32_16x16x32_bf16 v[84:87], v[72:75], v[56:59], 0")
    for k in range(72, 76): a(f"v_bitop3_b32 v27, v27, v{k}, v14 bitop3:0xf6")
    a("s_waitcnt lgkmcnt(0)")
    a("v_mfma_f32_16x16x32_bf16 v[84:87], v[76:79], v[60:63], v[84:87]")
    for k in range(76, 80): a(f"v_bitop3_b32 v27, v27, v{k}, v14 bitop3:0xf6")
    a("v_and_b32 v27, 0x10001, v27")
    a("v_cmp_ne_u32 vcc, 0, v27")
    a("s_or_b32 s45, vcc_lo, vcc_hi")
    a("v_mov_b32 v27, s45")
    a("s_mov_b32 exec_lo, 0x00030003\ns_mov_b32 exec_hi, 0x00030003")
    for k in range(4): a(f"v_cndmask_b32 v{80+k}, v{80+k}, v{84+k}, s[52:53]")
    a("v_cvt_pk_bf16_f32 v80, v80, v81\nv_cvt_pk_bf16_f32 v81, v82, v83")
    a(f"ds_write_b64 v21, v[80:81] offset:{XX}")
    a(f"ds_write_b32 v23, v27 offset:{FL}")
    a("s_mov_b64 exec, -1")
    a("s_waitcnt lgkmcnt(0)")
    a("s_barrier")
    for s in range(4):
        a(f"ds_read_b128 v[{48+4*s}:{51+4*s}], v26 offset:{XX+64*s}")
    a(f"ds_read_b128 v[64:67], v9 offset:{FL}")
    a(f"ds_read_b128 v[68:71], v9 offset:{FL+16}")
    for s in range(4):
        a(f"s_waitcnt lgkmcnt({5-s})")
        a(f"v_mfma_f32_16x16x32_bf16 v[80:83], v[{96+4*s}:{99+4*s}], v[{48+4*s}:{51+4*s}], {'0' if s == 0 else 'v[80:83]'}")
    a("s_waitcnt lgkmcnt(0)")
    a("v_or3_b32 v64, v64, v65, v66\nv_or3_b32 v64, v64, v67, v68\nv_or3_b32 v64, v64, v69, v70\nv_or_b32 v64, v64, v71")
    a("s_mov_b32 exec_lo, 0x00030003\ns_mov_b32 exec_hi, 0x00030003")
    a("v_readfirstlane_b32 s45, v64")
    a("v_cvt_pk_bf16_f32 v80, v80, v81\nv_cvt_pk_bf16_f32 v81, v82, v83")
    a(f"ds_write_b64 v21, v[80:81] offset:{YY}")
    a("s_mov_b64 exec, -1")
    a("s_waitcnt lgkmcnt(0)")
    a("s_cmp_eq_u32 s45, 0")
    a("s_cbranch_scc1 .LW_rok")
    a("s_sub_u32 s96, s96, 1")
    a("s_cbranch_scc0 .LW_retry")
    a(".LW_rok:")
    a("s_barrier")
    for s in range(4):
        a(f"ds_read_b128 v[{48+4*s}:{51+4*s}], v26 offset:{YY+64*s}")
    for s in range(4):
        a(f"s_waitcnt lgkmcnt({3-s})")
        for jb in range(4):
            r = 112 + 4 * (jb * 4 + s)
            a(f"v_mfma_f32_16x16x32_bf16 v[{64+4*jb}:{67+4*jb}], v[{r}:{r+3}], v[{48+4*s}:{51+4*s}], {'0' if s == 0 else f'v[{64+4*jb}:{67+4*jb}]'}")
    a("s_mov_b32 exec_lo, 0x00ff00ff\ns_mov_b32 exec_hi, 0x00ff00ff")
    a("s_nop 3")
    for k in range(4): a(f"v_cndmask_b32 v{64+k}, v{64+k}, v{68+k}, s[54:55]")
    for k in range(4): a(f"v_cndmask_b32 v{72+k}, v{72+k}, v{76+k}, s[54:55]")
    for k in range(4): a(f"v_cndmask_b32 v{64+k}, v{64+k}, v{72+k}, s[56:57]")
    for k in range(4): a(f"v_bfi_b32 v{64+k}, 3, v{17+k}, v{64+k}")
    a("buffer_store_dwordx4 v[64:67], v16, s[8:11], s51 offen sc1")
    ts(12)
    if cfg.ts:
        a("s_waitcnt vmcnt(0)")
        ts(13)
    ts_flush()
    a("s_endpgm")

    QR = 131072
    MX = QR; LS = QR + 512; NLA = QR + 1024 - 16; PX = QR + 1024
    FXN = QR + 16384; FG = FXN + 2304; FH = FG + 8192
    a(".L_A:")
    a("s_cmp_ge_u32 s2, 256")
    a("s_cbranch_scc1 .L_end")
    a("s_load_dwordx2 s[16:17], s[0:1], 8")
    a("s_load_dwordx2 s[12:13], s[0:1], 88")
    a("s_load_dwordx2 s[8:9], s[0:1], 96")
    a("s_load_dwordx2 s[4:5], s[0:1], 0")
    a("s_load_dwordx2 s[20:21], s[0:1], 56")
    a("s_load_dwordx2 s[24:25], s[0:1], 64")
    a("s_load_dwordx2 s[28:29], s[0:1], 72")
    a("v_lshrrev_b32 v1, 6, v0")
    a("v_and_b32 v0, 63, v0")
    a("v_readfirstlane_b32 s3, v1")
    a("s_sub_u32 s43, s2, 128")
    a("s_bfe_u32 s41, s43, 0x10002")
    a("s_lshr_b32 s42, s43, 3\ns_lshl_b32 s42, s42, 2\ns_and_b32 s44, s43, 3\ns_add_u32 s42, s42, s44")
    a("s_lshl_b32 s44, s41, 6\ns_add_u32 s42, s42, s44")
    srd(16, 16777216); srd(12, 256); srd(8, WS_SIZE); srd(4, 2048); srd(20, 1409024); srd(24, 1409024); srd(28, 1409024)
    a("v_lshlrev_b32 v8, 4, v0")
    a("v_mov_b32 v9, 0")
    a("s_cmp_lt_u32 s3, 4")
    a("s_cbranch_scc1 .LA_comp")
    a("s_sub_u32 s47, s3, 4")
    a("s_lshl_b32 s46, s47, 15")
    a("s_lshl_b32 s44, s42, 17\ns_add_u32 s44, s44, s46")
    a("s_mov_b32 m0, s46")
    a("s_waitcnt lgkmcnt(0)")
    ts(1)
    a("s_lshl_b32 s45, s47, 10")
    a("buffer_load_dwordx4 v[12:15], v8, s[4:7], s45 offen")
    def crow(i):
        f = ((i & 3) << 2) | ((i >> 2) & 3)
        if i % 4 == 0 and i:
            a("s_add_u32 m0, m0, 4096\ns_add_u32 s44, s44, 4096")
        a(f"v_xor_b32 v10, {16*f}, v8")
        a(f"buffer_load_dwordx4 v10, s[16:19], s44 offen offset:{1024*(i&3)} {NT} lds")
    for i in range(cfg.npre): crow(i)
    a("s_barrier")
    ts(2)
    for i in range(cfg.npre, 32):
        if cfg.cwin and i >= cfg.cwin: a(f"s_waitcnt vmcnt({cfg.cwin-1})")
        crow(i)
    ts(3)
    a(f"v_mov_b32 v10, {NLA}")
    a("ds_read_b32 v11, v10")
    a(f"s_lshl_b32 s45, s43, 7\ns_add_u32 s45, s45, {WS_GO}")
    a("s_cmp_lg_u32 s3, 4")
    a("s_cbranch_scc1 .LH_nogo")
    a(f"s_waitcnt vmcnt({cfg.go_cnt}) lgkmcnt(0)")
    a("s_mov_b64 exec, 1")
    a("buffer_store_dword v11, v9, s[8:11], s45 offen sc1")
    a("s_mov_b64 exec, -1")
    a(".LH_nogo:")
    a("s_waitcnt lgkmcnt(0)")
    a("v_readfirstlane_b32 s40, v11")
    a("s_cmp_lt_u32 s43, 43")
    a("s_cbranch_scc1 .LH_F")
    a("s_waitcnt vmcnt(0)")
    ts(4)
    a("s_barrier\ns_barrier\ns_barrier\ns_barrier")
    ts_flush()
    a("s_endpgm")
    a(".LH_F:")
    a("s_waitcnt vmcnt(32)")
    layernorm(12, 16, 20)
    a("v_lshrrev_b32 v2, 4, v0\nv_and_b32 v3, 15, v0\nv_and_b32 v25, 1, v0")
    a("v_lshrrev_b32 v4, 2, v3\nv_lshlrev_b32 v4, 5, v4\nv_lshl_add_u32 v4, v2, 3, v4\nv_mul_u32_u24 v4, 2752, v4")
    a("v_and_b32 v5, 3, v3\nv_lshl_add_u32 v4, v5, 4, v4")
    a(f"s_mul_i32 s44, s47, {128*2752}\ns_lshl_b32 s45, s43, 6\ns_add_u32 s44, s44, s45")
    a("v_lshlrev_b32 v5, 13, v2\nv_lshl_add_u32 v5, v3, 4, v5")
    a("s_lshl_b32 s46, s43, 15\ns_lshl_b32 s45, s47, 8\ns_add_u32 s46, s46, s45")
    a("s_waitcnt vmcnt(0)")
    ts(4)
    a("s_barrier")
    for m, srdn in ((0, 20), (1, 24)):
        a("s_mov_b32 s45, s44")
        for i in range(8):
            r = 32 + 32 * m + 4 * i
            a(f"buffer_load_dwordx4 v[{r}:{r+3}], v4, s[{srdn}:{srdn+3}], s45 offen {NT}")
            if i < 7: a("s_add_u32 s45, s45, 2752")
    a("s_barrier\ns_barrier\ns_barrier")
    for i in range(8):
        r = 96 + 4 * i
        if i == 4: a("s_add_u32 s46, s46, 4096")
        a(f"buffer_load_dwordx4 v[{r}:{r+3}], v5, s[28:31], s46 offen offset:{1024*(i&3)} {NT}")
    a("s_cmp_gt_u32 s47, 1")
    a("s_cbranch_scc1 .LF_noxn")
    a(f"s_mul_i32 s45, s47, {XNS}\ns_add_u32 s45, s45, {FXN}")
    a("v_add_u32 v10, s45, v8")
    a("ds_write_b128 v10, v[16:19]")
    a(".LF_noxn:")
    a(f"v_mul_u32_u24 v6, {XNS}, v25\nv_bfe_u32 v7, v3, 1, 2\nv_lshl_add_u32 v6, v7, 6, v6\nv_lshl_add_u32 v6, v2, 4, v6")
    a(f"s_lshl_b32 s45, s47, 8\ns_add_u32 s45, s45, {FXN}\nv_add_u32 v6, s45, v6")
    a("s_mov_b32 s52, 0x05040100\ns_mov_b32 s53, 0x07060302")
    def transpose8(src, dst):
        for j in range(8):
            for e in range(4):
                a(f"v_perm_b32 v{dst+4*j+e}, v{src+4*(2*e+1)+(j>>1)}, v{src+4*(2*e)+(j>>1)}, s{52+(j&1)}")
    a("s_waitcnt vmcnt(16)")
    transpose8(32, 128)
    a("s_waitcnt vmcnt(8)")
    transpose8(64, 160)
    a("s_waitcnt lgkmcnt(0)")
    a("s_barrier")
    ts(5)
    a("ds_read_b128 v[20:23], v6")
    a("v_lshlrev_b32 v7, 9, v2\nv_lshl_add_u32 v7, v25, 8, v7")
    a(f"s_lshl_b32 s45, s47, 11\ns_add_u32 s45, s45, {FG}\nv_add_u32 v7, s45, v7")
    a("s_waitcnt lgkmcnt(0)")
    for j in range(16):
        a(f"v_mfma_f32_16x16x32_bf16 v[{32+4*j}:{35+4*j}], v[{128+4*j}:{131+4*j}], v[20:23], 0")
    a("s_mov_b32 exec_lo, 0x000c0003\ns_mov_b32 exec_hi, 0x00c00030")
    a("s_nop 5")
    for j in range(16):
        a(f"ds_write_b128 v7, v[{32+4*j}:{35+4*j}] offset:{16*j}")
    a("s_mov_b64 exec, -1")
    a("s_waitcnt vmcnt(0)")
    transpose8(96, 128)
    a("s_waitcnt lgkmcnt(0)")
    a("s_barrier")
    a("s_cmp_lg_u32 s47, 0")
    a("s_cbranch_scc1 .LF_hw")
    a("v_lshrrev_b32 v10, 5, v0\nv_lshlrev_b32 v10, 8, v10\nv_and_b32 v11, 31, v0\nv_lshl_add_u32 v10, v11, 2, v10")
    a(f"v_add_u32 v10, {FG}, v10")
    for pt in range(16):
        if pt: a("v_add_u32 v10, 512, v10")
        if pt == 14: a("s_waitcnt lgkmcnt(12)")
        a(f"ds_read2_b32 v[{32+2*pt}:{33+2*pt}], v10 offset0:0 offset1:32")
    for pt in range(1, 16):
        a(f"s_waitcnt lgkmcnt({min(15, 15-pt)})")
        a(f"v_add_f32 v32, v32, v{32+2*pt}\nv_add_f32 v33, v33, v{33+2*pt}")
    a("v_cvt_pk_bf16_f32 v32, v32, v33")
    a("v_and_b32 v33, 0xffff0000, v32")
    a("v_lshlrev_b32 v32, 16, v32")
    a(f"v_mul_f32 v34, {hex(f2u(-LOG2E))}, v32")
    a("v_exp_f32 v34, v34")
    a("s_nop 0")
    a("v_add_f32 v34, 1.0, v34")
    a("v_rcp_f32 v34, v34")
    a("s_nop 0")
    a("v_mul_f32 v32, v32, v34")
    a("v_cvt_pk_bf16_f32 v32, v32, v32")
    a("v_lshlrev_b32 v32, 16, v32")
    a("v_mul_f32 v32, v32, v33")
    a("v_cvt_pk_bf16_f32 v32, v32, v32")
    a("v_and_b32 v33, 3, v11\nv_lshrrev_b32 v34, 2, v11\nv_lshl_add_u32 v33, v33, 3, v34")
    a("v_lshrrev_b32 v34, 5, v0\nv_lshlrev_b32 v34, 6, v34\nv_lshl_add_u32 v33, v33, 1, v34")
    a(f"v_add_u32 v33, {FH}, v33")
    a("ds_write_b16 v33, v32")
    a(".LF_hw:")
    a(f"v_lshlrev_b32 v10, 6, v25\nv_lshl_add_u32 v10, v2, 4, v10\nv_add_u32 v10, {FH}, v10")
    a("v_lshrrev_b32 v11, 1, v2\nv_lshlrev_b32 v11, 11, v11\nv_lshl_add_u32 v11, v3, 5, v11\nv_and_b32 v12, 1, v2\nv_lshl_add_u32 v11, v12, 4, v11")
    a("v_lshl_add_u32 v12, v25, 1, v12\nv_lshlrev_b32 v12, 3, v12\nv_mov_b32 v13, s40\nv_lshrrev_b32 v12, v12, v13")
    a("v_lshrrev_b32 v13, 2, v12\nv_lshrrev_b32 v14, 4, v12\nv_lshrrev_b32 v15, 6, v12")
    a(f"s_lshl_b32 s45, s43, 12\ns_lshl_b32 s46, s47, 9\ns_add_u32 s45, s45, s46\ns_add_u32 s45, s45, {WS_F}")
    a("s_mov_b32 s54, 0xffff0000\ns_mov_b32 s55, 0xffff0000")
    a("s_mov_b32 s56, 0\ns_mov_b32 s57, -1")
    a("s_waitcnt lgkmcnt(0)")
    a("s_barrier")
    a("ds_read_b128 v[20:23], v10")
    a("s_waitcnt lgkmcnt(0)")
    for j in range(8):
        a(f"v_mfma_f32_16x16x32_bf16 v[{32+4*j}:{35+4*j}], v[20:23], v[{128+4*j}:{131+4*j}], 0")
    a("s_nop 4")
    for k in range(4):
        a(f"v_cndmask_b32 v{64+k}, v{32+4*k}, v{32+4*(4+k)}, s[54:55]")
    for k in range(4):
        a(f"v_cndmask_b32 v{68+k}, v{33+4*k}, v{33+4*(4+k)}, s[54:55]")
    for k in range(4):
        a(f"v_cndmask_b32 v{64+k}, v{64+k}, v{68+k}, s[56:57]")
    for k in range(4):
        a(f"v_bfi_b32 v{64+k}, 3, v{12+k}, v{64+k}")
    a("buffer_store_dwordx4 v[64:67], v11, s[8:11], s45 offen sc1")
    ts(6)
    ts_flush()
    a("s_endpgm")

    a(".LA_comp:")
    a("s_load_dwordx2 s[32:33], s[0:1], 80")
    srd(32, 2048)
    a("s_waitcnt lgkmcnt(0)")
    ts(1)
    if cfg.prefetch:
        a("s_cmp_lg_u32 s3, 1")
        a("s_cbranch_scc1 .LA_nopf")
        a("s_getpc_b64 s[36:37]")
        a(".LA_pc:")
        a(f"s_sub_u32 s36, s36, .LA_pc-{K}\ns_subb_u32 s37, s37, 0")
        a(f"s_mov_b32 s38, .L_codeend-{K}\ns_mov_b32 s39, 0x20000")
        a("s_mov_b32 s45, 0")
        a(".LA_pfl:")
        a("buffer_load_dwordx4 v[12:15], v8, s[36:39], s45 offen")
        a("s_add_u32 s45, s45, 1024")
        a(f"s_cmp_lt_u32 s45, .L_codeend-{K}")
        a("s_cbranch_scc1 .LA_pfl")
        a(".LA_nopf:")
    a("s_cmp_lg_u32 s3, 0")
    a("s_cbranch_scc1 .LA_b0")
    budget()
    a(".LA_np:")
    spend(".LA_ng")
    a("buffer_load_dword v12, v9, s[12:15], 0 offen sc1")
    a("s_waitcnt vmcnt(0)")
    a("v_readfirstlane_b32 s40, v12")
    a("s_cmp_eq_u32 s40, 0")
    a("s_cbranch_scc1 .LA_np")
    a(".LA_ng:")
    a(f"v_mov_b32 v10, {NLA}")
    a("ds_write_b32 v10, v12")
    a("s_waitcnt lgkmcnt(0)")
    a(".LA_b0:")
    a("s_barrier")
    ts(2)
    a(f"v_mov_b32 v10, {NLA}")
    a("ds_read_b32 v11, v10")
    a("v_lshrrev_b32 v2, 5, v0")
    a("v_and_b32 v3, 31, v0")
    a("v_and_b32 v4, 3, v3\nv_lshlrev_b32 v4, 2, v4\nv_bfe_u32 v5, v3, 2, 2\nv_or_b32 v4, v4, v5")
    a("v_xor_b32 v4, v4, v2\nv_lshlrev_b32 v4, 4, v4\nv_lshl_add_u32 v4, v3, 10, v4")
    a("s_lshl_b32 s45, s3, 15")
    a("v_add_u32 v16, s45, v4")
    a(f"v_add_u32 v24, {QR}, v4")
    for k in range(1, 8):
        a(f"v_xor_b32 v{16+k}, {32*k}, v16\nv_xor_b32 v{24+k}, {32*k}, v24")
    a("v_bfe_u32 v4, v0, 2, 2")
    a("v_lshl_add_u32 v5, v2, 2, v4\nv_lshlrev_b32 v5, 10, v5\nv_lshl_add_u32 v5, v4, 6, v5")
    a("v_bfe_u32 v6, v0, 4, 1\nv_bfe_u32 v7, v0, 1, 1\nv_lshl_add_u32 v6, v6, 1, v7\nv_xor_b32 v6, v6, v2\nv_lshl_add_u32 v5, v6, 4, v5")
    a("v_and_b32 v6, 1, v0\nv_lshl_add_u32 v5, v6, 3, v5")
    a("s_lshl_b32 s45, s3, 8")
    a("v_add_u32 v32, s45, v5")
    for jj in range(4):
        for q in range(2):
            if jj or q: a(f"v_xor_b32 v{32+2*jj+q}, {64*jj + 32*q}, v32")
    for k in range(8): a(f"v_add_u32 v{40+k}, 0x10000, v{32+k}")
    a(f"s_lshl_b32 s45, s3, 7\ns_add_u32 s45, s45, {MX}")
    a("v_lshlrev_b32 v48, 2, v3")
    a(f"v_add_u32 v49, {MX}, v48")
    a("v_add_u32 v48, s45, v48")
    a(f"s_lshl_b32 s45, s3, 11\ns_add_u32 s45, s45, {PX}")
    a("v_add_u32 v50, s45, v8")
    a(f"v_add_u32 v51, {PX}, v8")
    a("v_lshlrev_b32 v52, 19, v2\nv_lshl_add_u32 v52, v3, 2, v52")
    a(f"s_lshl_b32 s44, s3, 15\ns_lshl_b32 s45, s42, 8\ns_add_u32 s44, s44, s45\ns_add_u32 s44, s44, {WS_O}")
    for r in range(16):
        a(f"s_add_u32 s{48+r}, s44, {((r & 3) + 8 * (r >> 2)) * 131072}")
    a("s_waitcnt lgkmcnt(0)")
    a("v_readfirstlane_b32 s40, v11")
    a("v_and_b32 v4, 15, v0\nv_lshlrev_b32 v4, 1, v4\nv_lshrrev_b32 v4, v4, v11\nv_and_b32 v5, 1, v4\nv_bfe_u32 v4, v4, 1, 1\nv_lshl_or_b32 v53, v4, 16, v5")
    a("v_lshlrev_b32 v54, 4, v3")
    a(f"s_lshl_b32 s46, s42, 11\ns_lshl_b32 s45, s3, 9\ns_add_u32 s46, s46, s45\ns_add_u32 s46, s46, {WS_ML}")
    a("v_lshlrev_b32 v4, 7, v3")
    a(f"s_lshl_b32 s45, s3, 12\ns_add_u32 s45, s45, {WS_QF}")
    budget()
    a(".LA_qp:")
    spend(".LA_qg")
    a("buffer_load_dword v5, v4, s[8:11], s45 offen sc1")
    a("s_waitcnt vmcnt(0)")
    a("v_cmp_ne_u32 vcc, s40, v5")
    a("s_cbranch_vccz .LA_qg")
    psleep()
    a("s_branch .LA_qp")
    a(".LA_qg:")
    ts(3)
    a(f"s_lshl_b32 s45, s3, 13\ns_add_u32 m0, s45, {QR}")
    a(f"s_lshl_b32 s47, s41, 15\ns_add_u32 s45, s45, s47\ns_add_u32 s45, s45, {WS_Q}")
    a("s_and_b32 s47, s3, 1\ns_lshl_b32 s47, s47, 5")
    a("v_xor_b32 v4, s47, v8")
    for i in range(8):
        if i == 4: a("s_add_u32 m0, m0, 4096\ns_add_u32 s45, s45, 4096")
        a(f"v_xor_b32 v5, {16*(((i&3)<<2) | (i>>2))}, v4")
        a(f"buffer_load_dwordx4 v5, s[8:11], s45 offen offset:{1024*(i&3)} sc1 lds")
    a("s_mov_b32 s47, 0x00010001")
    a("s_waitcnt vmcnt(0)")
    ts(4)
    a("s_barrier")
    ts(5)
    LA = 4
    def sread(s):
        r = 80 + 8 * (s % LA)
        a(f"ds_read_b128 v[{r}:{r+3}], v{16+(s&7)} offset:{256*(s>>3)}")
        a(f"ds_read_b128 v[{r+4}:{r+7}], v{24+(s&7)} offset:{256*(s>>3)}")
    for s in range(LA): sread(s)
    for s in range(32):
        r = 80 + 8 * (s % LA)
        outstanding = min(LA, 32 - s)
        a(f"s_waitcnt lgkmcnt({2*(outstanding-1)})")
        if s == 31: a("s_barrier")
        a(f"v_mfma_f32_32x32x16_bf16 v[64:79], v[{r}:{r+3}], v[{r+4}:{r+7}], {'0' if s == 0 else 'v[64:79]'}")
        if s + LA < 32: sread(s + LA)
    ts(6)
    a("s_nop 11" if not cfg.ts else "s_nop 10")
    a("v_max3_f32 v4, v64, v65, v66\nv_max3_f32 v5, v67, v68, v69\nv_max3_f32 v6, v70, v71, v72\nv_max3_f32 v7, v73, v74, v75")
    a("v_max3_f32 v4, v4, v76, v77\nv_max3_f32 v5, v5, v78, v79\nv_max3_f32 v4, v4, v6, v7\nv_max_f32 v4, v4, v5")
    a("v_mov_b32 v5, v4\ns_nop 1\nv_permlane32_swap_b32 v4, v5\nv_max_f32 v4, v4, v5")
    a("ds_write_b32 v48, v4")
    a("s_waitcnt lgkmcnt(0)")
    a("s_barrier")
    a("ds_read2_b32 v[4:5], v49 offset0:0 offset1:32")
    a("ds_read2_b32 v[6:7], v49 offset0:64 offset1:96")
    a("s_waitcnt lgkmcnt(0)")
    a("v_max3_f32 v4, v4, v5, v6\nv_max_f32 v56, v4, v7")
    for r in range(16): a(f"v_sub_f32 v{64+r}, v{64+r}, v56")
    for r in range(16): a(f"v_exp_f32 v{64+r}, v{64+r}")
    a("s_nop 0")
    for e in range(8): a(f"v_cvt_pk_bf16_f32 v{80+e}, v{64+2*e}, v{65+2*e}")
    a("ds_write_b128 v50, v[80:83]")
    a("ds_write_b128 v50, v[84:87] offset:1024")
    for e in range(8): a(f"v_add_f32 v{64+e}, v{64+e}, v{72+e}")
    for e in range(4): a(f"v_add_f32 v{64+e}, v{64+e}, v{68+e}")
    a("v_add_f32 v64, v64, v66\nv_add_f32 v65, v65, v67\nv_add_f32 v64, v64, v65")
    a("v_mov_b32 v65, v64\ns_nop 1\nv_permlane32_swap_b32 v64, v65\nv_add_f32 v64, v64, v65")
    a("ds_write_b32 v48, v64 offset:512")
    a("s_waitcnt lgkmcnt(0)")
    a("s_barrier")
    ts(7)
    for k in range(8):
        a(f"ds_read_b128 v[{64+4*k}:{67+4*k}], v51 offset:{1024*k}")
    seq = [(tp, k, jj) for tp in range(2) for k in range(8) for jj in (2*tp, 2*tp+1)]
    LB = 5
    def tread(n):
        tp, k, jj = seq[n]
        kb, t = k >> 1, k & 1
        r = 160 + 4 * (n % LB)
        base = (32 if kb < 2 else 40) + 2 * jj
        off = (32 * (kb & 1) + 16 * t) * 1024
        a(f"ds_read_b64_tr_b16 v[{r}:{r+1}], v{base} offset:{off}")
        a(f"ds_read_b64_tr_b16 v[{r+2}:{r+3}], v{base+1} offset:{off+8192}")
    a("s_waitcnt lgkmcnt(5)")
    for n in range(LB): tread(n)
    def epi(tp, r):
        a(f"v_cvt_pk_bf16_f32 v{184+(r&7)}, v{96+32*tp+r}, v{112+32*tp+r}")
        a(f"v_bfi_b32 v{184+(r&7)}, s47, v53, v{184+(r&7)}")
        a(f"buffer_store_dword v{184+(r&7)}, v52, s[8:11], s{48+r} offen offset:{128*tp} sc1")
    for n in range(32):
        tp, k, jj = seq[n]
        r = 160 + 4 * (n % LB)
        outstanding = min(LB, 32 - n)
        a(f"s_waitcnt lgkmcnt({2*(outstanding-1)})")
        acc = 96 + 16 * jj
        a(f"v_mfma_f32_32x32x16_bf16 v[{acc}:{acc+15}], v[{64+4*k}:{67+4*k}], v[{r}:{r+3}], {'0' if k == 0 else f'v[{acc}:{acc+15}]'}")
        if n + LB < 32: tread(n + LB)
        if n >= 20 and n - 20 < 12:
            epi(0, n - 20)
    for r in range(12, 16): epi(0, r)
    a("ds_read2_b32 v[4:5], v49 offset0:128 offset1:160")
    a("ds_read2_b32 v[6:7], v49 offset0:192 offset1:224")
    for r in range(16): epi(1, r)
    a("s_waitcnt lgkmcnt(0)")
    a("v_add_f32 v4, v4, v5\nv_add_f32 v6, v6, v7\nv_add_f32 v57, v4, v6")
    a("v_mov_b32 v58, s40\nv_mov_b32 v59, 0")
    a("s_mov_b32 exec_hi, 0")
    a("buffer_store_dwordx4 v[56:59], v54, s[8:11], s46 offen sc1")
    a("s_mov_b64 exec, -1")
    ts(8)
    a("s_cmp_lg_u32 s3, 0")
    a("s_cbranch_scc1 .LA_exit")
    a("s_cmp_lt_u32 s43, 96")
    a("s_cbranch_scc1 .LA_exit")
    a("s_sub_u32 s44, s43, 96")
    a("v_and_b32 v3, 7, v0\nv_lshrrev_b32 v2, 3, v0")
    a("v_lshlrev_b32 v4, 12, v2\nv_lshl_add_u32 v4, v3, 4, v4")
    a("v_and_b32 v5, 3, v0\nv_lshlrev_b32 v5, 3, v5\nv_mov_b32 v6, s40\nv_lshrrev_b32 v10, v5, v6")
    a("v_lshrrev_b32 v11, 2, v10\nv_lshrrev_b32 v12, 4, v10\nv_lshrrev_b32 v13, 6, v10")
    a("s_lshl_b32 s45, s44, 6")
    a("v_lshlrev_b32 v14, 3, v3")
    a("buffer_load_dwordx2 v[16:17], v14, s[4:7], s45 offen")
    a(f"s_lshl_b32 s46, s44, 7\ns_add_u32 s47, s46, {WS_F}\ns_add_u32 s46, s46, {WS_S}")
    def gather(n, sbase, lab, lastmask=None):
        budget()
        a(f"{lab}:")
        spend(f"{lab}_ok")
        a(f"s_mov_b32 s48, {sbase}")
        for i in range(n):
            if lastmask is not None and i == n - 1:
                for k in range(4): a(f"v_mov_b32 v{32+4*i+k}, v{10+k}")
                a(f"s_mov_b32 exec_lo, {lastmask}\ns_mov_b32 exec_hi, 0")
            a(f"buffer_load_dwordx4 v[{32+4*i}:{35+4*i}], v4, s[8:11], s48 offen sc1")
            if i < n - 1: a("s_add_u32 s48, s48, 32768")
        if lastmask is not None: a("s_mov_b64 exec, -1")
        for i in range(n):
            a(f"s_waitcnt vmcnt({n-1-i})")
            for k in range(4):
                if i == 0 and k == 0: a(f"v_xor_b32 v20, v32, v10")
                else: a(f"v_bitop3_b32 v20, v20, v{32+4*i+k}, v{10+k} bitop3:0xf6")
            if lastmask is not None and i == n - 1:
                a(f"s_mov_b32 exec_lo, {lastmask}\ns_mov_b32 exec_hi, 0")
            if i:
                for k in range(4): a(f"v_add_f32 v{32+k}, v{32+k}, v{32+4*i+k}")
            if lastmask is not None and i == n - 1: a("s_mov_b64 exec, -1")
        a("v_and_b32 v20, 3, v20")
        a("v_cmp_ne_u32 vcc, 0, v20")
        a(f"s_cbranch_vccz {lab}_ok")
        psleep()
        a(f"s_branch {lab}")
        a(f"{lab}_ok:")
        for k in range(4):
            a(f"v_add_f32_dpp v{32+k}, v{32+k}, v{32+k} row_ror:8 row_mask:0xf bank_mask:0xf")
        for sw in ("v_permlane16_swap_b32", "v_permlane32_swap_b32"):
            for k in range(4): a(f"v_mov_b32 v{36+k}, v{32+k}")
            a("s_nop 0")
            for k in range(4): a(f"{sw} v{32+k}, v{36+k}")
            for k in range(4): a(f"v_add_f32 v{32+k}, v{32+k}, v{36+k}")
    gather(6, "s47", ".LZ_f", lastmask=0x00ffffff)
    ts(9)
    a("v_cvt_pk_bf16_f32 v32, v32, v33\nv_cvt_pk_bf16_f32 v34, v34, v35")
    a("v_lshlrev_b32 v24, 16, v32\nv_and_b32 v25, 0xffff0000, v32\nv_lshlrev_b32 v26, 16, v34\nv_and_b32 v27, 0xffff0000, v34")
    for k in range(4): a(f"v_mul_f32 v{32+k}, {hex(f2u(-LOG2E))}, v{24+k}")
    for k in range(4): a(f"v_exp_f32 v{32+k}, v{32+k}")
    a("s_nop 0")
    for k in range(4): a(f"v_add_f32 v{32+k}, 1.0, v{32+k}")
    for k in range(4): a(f"v_rcp_f32 v{32+k}, v{32+k}")
    a("s_nop 0")
    for k in range(4): a(f"v_mul_f32 v{24+k}, v{24+k}, v{32+k}")
    a("v_cvt_pk_bf16_f32 v32, v24, v25\nv_cvt_pk_bf16_f32 v34, v26, v27")
    a("v_lshlrev_b32 v24, 16, v32\nv_and_b32 v25, 0xffff0000, v32\nv_lshlrev_b32 v26, 16, v34\nv_and_b32 v27, 0xffff0000, v34")
    a("v_lshlrev_b32 v28, 16, v16\nv_and_b32 v29, 0xffff0000, v16\nv_lshlrev_b32 v30, 16, v17\nv_and_b32 v31, 0xffff0000, v17")
    gather(16, "s46", ".LZ_s")
    ts(10)
    a("v_cvt_pk_bf16_f32 v32, v32, v33\nv_cvt_pk_bf16_f32 v34, v34, v35")
    a("v_and_b32 v33, 0xffff0000, v32\nv_lshlrev_b32 v32, 16, v32\nv_and_b32 v35, 0xffff0000, v34\nv_lshlrev_b32 v34, 16, v34")
    for k in range(4): a(f"v_mul_f32 v{32+k}, v{32+k}, v{24+k}")
    a("v_cvt_pk_bf16_f32 v32, v32, v33\nv_cvt_pk_bf16_f32 v34, v34, v35")
    a("v_and_b32 v33, 0xffff0000, v32\nv_lshlrev_b32 v32, 16, v32\nv_and_b32 v35, 0xffff0000, v34\nv_lshlrev_b32 v34, 16, v34")
    for k in range(4): a(f"v_add_f32 v{32+k}, v{32+k}, v{28+k}")
    a("v_cvt_pk_bf16_f32 v32, v32, v33\nv_cvt_pk_bf16_f32 v33, v34, v35")
    a("s_mov_b64 exec, 0xff")
    a("buffer_store_dwordx2 v[32:33], v14, s[32:35], s45 offen")
    if cfg.dbgt:
        a("s_memrealtime s[48:49]")
        a("s_waitcnt lgkmcnt(0)")
        a("v_mov_b32 v10, s48")
        a("s_lshl_b32 s45, s44, 2")
        a("buffer_store_dword v10, v9, s[12:15], s45 offen offset:8")
    ts(11)
    a(".LA_exit:")
    ts_flush()
    a(".L_end:")
    a("s_endpgm")
    a(".L_codeend:")
    body = a.text()
    return assemble([(K, 256, 512, 163840)], [(K, body, 256, 102, 256, "")]), body

if __name__ == "__main__":
    import argparse
    ap = argparse.ArgumentParser()
    ap.add_argument("-o", default="k.s")
    ap.add_argument("--set", action="append", default=[])
    args = ap.parse_args()
    for s in args.set:
        k, v = s.split("=")
        setattr(Cfg, k, eval(v))
    txt, body = gen(Cfg)
    open(args.o, "w").write(txt)
    for p in hazard.check(txt): print("HAZARD", p)
```

```python
import sys
from asmlib import *
import hazard

WS_H1 = 0x000000
WS_Q  = 0x080000
WS_QF = 0x0A0000
WS_GO = 0x0B0000
WS_ML = 0x100000
WS_S  = 0x200000
WS_F  = 0x300000
WS_O  = 0x400000
WS_TS = 0x1000000
WS_SIZE = 268435456
LOG2E = 1.4426950408889634
QSCALE = LOG2E * 128 ** -0.5
import struct
def f2u(x): return struct.unpack("<I", struct.pack("<f", x))[0]

class Cfg:
    ts = False
    npre = 2
    go_cnt = 8
    cwin = 0
    nsamp = 7
    samp_sleep = 3
    prefetch = True
    poll_sleep = 1
    nt = "nt"
    nt_wo = "nt"
    spin = 30000
    dbgt = False
    amp = 0

def gen(cfg=Cfg):
    a = Asm()
    K = NAME + "_kernel"
    NT = cfg.nt
    tsn = [0]
    def ts(idx):
        if cfg.ts:
            a(f"s_memrealtime s[{64+2*idx}:{65+2*idx}]")
    def ts_flush(nmax=16):
        if not cfg.ts: return
        a("s_waitcnt lgkmcnt(0)")
        a("s_lshl_b32 s44, s2, 3\ns_add_u32 s44, s44, s3\ns_lshl_b32 s44, s44, 6")
        a(f"s_add_u32 s44, s44, {WS_TS}")
        a("s_mov_b64 exec, 1")
        a("v_mov_b32 v1, 0")
        for q in range(4):
            for k in range(4):
                a(f"v_mov_b32 v{4+k}, s{64+2*(4*q+k)}")
            a(f"buffer_store_dwordx4 v[4:7], v1, s[8:11], s44 offen offset:{16*q}")
            a("s_nop 1")
        a("s_waitcnt vmcnt(0)")
    def srd(base, size):
        a(f"s_mov_b32 s{base+2}, {size}\ns_mov_b32 s{base+3}, 0x20000")
    def allreduce16(v, t, op):
        for r in (8, 4, 2, 1):
            a("s_nop 1")
            a(f"{op}_dpp v{v}, v{v}, v{v} row_ror:{r} row_mask:0xf bank_mask:0xf")
        for sw in ("v_permlane16_swap_b32", "v_permlane32_swap_b32"):
            a(f"v_mov_b32 v{t}, v{v}")
            a("s_nop 1")
            a(f"{sw} v{v}, v{t}")
            a(f"{op} v{v}, v{v}, v{t}")
    def layernorm(vx, vo, vt):
        f = [vt + i for i in range(8)]
        s, t, u = vt + 8, vt + 9, vt + 10
        for i in range(4):
            a(f"v_lshlrev_b32 v{f[2*i]}, 16, v{vx+i}")
            a(f"v_and_b32 v{f[2*i+1]}, 0xffff0000, v{vx+i}")
        a(f"v_add_f32 v{s}, v{f[0]}, v{f[1]}")
        a(f"v_add_f32 v{t}, v{f[2]}, v{f[3]}")
        a(f"v_add_f32 v{u}, v{f[4]}, v{f[5]}")
        a(f"v_add_f32 v{s}, v{s}, v{f[6]}")
        a(f"v_add_f32 v{t}, v{t}, v{f[7]}")
        a(f"v_add_f32 v{s}, v{s}, v{u}")
        a(f"v_add_f32 v{s}, v{s}, v{t}")
        allreduce16(s, t, "v_add_f32")
        a(f"v_mul_f32 v{s}, {hex(f2u(1/512))}, v{s}")
        m2 = vt + 11
        a(f"v_sub_f32 v{t}, v{f[0]}, v{s}")
        a(f"v_mul_f32 v{m2}, v{t}, v{t}")
        for i in range(1, 8):
            a(f"v_sub_f32 v{t}, v{f[i]}, v{s}")
            a(f"v_fmac_f32 v{m2}, v{t}, v{t}")
        allreduce16(m2, t, "v_add_f32")
        a(f"v_mul_f32 v{m2}, {hex(f2u(1/512))}, v{m2}")
        a(f"v_cvt_pk_bf16_f32 v{t}, v{s}, v{m2}")
        a(f"v_lshlrev_b32 v{s}, 16, v{t}")
        a(f"v_and_b32 v{m2}, 0xffff0000, v{t}")
        a(f"v_add_f32 v{m2}, {hex(f2u(1e-5))}, v{m2}")
        a(f"v_cvt_pk_bf16_f32 v{m2}, v{m2}, v{m2}")
        a(f"v_and_b32 v{m2}, 0xffff0000, v{m2}")
        a(f"v_sqrt_f32 v{m2}, v{m2}")
        for i in range(8):
            a(f"v_sub_f32 v{f[i]}, v{f[i]}, v{s}")
        a(f"v_cvt_pk_bf16_f32 v{m2}, v{m2}, v{m2}")
        a(f"v_and_b32 v{m2}, 0xffff0000, v{m2}")
        a(f"v_rcp_f32 v{m2}, v{m2}")
        for i in range(4):
            a(f"v_cvt_pk_bf16_f32 v{vo+i}, v{f[2*i]}, v{f[2*i+1]}")
        for i in range(4):
            a(f"v_lshlrev_b32 v{f[2*i]}, 16, v{vo+i}")
            a(f"v_and_b32 v{f[2*i+1]}, 0xffff0000, v{vo+i}")
        for i in range(8):
            a(f"v_mul_f32 v{f[i]}, v{f[i]}, v{m2}")
        for i in range(4):
            a(f"v_cvt_pk_bf16_f32 v{vo+i}, v{f[2*i]}, v{f[2*i+1]}")
    def psleep():
        if cfg.poll_sleep: a(f"s_sleep {cfg.poll_sleep}")
    def budget():
        a(f"s_movk_i32 s96, {cfg.spin}")
    def spend(exit_label):
        a("s_sub_u32 s96, s96, 1")
        a(f"s_cbranch_scc1 {exit_label}")

    if cfg.ts:
        for i in range(1, 16): a(f"s_mov_b32 s{64+2*i}, 0")
    ts(0)
    a("s_cmp_ge_u32 s2, 128")
    a("s_cbranch_scc1 .L_A")
    XN = 32768
    XNS = 1088
    NL = XN + 2304
    QV = NL + 64
    QS = QV + 576
    a("s_load_dwordx2 s[16:17], s[0:1], 16")
    a("s_load_dwordx2 s[4:5], s[0:1], 0")
    a("s_load_dwordx2 s[12:13], s[0:1], 88")
    a("s_load_dwordx2 s[20:21], s[0:1], 24")
    a("s_load_dwordx2 s[8:9], s[0:1], 96")
    a("s_load_dwordx2 s[24:25], s[0:1], 32")
    a("s_load_dwordx2 s[28:29], s[0:1], 40")
    a("v_lshrrev_b32 v1, 6, v0")
    a("v_and_b32 v0, 63, v0")
    a("v_readfirstlane_b32 s3, v1")
    a("s_and_b32 s41, s2, 7\ns_lshl_b32 s41, s41, 2\ns_lshr_b32 s43, s2, 5\ns_add_u32 s41, s41, s43")
    a("s_bfe_u32 s42, s2, 0x20003")
    srd(16, 4194304); srd(4, 2048); srd(12, 256); srd(20, 4194304); srd(8, WS_SIZE); srd(24, 4194304); srd(28, 4194304)
    a("v_lshrrev_b32 v2, 4, v0")
    a("v_and_b32 v3, 15, v0")
    a("v_lshlrev_b32 v4, 1, v2")
    a("v_xor_b32 v4, v3, v4")
    a("v_lshlrev_b32 v4, 4, v4")
    a("v_lshl_add_u32 v5, v2, 13, v4")
    a("v_xor_b32 v6, 0x80, v5")
    a("v_xor_b32 v7, v3, v2")
    a("v_lshlrev_b32 v7, 4, v7")
    a("v_lshl_add_u32 v7, v2, 13, v7")
    a("s_lshl_b32 s44, s42, 7\ns_lshl_b32 s45, s3, 4\ns_add_u32 s44, s44, s45\ns_lshl_b32 s44, s44, 13")
    a("s_lshl_b32 s45, s41, 8\ns_add_u32 s44, s44, s45")
    a("s_lshl_b32 s46, s3, 12")
    a("v_lshlrev_b32 v8, 4, v0")
    a("v_mov_b32 v9, 0")
    a("s_lshl_b32 s47, s3, 10")
    a("s_waitcnt lgkmcnt(0)")
    ts(1)
    a("s_cmp_gt_u32 s3, 1")
    a("s_cbranch_scc1 .LW_nox")
    a("buffer_load_dwordx4 v[12:15], v8, s[4:7], s47 offen")
    a(".LW_nox:")
    a("s_cmp_lg_u32 s3, 2")
    a("s_cbranch_scc1 .LW_non0")
    a("s_cmp_lg_u32 s2, 0")
    a("s_cbranch_scc1 .LW_nogen")
    a("s_memrealtime s[48:49]")
    a("s_waitcnt lgkmcnt(0)")
    if cfg.dbgt:
        a("v_mov_b32 v10, s48")
        a("buffer_store_dword v10, v9, s[12:15], 0 offen offset:4 sc1")
    a("s_mul_i32 s48, s48, 0x9E3779B1")
    a("s_lshr_b32 s49, s48, 15\ns_xor_b32 s48, s48, s49")
    a("s_mul_i32 s48, s48, 0x85EBCA6B")
    a("s_lshr_b32 s49, s48, 13\ns_xor_b32 s48, s48, s49")
    a("s_max_u32 s48, s48, 1")
    a("v_mov_b32 v10, s48")
    a("s_mov_b64 exec, 1")
    a("buffer_store_dword v10, v9, s[12:15], 0 offen sc1")
    a("s_mov_b64 exec, -1")
    a(".LW_nogen:")
    a("buffer_load_dword v12, v9, s[12:15], 0 offen sc1")
    a(".LW_non0:")
    a("s_mov_b32 m0, s46")
    a("s_mov_b32 s45, s44")
    for i in range(4):
        a(f"buffer_load_dwordx4 v{5 if i < 2 else 6}, s[16:19], s45 offen {NT} lds")
        if i < 3:
            a("s_add_u32 m0, m0, 1024\ns_add_u32 s45, s45, 32768")
    ts(2)
    a("s_add_u32 s46, s46, 65536")
    a("s_cmp_gt_u32 s3, 2")
    a("s_cbranch_scc1 .LW_win")
    a("s_cmp_eq_u32 s3, 2")
    a("s_cbranch_scc1 .LW_samp")
    a("s_waitcnt vmcnt(4)")
    layernorm(12, 16, 20)
    a(f"s_mul_i32 s45, s3, {XNS}\ns_add_u32 s45, s45, {XN}")
    a("v_add_u32 v10, s45, v8")
    a("ds_write_b128 v10, v[16:19]")
    a("s_branch .LW_win")
    a(".LW_samp:")
    for k in range(1, cfg.nsamp):
        a(f"s_sleep {cfg.samp_sleep}")
        a(f"buffer_load_dword v{12+k}, v9, s[12:15], 0 offen sc1")
    a("s_mov_b32 m0, s46\ns_mov_b32 s45, s44")
    for i in range(4):
        if i: a(f"v_xor_b32 v10, {64*i}, v7")
        a(f"buffer_load_dwordx4 v{10 if i else 7}, s[20:23], s45 offen {NT} lds")
        if i < 3:
            a("s_add_u32 m0, m0, 1024\ns_add_u32 s45, s45, 32768")
    a("s_waitcnt vmcnt(4)")
    for k in range(1, cfg.nsamp):
        a(f"v_max_u32 v12, v12, v{12+k}")
    budget()
    a(".LW_nchk:")
    a("s_nop 0")
    a("v_readfirstlane_b32 s40, v12")
    a("s_cmp_lg_u32 s40, 0")
    a("s_cbranch_scc1 .LW_ngot")
    spend(".LW_ngot")
    a("buffer_load_dword v12, v9, s[12:15], 0 offen sc1")
    a("s_waitcnt vmcnt(0)")
    a("s_branch .LW_nchk")
    a(".LW_ngot:")
    a(f"v_mov_b32 v10, {NL}")
    a("ds_write_b32 v10, v12")
    a("s_branch .LW_b1")
    a(".LW_win:")
    a("s_mov_b32 m0, s46\ns_mov_b32 s45, s44")
    for i in range(4):
        if i: a(f"v_xor_b32 v10, {64*i}, v7")
        a("s_waitcnt vmcnt(3)")
        a(f"buffer_load_dwordx4 v{10 if i else 7}, s[20:23], s45 offen {NT} lds")
        if i < 3:
            a("s_add_u32 m0, m0, 1024\ns_add_u32 s45, s45, 32768")
    a(".LW_b1:")
    a("v_lshrrev_b32 v20, 2, v3")
    a("v_and_b32 v21, 1, v2")
    a("v_lshlrev_b32 v21, 3, v21")
    a("v_lshl_add_u32 v21, v20, 1, v21")
    a("v_bfe_u32 v22, v0, 1, 1")
    a("s_lshl_b32 s45, s3, 1")
    a("v_add_u32 v23, s45, v22")
    a("v_xor_b32 v23, v23, v21")
    a("v_lshlrev_b32 v23, 4, v23")
    a("v_lshl_add_u32 v24, v2, 3, v20")
    a("v_lshl_add_u32 v23, v24, 8, v23")
    a("v_and_b32 v25, 1, v0")
    a("v_lshl_add_u32 v11, v25, 3, v23")
    a(f"v_mul_u32_u24 v26, {XNS}, v25")
    a("v_lshl_add_u32 v26, v2, 4, v26")
    a(f"s_lshl_b32 s45, s42, 8\ns_add_u32 s45, s45, {XN}")
    a("v_add_u32 v26, s45, v26")
    a("s_waitcnt vmcnt(4) lgkmcnt(0)")
    ts(3)
    a("s_barrier")
    ts(4)
    a(f"v_mov_b32 v27, {NL}")
    a("ds_read_b32 v27, v27")
    for s in range(4):
        a(f"ds_read_b128 v[{32+4*s}:{35+4*s}], v26 offset:{64*s}")
        a(f"ds_read_b64_tr_b16 v[{48+4*s}:{49+4*s}], v11 offset:{(32*s)*256}")
        a(f"ds_read_b64_tr_b16 v[{50+4*s}:{51+4*s}], v11 offset:{(32*s+4)*256}")
    a("v_lshlrev_b32 v28, 9, v25")
    a("v_lshl_add_u32 v28, v2, 4, v28")
    a("s_lshl_b32 s50, s41, 2\ns_add_u32 s50, s50, s42")
    a(f"s_lshl_b32 s45, s50, 10\ns_lshl_b32 s47, s3, 6\ns_add_u32 s45, s45, s47")
    if WS_H1: a(f"s_add_u32 s45, s45, {WS_H1}")
    a("v_lshlrev_b32 v29, 3, v2")
    a("s_waitcnt lgkmcnt(9)")
    a("v_mfma_f32_16x16x32_bf16 v[64:67], v[48:51], v[32:35], 0")
    a("v_readfirstlane_b32 s40, v27")
    a("v_lshrrev_b32 v29, v29, v27")
    a("s_waitcnt lgkmcnt(6)")
    a("v_mfma_f32_16x16x32_bf16 v[64:67], v[52:55], v[36:39], v[64:67]")
    a("v_lshrrev_b32 v30, 2, v29")
    a("s_waitcnt lgkmcnt(3)")
    a("v_mfma_f32_16x16x32_bf16 v[64:67], v[56:59], v[40:43], v[64:67]")
    a("v_lshrrev_b32 v31, 4, v29")
    a("s_waitcnt lgkmcnt(0)")
    a("v_mfma_f32_16x16x32_bf16 v[64:67], v[60:63], v[44:47], v[64:67]")
    a("v_lshrrev_b32 v27, 6, v29")
    a("s_mov_b32 exec_lo, 0x00030003\ns_mov_b32 exec_hi, 0x00030003")
    a("s_nop 4")
    a("v_bfi_b32 v64, 3, v29, v64\nv_bfi_b32 v65, 3, v30, v65\nv_bfi_b32 v66, 3, v31, v66\nv_bfi_b32 v67, 3, v27, v67")
    a("buffer_store_dwordx4 v[64:67], v28, s[8:11], s45 offen sc1")
    a("s_mov_b64 exec, -1")
    ts(5)
    a("v_xor_b32 v20, v2, v3")
    a("v_lshlrev_b32 v20, 4, v20")
    a("v_lshl_add_u32 v20, v3, 8, v20")
    a("s_lshl_b32 s45, s3, 12\ns_add_u32 s45, s45, 65536")
    a("v_add_u32 v20, s45, v20")
    a("s_cmp_lg_u32 s3, 0")
    a("s_cbranch_scc1 .LW_h1w")
    a("v_and_b32 v21, 3, v0\nv_lshlrev_b32 v21, 3, v21")
    a("v_mov_b32 v22, s40")
    a("v_lshrrev_b32 v22, v21, v22")
    a("v_lshrrev_b32 v23, 2, v22\nv_lshrrev_b32 v24, 4, v22\nv_lshrrev_b32 v21, 6, v22")
    a(f"s_lshl_b32 s45, s41, 12")
    if WS_H1: a(f"s_add_u32 s45, s45, {WS_H1}")
    budget()
    a(".LW_h1p:")
    spend(".LW_h1g")
    for i in range(4):
        a(f"buffer_load_dwordx4 v[{32+4*i}:{35+4*i}], v8, s[8:11], s45 offen offset:{1024*i} sc1")
    a("s_waitcnt vmcnt(3)")
    a("v_xor_b32 v48, v32, v22")
    a("v_bitop3_b32 v48, v48, v33, v23 bitop3:0xf6\nv_bitop3_b32 v48, v48, v34, v24 bitop3:0xf6\nv_bitop3_b32 v48, v48, v35, v21 bitop3:0xf6")
    for i in range(1, 4):
        a(f"s_waitcnt vmcnt({3-i})")
        for k, e in enumerate((22, 23, 24, 21)):
            a(f"v_bitop3_b32 v48, v48, v{32+4*i+k}, v{e} bitop3:0xf6")
        for k in range(4):
            a(f"v_add_f32 v{32+k}, v{32+k}, v{32+4*i+k}")
    a("v_and_b32 v48, 3, v48")
    a("v_cmp_ne_u32 vcc, 0, v48")
    a("s_cbranch_vccnz .LW_h1p")
    a(".LW_h1g:")
    a("v_cvt_pk_bf16_f32 v32, v32, v33\nv_cvt_pk_bf16_f32 v33, v34, v35")
    a("v_lshrrev_b32 v34, 5, v0\nv_mul_u32_u24 v34, 272, v34\nv_and_b32 v35, 31, v0\nv_lshl_add_u32 v34, v35, 3, v34")
    a(f"ds_write_b64 v34, v[32:33] offset:{QV}")
    a(".LW_h1w:")
    a("s_waitcnt vmcnt(0)")
    for s in range(4):
        if s: a(f"v_xor_b32 v21, {64*s}, v20")
        a(f"ds_read_b128 v[{48+4*s}:{51+4*s}], v{21 if s else 20}")
    a("v_mul_u32_u24 v26, 272, v25")
    a("v_lshl_add_u32 v26, v2, 4, v26")
    a("s_waitcnt lgkmcnt(0)")
    ts(6)
    a("s_barrier")
    for s in range(4):
        a(f"ds_read_b128 v[{32+4*s}:{35+4*s}], v26 offset:{QV+64*s}")
    a("v_lshlrev_b32 v27, 8, v25")
    a("v_lshl_add_u32 v27, v2, 3, v27")
    a("s_lshl_b32 s45, s3, 5")
    a("v_add_u32 v27, s45, v27")
    a(f"s_mov_b32 s47, {hex(f2u(QSCALE))}")
    for s in range(4):
        a(f"s_waitcnt lgkmcnt({3-s})")
        a(f"v_mfma_f32_16x16x32_bf16 v[64:67], v[{48+4*s}:{51+4*s}], v[{32+4*s}:{35+4*s}], {'0' if s == 0 else 'v[64:67]'}")
    a("s_mov_b32 exec_lo, 0x00030003\ns_mov_b32 exec_hi, 0x00030003")
    a("s_nop 5")
    for k in range(4): a(f"v_mul_f32 v{64+k}, s47, v{64+k}")
    a("v_cvt_pk_bf16_f32 v64, v64, v65\nv_cvt_pk_bf16_f32 v65, v66, v67")
    a(f"ds_write_b64 v27, v[64:65] offset:{QS}")
    a("s_mov_b64 exec, -1")
    a("s_waitcnt lgkmcnt(0)")
    a("s_barrier")
    a("s_cmp_lg_u32 s3, 0")
    a("s_cbranch_scc1 .LW_go")
    a(f"ds_read_b128 v[32:35], v8 offset:{QS}")
    a("v_lshlrev_b32 v36, 15, v2\nv_lshl_add_u32 v36, v3, 4, v36")
    a(f"s_lshl_b32 s45, s41, 10\ns_lshl_b32 s47, s42, 8\ns_add_u32 s45, s45, s47\ns_add_u32 s45, s45, {WS_Q}")
    a("s_mov_b32 exec_hi, 0")
    a("s_waitcnt lgkmcnt(0)")
    a("buffer_store_dwordx4 v[32:35], v36, s[8:11], s45 offen sc1")
    a(f"s_lshl_b32 s45, s50, 7\ns_add_u32 s45, s45, {WS_QF}")
    a("v_mov_b32 v37, s40")
    a("s_mov_b32 exec_lo, 1")
    a("s_waitcnt vmcnt(0)")
    a("buffer_store_dword v37, v9, s[8:11], s45 offen sc1")
    ts(7)
    a(f"s_lshl_b32 s45, s2, 7\ns_add_u32 s45, s45, {WS_GO}")
    budget()
    a(".LW_gop:")
    spend(".LW_gog")
    a("buffer_load_dword v37, v9, s[8:11], s45 offen sc1")
    a("s_waitcnt vmcnt(0)")
    a("v_readfirstlane_b32 s47, v37")
    a("s_cmp_eq_u32 s47, s40")
    a("s_cbranch_scc1 .LW_gog")
    psleep()
    a("s_branch .LW_gop")
    a(".LW_gog:")
    a("s_mov_b64 exec, -1")
    a(".LW_go:")
    a("v_and_b32 v20, 1, v2\nv_lshlrev_b32 v20, 5, v20\nv_lshrrev_b32 v21, 1, v2\nv_add_u32 v20, v20, v21")
    a("v_lshl_add_u32 v20, v20, 13, v4")
    a("v_xor_b32 v21, 0x80, v20")
    a("s_lshl_b32 s44, s42, 7\ns_lshr_b32 s45, s3, 2\ns_lshl_b32 s45, s45, 6\ns_add_u32 s44, s44, s45")
    a("s_and_b32 s45, s3, 3\ns_lshl_b32 s45, s45, 3\ns_add_u32 s44, s44, s45\ns_lshl_b32 s44, s44, 13")
    a("s_lshl_b32 s45, s41, 8\ns_add_u32 s44, s44, s45")
    a("s_lshl_b32 s46, s3, 12\ns_add_u32 s46, s46, 131072")
    a("s_barrier")
    ts(8)
    a("s_mov_b32 m0, s46")
    for i in range(4):
        if i == 0: a("s_nop 0")
        a(f"buffer_load_dwordx4 v{20 if i < 2 else 21}, s[24:27], s44 offen {NT} lds")
        if i < 3:
            a("s_add_u32 m0, m0, 1024\ns_add_u32 s44, s44, 16384")
    a("s_lshl_b32 s46, s3, 14")
    a("s_lshl_b32 s44, s41, 17\ns_add_u32 s44, s44, s46")
    a("s_mov_b32 m0, s46")
    for i in range(16):
        f1 = 2 * ((i & 3) + 4 * ((i >> 3) & 1))
        if i % 4 == 0 and i:
            a("s_add_u32 m0, m0, 4096\ns_add_u32 s44, s44, 4096")
        a(f"v_xor_b32 v22, {16*f1}, v8")
        a(f"buffer_load_dwordx4 v22, s[28:31], s44 offen offset:{1024*(i&3)} {cfg.nt_wo} lds")
    a("v_lshrrev_b32 v20, 2, v3")
    a("v_and_b32 v21, 1, v2\nv_lshlrev_b32 v21, 3, v21\nv_lshl_add_u32 v21, v20, 1, v21")
    a("v_bfe_u32 v22, v0, 1, 1")
    a("s_lshl_b32 s45, s3, 3")
    a("v_add_u32 v23, s45, v22")
    a("v_xor_b32 v23, v23, v21\nv_lshlrev_b32 v23, 4, v23")
    a("v_lshl_add_u32 v24, v2, 3, v20")
    a("v_lshl_add_u32 v23, v24, 10, v23")
    a("v_lshl_add_u32 v12, v25, 3, v23")
    a("v_xor_b32 v13, 32, v12\nv_xor_b32 v14, 64, v12\nv_xor_b32 v15, 96, v12")
    for k in range(4): a(f"v_add_u32 v{16+k}, 0x10000, v{12+k}")
    a("v_add_u32 v20, 0x20000, v11")
    a("s_waitcnt vmcnt(0)")
    ts(9)
    a("s_barrier")
    cnt = 0
    for s in range(4):
        a(f"ds_read_b64_tr_b16 v[{96+4*s}:{97+4*s}], v20 offset:{(32*s)*256}")
        a(f"ds_read_b64_tr_b16 v[{98+4*s}:{99+4*s}], v20 offset:{(32*s+4)*256}")
    for jb in range(4):
        for s in range(4):
            base = (12 if s < 2 else 16) + jb
            r = 112 + 4 * (jb * 4 + s)
            a(f"ds_read_b64_tr_b16 v[{r}:{r+1}], v{base} offset:{(32*(s&1))*1024}")
            a(f"ds_read_b64_tr_b16 v[{r+2}:{r+3}], v{base} offset:{(32*(s&1)+4)*1024}")
    SC = 32768; XX = SC + 512; YY = XX + 576; FL = YY + 576
    a("v_lshl_add_u32 v12, v2, 8, v4")
    a("v_xor_b32 v13, 0x80, v12")
    a(f"s_lshl_b32 s44, s50, 15\ns_lshl_b32 s46, s3, 12\ns_add_u32 s44, s44, s46\ns_add_u32 s44, s44, {WS_O}")
    a("s_and_b32 s45, s3, 1\ns_lshl_b32 s45, s45, 4")
    a("v_add_u32 v14, s45, v3")
    a("v_mov_b32 v15, s40")
    a("v_lshrrev_b32 v14, v14, v15")
    a("v_and_b32 v14, 1, v14")
    a("v_mul_u32_u24 v14, 0x10001, v14")
    a("v_lshrrev_b32 v16, 1, v3\nv_lshlrev_b32 v16, 6, v16\nv_lshl_add_u32 v16, v25, 11, v16\nv_lshl_add_u32 v16, v2, 4, v16")
    a(f"s_lshl_b32 s51, s2, 12\ns_lshl_b32 s45, s3, 8\ns_add_u32 s51, s51, s45\ns_add_u32 s51, s51, {WS_S}")
    a("v_lshlrev_b32 v17, 3, v2\nv_lshrrev_b32 v17, v17, v15")
    a("v_lshrrev_b32 v18, 2, v17\nv_lshrrev_b32 v19, 4, v17\nv_lshrrev_b32 v20, 6, v17")
    a("v_mul_u32_u24 v21, 272, v25\nv_lshl_add_u32 v21, v2, 3, v21\ns_lshl_b32 s45, s3, 5\nv_add_u32 v21, s45, v21")
    a("v_lshlrev_b32 v22, 4, v2")
    a("s_lshl_b32 s45, s3, 2\nv_mov_b32 v23, s45")
    a("s_mov_b32 s52, 0xaaaaaaaa\ns_mov_b32 s53, 0xaaaaaaaa")
    a("s_mov_b32 s54, 0xcccccccc\ns_mov_b32 s55, 0xcccccccc")
    a("s_mov_b32 s56, 0xf0f0f0f0\ns_mov_b32 s57, 0xf0f0f0f0")
    a("s_cmp_lg_u32 s3, 0")
    a("s_cbranch_scc1 .LW_mlw")
    a("v_lshlrev_b32 v24, 11, v0")
    a(f"s_lshl_b32 s45, s42, 9\ns_lshl_b32 s47, s41, 4\ns_add_u32 s45, s45, s47\ns_add_u32 s45, s45, {WS_ML}\ns_add_u32 s47, s45, {64*2048}")
    budget()
    a(".LW_mlp:")
    spend(".LW_mlw")
    a("buffer_load_dwordx4 v[32:35], v24, s[8:11], s45 offen sc1")
    a("buffer_load_dwordx4 v[36:39], v24, s[8:11], s47 offen sc1")
    a("s_waitcnt vmcnt(0)")
    a("v_cmp_ne_u32 vcc, s40, v34")
    a("v_cmp_ne_u32 s[58:59], s40, v38")
    a("s_or_b64 vcc, vcc, s[58:59]")
    a("s_cbranch_vccz .LW_mlw")
    psleep()
    a("s_branch .LW_mlp")
    a(".LW_mlw:")
    a("s_waitcnt lgkmcnt(0)")
    budget()
    a(".LW_retry:")
    a("s_barrier")
    ts(10)
    a("s_mov_b32 m0, s46")
    for i in range(4):
        if i == 0: a("s_nop 0")
        a(f"buffer_load_dwordx4 v{12 if i < 2 else 13}, s[8:11], s44 offen offset:{1024*i} sc1 lds")
    a("s_cmp_lg_u32 s3, 0")
    a("s_cbranch_scc1 .LW_scw")
    a("v_mov_b32 v40, v32\nv_mov_b32 v41, v36")
    allreduce16(40, 42, "v_max_f32")
    allreduce16(41, 42, "v_max_f32")
    a("v_sub_f32 v40, v32, v40\nv_sub_f32 v41, v36, v41")
    a("v_exp_f32 v40, v40\nv_exp_f32 v41, v41")
    a("s_nop 0")
    a("v_mul_f32 v43, v40, v33\nv_mul_f32 v44, v41, v37")
    allreduce16(43, 42, "v_add_f32")
    allreduce16(44, 42, "v_add_f32")
    a("v_rcp_f32 v43, v43\nv_rcp_f32 v44, v44")
    a("s_nop 0")
    a("v_mul_f32 v40, v40, v43\nv_mul_f32 v41, v41, v44")
    a("v_cvt_pk_bf16_f32 v40, v40, v41")
    a("v_lshlrev_b32 v42, 1, v0")
    a(f"ds_write_b16 v42, v40 offset:{SC}")
    a(f"ds_write_b16_d16_hi v42, v40 offset:{SC+128}")
    a(".LW_scw:")
    a("s_waitcnt vmcnt(0) lgkmcnt(0)")
    ts(11)
    a("s_barrier")
    for s in range(4):
        a(f"ds_read_b128 v[{48+4*s}:{51+4*s}], v22 offset:{SC+64*s}")
        a(f"ds_read_b64_tr_b16 v[{64+4*s}:{65+4*s}], v11 offset:{(32*s)*256}")
        a(f"ds_read_b64_tr_b16 v[{66+4*s}:{67+4*s}], v11 offset:{(32*s+4)*256}")
    a("s_waitcnt lgkmcnt(9)")
    a("v_mfma_f32_16x16x32_bf16 v[80:83], v[64:67], v[48:51], 0")
    a("v_xor_b32 v27, v64, v14")
    for k in (65, 66, 67): a(f"v_bitop3_b32 v27, v27, v{k}, v14 bitop3:0xf6")
    a("s_waitcnt lgkmcnt(6)")
    a("v_mfma_f32_16x16x32_bf16 v[80:83], v[68:71], v[52:55], v[80:83]")
    for k in range(68, 72): a(f"v_bitop3_b32 v27, v27, v{k}, v14 bitop3:0xf6")
    a("s_waitcnt lgkmcnt(3)")
    a("v_mfma_f32_16x16x32_bf16 v[84:87], v[72:75], v[56:59], 0")
    for k in range(72, 76): a(f"v_bitop3_b32 v27, v27, v{k}, v14 bitop3:0xf6")
    a("s_waitcnt lgkmcnt(0)")
    a("v_mfma_f32_16x16x32_bf16 v[84:87], v[76:79], v[60:63], v[84:87]")
    for k in range(76, 80): a(f"v_bitop3_b32 v27, v27, v{k}, v14 bitop3:0xf6")
    a("v_and_b32 v27, 0x10001, v27")
    a("v_cmp_ne_u32 vcc, 0, v27")
    a("s_or_b32 s45, vcc_lo, vcc_hi")
    a("v_mov_b32 v27, s45")
    a("s_mov_b32 exec_lo, 0x00030003\ns_mov_b32 exec_hi, 0x00030003")
    for k in range(4): a(f"v_cndmask_b32 v{80+k}, v{80+k}, v{84+k}, s[52:53]")
    a("v_cvt_pk_bf16_f32 v80, v80, v81\nv_cvt_pk_bf16_f32 v81, v82, v83")
    a(f"ds_write_b64 v21, v[80:81] offset:{XX}")
    a(f"ds_write_b32 v23, v27 offset:{FL}")
    a("s_mov_b64 exec, -1")
    a("s_waitcnt lgkmcnt(0)")
    a("s_barrier")
    for s in range(4):
        a(f"ds_read_b128 v[{48+4*s}:{51+4*s}], v26 offset:{XX+64*s}")
    a(f"ds_read_b128 v[64:67], v9 offset:{FL}")
    a(f"ds_read_b128 v[68:71], v9 offset:{FL+16}")
    for s in range(4):
        a(f"s_waitcnt lgkmcnt({5-s})")
        a(f"v_mfma_f32_16x16x32_bf16 v[80:83], v[{96+4*s}:{99+4*s}], v[{48+4*s}:{51+4*s}], {'0' if s == 0 else 'v[80:83]'}")
    a("s_waitcnt lgkmcnt(0)")
    a("v_or3_b32 v64, v64, v65, v66\nv_or3_b32 v64, v64, v67, v68\nv_or3_b32 v64, v64, v69, v70\nv_or_b32 v64, v64, v71")
    a("s_mov_b32 exec_lo, 0x00030003\ns_mov_b32 exec_hi, 0x00030003")
    a("v_readfirstlane_b32 s45, v64")
    a("v_cvt_pk_bf16_f32 v80, v80, v81\nv_cvt_pk_bf16_f32 v81, v82, v83")
    a(f"ds_write_b64 v21, v[80:81] offset:{YY}")
    a("s_mov_b64 exec, -1")
    a("s_waitcnt lgkmcnt(0)")
    a("s_cmp_eq_u32 s45, 0")
    a("s_cbranch_scc1 .LW_rok")
    a("s_sub_u32 s96, s96, 1")
    a("s_cbranch_scc0 .LW_retry")
    a(".LW_rok:")
    a("s_barrier")
    for s in range(4):
        a(f"ds_read_b128 v[{48+4*s}:{51+4*s}], v26 offset:{YY+64*s}")
    for s in range(4):
        a(f"s_waitcnt lgkmcnt({3-s})")
        for jb in range(4):
            r = 112 + 4 * (jb * 4 + s)
            a(f"v_mfma_f32_16x16x32_bf16 v[{64+4*jb}:{67+4*jb}], v[{r}:{r+3}], v[{48+4*s}:{51+4*s}], {'0' if s == 0 else f'v[{64+4*jb}:{67+4*jb}]'}")
    a("s_mov_b32 exec_lo, 0x00ff00ff\ns_mov_b32 exec_hi, 0x00ff00ff")
    a("s_nop 3")
    for k in range(4): a(f"v_cndmask_b32 v{64+k}, v{64+k}, v{68+k}, s[54:55]")
    for k in range(4): a(f"v_cndmask_b32 v{72+k}, v{72+k}, v{76+k}, s[54:55]")
    for k in range(4): a(f"v_cndmask_b32 v{64+k}, v{64+k}, v{72+k}, s[56:57]")
    for k in range(4): a(f"v_bfi_b32 v{64+k}, 3, v{17+k}, v{64+k}")
    a("buffer_store_dwordx4 v[64:67], v16, s[8:11], s51 offen sc1")
    ts(12)
    if cfg.ts:
        a("s_waitcnt vmcnt(0)")
        ts(13)
    ts_flush()
    a("s_endpgm")

    QR = 131072
    MX = QR; LS = QR + 512; NLA = QR + 1024 - 16; PX = QR + 1024
    FXN = QR + 16384; FG = FXN + 2304; FH = FG + 8192
    a(".L_A:")
    a("s_cmp_ge_u32 s2, 256")
    a("s_cbranch_scc1 .L_end")
    a("s_load_dwordx2 s[16:17], s[0:1], 8")
    a("s_load_dwordx2 s[12:13], s[0:1], 88")
    a("s_load_dwordx2 s[8:9], s[0:1], 96")
    a("s_load_dwordx2 s[4:5], s[0:1], 0")
    a("s_load_dwordx2 s[20:21], s[0:1], 56")
    a("s_load_dwordx2 s[24:25], s[0:1], 64")
    a("s_load_dwordx2 s[28:29], s[0:1], 72")
    a("v_lshrrev_b32 v1, 6, v0")
    a("v_and_b32 v0, 63, v0")
    a("v_readfirstlane_b32 s3, v1")
    a("s_sub_u32 s43, s2, 128")
    a("s_bfe_u32 s41, s43, 0x10002")
    a("s_lshr_b32 s42, s43, 3\ns_lshl_b32 s42, s42, 2\ns_and_b32 s44, s43, 3\ns_add_u32 s42, s42, s44")
    a("s_lshl_b32 s44, s41, 6\ns_add_u32 s42, s42, s44")
    srd(16, 16777216); srd(12, 256); srd(8, WS_SIZE); srd(4, 2048); srd(20, 1409024); srd(24, 1409024); srd(28, 1409024)
    a("v_lshlrev_b32 v8, 4, v0")
    a("v_mov_b32 v9, 0")
    a("s_cmp_lt_u32 s3, 4")
    a("s_cbranch_scc1 .LA_comp")
    a("s_sub_u32 s47, s3, 4")
    a("s_lshl_b32 s46, s47, 15")
    a("s_lshl_b32 s44, s42, 17\ns_add_u32 s44, s44, s46")
    a("s_mov_b32 m0, s46")
    a("s_waitcnt lgkmcnt(0)")
    ts(1)
    a("s_lshl_b32 s45, s47, 10")
    a("buffer_load_dwordx4 v[12:15], v8, s[4:7], s45 offen")
    def crow(i):
        f = ((i & 3) << 2) | ((i >> 2) & 3)
        if i % 4 == 0 and i:
            a("s_add_u32 m0, m0, 4096\ns_add_u32 s44, s44, 4096")
        a(f"v_xor_b32 v10, {16*f}, v8")
        a(f"buffer_load_dwordx4 v10, s[16:19], s44 offen offset:{1024*(i&3)} {NT} lds")
    for i in range(cfg.npre): crow(i)
    a("s_barrier")
    ts(2)
    for i in range(cfg.npre, 32):
        if cfg.cwin and i >= cfg.cwin: a(f"s_waitcnt vmcnt({cfg.cwin-1})")
        crow(i)
    ts(3)
    a(f"v_mov_b32 v10, {NLA}")
    a("ds_read_b32 v11, v10")
    a(f"s_lshl_b32 s45, s43, 7\ns_add_u32 s45, s45, {WS_GO}")
    a("s_cmp_lg_u32 s3, 4")
    a("s_cbranch_scc1 .LH_nogo")
    a(f"s_waitcnt vmcnt({cfg.go_cnt}) lgkmcnt(0)")
    a("s_mov_b64 exec, 1")
    a("buffer_store_dword v11, v9, s[8:11], s45 offen sc1")
    a("s_mov_b64 exec, -1")
    a(".LH_nogo:")
    a("s_waitcnt lgkmcnt(0)")
    a("v_readfirstlane_b32 s40, v11")
    a("s_cmp_lt_u32 s43, 43")
    a("s_cbranch_scc1 .LH_F")
    a("s_waitcnt vmcnt(0)")
    ts(4)
    a("s_barrier\ns_barrier\ns_barrier\ns_barrier")
    ts_flush()
    a("s_endpgm")
    a(".LH_F:")
    a("s_waitcnt vmcnt(32)")
    layernorm(12, 16, 20)
    a("v_lshrrev_b32 v2, 4, v0\nv_and_b32 v3, 15, v0\nv_and_b32 v25, 1, v0")
    a("v_lshrrev_b32 v4, 2, v3\nv_lshlrev_b32 v4, 5, v4\nv_lshl_add_u32 v4, v2, 3, v4\nv_mul_u32_u24 v4, 2752, v4")
    a("v_and_b32 v5, 3, v3\nv_lshl_add_u32 v4, v5, 4, v4")
    a(f"s_mul_i32 s44, s47, {128*2752}\ns_lshl_b32 s45, s43, 6\ns_add_u32 s44, s44, s45")
    a("v_lshlrev_b32 v5, 13, v2\nv_lshl_add_u32 v5, v3, 4, v5")
    a("s_lshl_b32 s46, s43, 15\ns_lshl_b32 s45, s47, 8\ns_add_u32 s46, s46, s45")
    a("s_waitcnt vmcnt(0)")
    ts(4)
    a("s_barrier")
    for m, srdn in ((0, 20), (1, 24)):
        a("s_mov_b32 s45, s44")
        for i in range(8):
            r = 32 + 32 * m + 4 * i
            a(f"buffer_load_dwordx4 v[{r}:{r+3}], v4, s[{srdn}:{srdn+3}], s45 offen {NT}")
            if i < 7: a("s_add_u32 s45, s45, 2752")
    a("s_barrier\ns_barrier\ns_barrier")
    for i in range(8):
        r = 96 + 4 * i
        if i == 4: a("s_add_u32 s46, s46, 4096")
        a(f"buffer_load_dwordx4 v[{r}:{r+3}], v5, s[28:31], s46 offen offset:{1024*(i&3)} {NT}")
    a("s_cmp_gt_u32 s47, 1")
    a("s_cbranch_scc1 .LF_noxn")
    a(f"s_mul_i32 s45, s47, {XNS}\ns_add_u32 s45, s45, {FXN}")
    a("v_add_u32 v10, s45, v8")
    a("ds_write_b128 v10, v[16:19]")
    a(".LF_noxn:")
    a(f"v_mul_u32_u24 v6, {XNS}, v25\nv_bfe_u32 v7, v3, 1, 2\nv_lshl_add_u32 v6, v7, 6, v6\nv_lshl_add_u32 v6, v2, 4, v6")
    a(f"s_lshl_b32 s45, s47, 8\ns_add_u32 s45, s45, {FXN}\nv_add_u32 v6, s45, v6")
    a("s_mov_b32 s52, 0x05040100\ns_mov_b32 s53, 0x07060302")
    def transpose8(src, dst):
        for j in range(8):
            for e in range(4):
                a(f"v_perm_b32 v{dst+4*j+e}, v{src+4*(2*e+1)+(j>>1)}, v{src+4*(2*e)+(j>>1)}, s{52+(j&1)}")
    a("s_waitcnt vmcnt(16)")
    transpose8(32, 128)
    a("s_waitcnt vmcnt(8)")
    transpose8(64, 160)
    a("s_waitcnt lgkmcnt(0)")
    a("s_barrier")
    ts(5)
    a("ds_read_b128 v[20:23], v6")
    a("v_lshlrev_b32 v7, 9, v2\nv_lshl_add_u32 v7, v25, 8, v7")
    a(f"s_lshl_b32 s45, s47, 11\ns_add_u32 s45, s45, {FG}\nv_add_u32 v7, s45, v7")
    a("s_waitcnt lgkmcnt(0)")
    for j in range(16):
        a(f"v_mfma_f32_16x16x32_bf16 v[{32+4*j}:{35+4*j}], v[{128+4*j}:{131+4*j}], v[20:23], 0")
    a("s_mov_b32 exec_lo, 0x000c0003\ns_mov_b32 exec_hi, 0x00c00030")
    a("s_nop 5")
    for j in range(16):
        a(f"ds_write_b128 v7, v[{32+4*j}:{35+4*j}] offset:{16*j}")
    a("s_mov_b64 exec, -1")
    a("s_waitcnt vmcnt(0)")
    transpose8(96, 128)
    a("s_waitcnt lgkmcnt(0)")
    a("s_barrier")
    a("s_cmp_lg_u32 s47, 0")
    a("s_cbranch_scc1 .LF_hw")
    a("v_lshrrev_b32 v10, 5, v0\nv_lshlrev_b32 v10, 8, v10\nv_and_b32 v11, 31, v0\nv_lshl_add_u32 v10, v11, 2, v10")
    a(f"v_add_u32 v10, {FG}, v10")
    for pt in range(16):
        if pt: a("v_add_u32 v10, 512, v10")
        if pt == 14: a("s_waitcnt lgkmcnt(12)")
        a(f"ds_read2_b32 v[{32+2*pt}:{33+2*pt}], v10 offset0:0 offset1:32")
    for pt in range(1, 16):
        a(f"s_waitcnt lgkmcnt({min(15, 15-pt)})")
        a(f"v_add_f32 v32, v32, v{32+2*pt}\nv_add_f32 v33, v33, v{33+2*pt}")
    a("v_cvt_pk_bf16_f32 v32, v32, v33")
    a("v_and_b32 v33, 0xffff0000, v32")
    a("v_lshlrev_b32 v32, 16, v32")
    a(f"v_mul_f32 v34, {hex(f2u(-LOG2E))}, v32")
    a("v_exp_f32 v34, v34")
    a("s_nop 0")
    a("v_add_f32 v34, 1.0, v34")
    a("v_rcp_f32 v34, v34")
    a("s_nop 0")
    a("v_mul_f32 v32, v32, v34")
    a("v_cvt_pk_bf16_f32 v32, v32, v32")
    a("v_lshlrev_b32 v32, 16, v32")
    a("v_mul_f32 v32, v32, v33")
    a("v_cvt_pk_bf16_f32 v32, v32, v32")
    a("v_and_b32 v33, 3, v11\nv_lshrrev_b32 v34, 2, v11\nv_lshl_add_u32 v33, v33, 3, v34")
    a("v_lshrrev_b32 v34, 5, v0\nv_lshlrev_b32 v34, 6, v34\nv_lshl_add_u32 v33, v33, 1, v34")
    a(f"v_add_u32 v33, {FH}, v33")
    a("ds_write_b16 v33, v32")
    a(".LF_hw:")
    a(f"v_lshlrev_b32 v10, 6, v25\nv_lshl_add_u32 v10, v2, 4, v10\nv_add_u32 v10, {FH}, v10")
    a("v_lshrrev_b32 v11, 1, v2\nv_lshlrev_b32 v11, 11, v11\nv_lshl_add_u32 v11, v3, 5, v11\nv_and_b32 v12, 1, v2\nv_lshl_add_u32 v11, v12, 4, v11")
    a("v_lshl_add_u32 v12, v25, 1, v12\nv_lshlrev_b32 v12, 3, v12\nv_mov_b32 v13, s40\nv_lshrrev_b32 v12, v12, v13")
    a("v_lshrrev_b32 v13, 2, v12\nv_lshrrev_b32 v14, 4, v12\nv_lshrrev_b32 v15, 6, v12")
    a(f"s_lshl_b32 s45, s43, 12\ns_lshl_b32 s46, s47, 9\ns_add_u32 s45, s45, s46\ns_add_u32 s45, s45, {WS_F}")
    a("s_mov_b32 s54, 0xffff0000\ns_mov_b32 s55, 0xffff0000")
    a("s_mov_b32 s56, 0\ns_mov_b32 s57, -1")
    a("s_waitcnt lgkmcnt(0)")
    a("s_barrier")
    a("ds_read_b128 v[20:23], v10")
    a("s_waitcnt lgkmcnt(0)")
    for j in range(8):
        a(f"v_mfma_f32_16x16x32_bf16 v[{32+4*j}:{35+4*j}], v[20:23], v[{128+4*j}:{131+4*j}], 0")
    a("s_nop 4")
    for k in range(4):
        a(f"v_cndmask_b32 v{64+k}, v{32+4*k}, v{32+4*(4+k)}, s[54:55]")
    for k in range(4):
        a(f"v_cndmask_b32 v{68+k}, v{33+4*k}, v{33+4*(4+k)}, s[54:55]")
    for k in range(4):
        a(f"v_cndmask_b32 v{64+k}, v{64+k}, v{68+k}, s[56:57]")
    for k in range(4):
        a(f"v_bfi_b32 v{64+k}, 3, v{12+k}, v{64+k}")
    a("buffer_store_dwordx4 v[64:67], v11, s[8:11], s45 offen sc1")
    ts(6)
    ts_flush()
    a("s_endpgm")

    a(".LA_comp:")
    a("s_load_dwordx2 s[32:33], s[0:1], 80")
    srd(32, 2048)
    a("s_waitcnt lgkmcnt(0)")
    ts(1)
    if cfg.prefetch:
        a("s_cmp_lg_u32 s3, 1")
        a("s_cbranch_scc1 .LA_nopf")
        a("s_getpc_b64 s[36:37]")
        a(".LA_pc:")
        a(f"s_sub_u32 s36, s36, .LA_pc-{K}\ns_subb_u32 s37, s37, 0")
        a(f"s_mov_b32 s38, .L_codeend-{K}\ns_mov_b32 s39, 0x20000")
        a("s_mov_b32 s45, 0")
        a(".LA_pfl:")
        a("buffer_load_dwordx4 v[12:15], v8, s[36:39], s45 offen")
        a("s_add_u32 s45, s45, 1024")
        a(f"s_cmp_lt_u32 s45, .L_codeend-{K}")
        a("s_cbranch_scc1 .LA_pfl")
        a(".LA_nopf:")
    a("s_cmp_lg_u32 s3, 0")
    a("s_cbranch_scc1 .LA_b0")
    budget()
    a(".LA_np:")
    spend(".LA_ng")
    a("buffer_load_dword v12, v9, s[12:15], 0 offen sc1")
    a("s_waitcnt vmcnt(0)")
    a("v_readfirstlane_b32 s40, v12")
    a("s_cmp_eq_u32 s40, 0")
    a("s_cbranch_scc1 .LA_np")
    a(".LA_ng:")
    a(f"v_mov_b32 v10, {NLA}")
    a("ds_write_b32 v10, v12")
    a("s_waitcnt lgkmcnt(0)")
    a(".LA_b0:")
    a("s_barrier")
    ts(2)
    a(f"v_mov_b32 v10, {NLA}")
    a("ds_read_b32 v11, v10")
    a("v_lshrrev_b32 v2, 5, v0")
    a("v_and_b32 v3, 31, v0")
    a("v_and_b32 v4, 3, v3\nv_lshlrev_b32 v4, 2, v4\nv_bfe_u32 v5, v3, 2, 2\nv_or_b32 v4, v4, v5")
    a("v_xor_b32 v4, v4, v2\nv_lshlrev_b32 v4, 4, v4\nv_lshl_add_u32 v4, v3, 10, v4")
    a("s_lshl_b32 s45, s3, 15")
    a("v_add_u32 v16, s45, v4")
    a(f"v_add_u32 v24, {QR}, v4")
    for k in range(1, 8):
        a(f"v_xor_b32 v{16+k}, {32*k}, v16\nv_xor_b32 v{24+k}, {32*k}, v24")
    a("v_bfe_u32 v4, v0, 2, 2")
    a("v_lshl_add_u32 v5, v2, 2, v4\nv_lshlrev_b32 v5, 10, v5\nv_lshl_add_u32 v5, v4, 6, v5")
    a("v_bfe_u32 v6, v0, 4, 1\nv_bfe_u32 v7, v0, 1, 1\nv_lshl_add_u32 v6, v6, 1, v7\nv_xor_b32 v6, v6, v2\nv_lshl_add_u32 v5, v6, 4, v5")
    a("v_and_b32 v6, 1, v0\nv_lshl_add_u32 v5, v6, 3, v5")
    a("s_lshl_b32 s45, s3, 8")
    a("v_add_u32 v32, s45, v5")
    for jj in range(4):
        for q in range(2):
            if jj or q: a(f"v_xor_b32 v{32+2*jj+q}, {64*jj + 32*q}, v32")
    for k in range(8): a(f"v_add_u32 v{40+k}, 0x10000, v{32+k}")
    a(f"s_lshl_b32 s45, s3, 7\ns_add_u32 s45, s45, {MX}")
    a("v_lshlrev_b32 v48, 2, v3")
    a(f"v_add_u32 v49, {MX}, v48")
    a("v_add_u32 v48, s45, v48")
    a(f"s_lshl_b32 s45, s3, 11\ns_add_u32 s45, s45, {PX}")
    a("v_add_u32 v50, s45, v8")
    a(f"v_add_u32 v51, {PX}, v8")
    a("v_lshlrev_b32 v52, 19, v2\nv_lshl_add_u32 v52, v3, 2, v52")
    a(f"s_lshl_b32 s44, s3, 15\ns_lshl_b32 s45, s42, 8\ns_add_u32 s44, s44, s45\ns_add_u32 s44, s44, {WS_O}")
    for r in range(16):
        a(f"s_add_u32 s{48+r}, s44, {((r & 3) + 8 * (r >> 2)) * 131072}")
    a("s_waitcnt lgkmcnt(0)")
    a("v_readfirstlane_b32 s40, v11")
    a("v_and_b32 v4, 15, v0\nv_lshlrev_b32 v4, 1, v4\nv_lshrrev_b32 v4, v4, v11\nv_and_b32 v5, 1, v4\nv_bfe_u32 v4, v4, 1, 1\nv_lshl_or_b32 v53, v4, 16, v5")
    a("v_lshlrev_b32 v54, 4, v3")
    a(f"s_lshl_b32 s46, s42, 11\ns_lshl_b32 s45, s3, 9\ns_add_u32 s46, s46, s45\ns_add_u32 s46, s46, {WS_ML}")
    a("v_lshlrev_b32 v4, 7, v3")
    a(f"s_lshl_b32 s45, s3, 12\ns_add_u32 s45, s45, {WS_QF}")
    budget()
    a(".LA_qp:")
    spend(".LA_qg")
    a("buffer_load_dword v5, v4, s[8:11], s45 offen sc1")
    a("s_waitcnt vmcnt(0)")
    a("v_cmp_ne_u32 vcc, s40, v5")
    a("s_cbranch_vccz .LA_qg")
    psleep()
    a("s_branch .LA_qp")
    a(".LA_qg:")
    ts(3)
    a(f"s_lshl_b32 s45, s3, 13\ns_add_u32 m0, s45, {QR}")
    a(f"s_lshl_b32 s47, s41, 15\ns_add_u32 s45, s45, s47\ns_add_u32 s45, s45, {WS_Q}")
    a("s_and_b32 s47, s3, 1\ns_lshl_b32 s47, s47, 5")
    a("v_xor_b32 v4, s47, v8")
    for i in range(8):
        if i == 4: a("s_add_u32 m0, m0, 4096\ns_add_u32 s45, s45, 4096")
        a(f"v_xor_b32 v5, {16*(((i&3)<<2) | (i>>2))}, v4")
        a(f"buffer_load_dwordx4 v5, s[8:11], s45 offen offset:{1024*(i&3)} sc1 lds")
    a("s_mov_b32 s47, 0x00010001")
    a("s_waitcnt vmcnt(0)")
    ts(4)
    a("s_barrier")
    ts(5)
    LA = 4
    def sread(s):
        r = 80 + 8 * (s % LA)
        a(f"ds_read_b128 v[{r}:{r+3}], v{16+(s&7)} offset:{256*(s>>3)}")
        a(f"ds_read_b128 v[{r+4}:{r+7}], v{24+(s&7)} offset:{256*(s>>3)}")
    for s in range(LA): sread(s)
    for s in range(32):
        r = 80 + 8 * (s % LA)
        outstanding = min(LA, 32 - s)
        a(f"s_waitcnt lgkmcnt({2*(outstanding-1)})")
        if s == 31: a("s_barrier")
        a(f"v_mfma_f32_32x32x16_bf16 v[64:79], v[{r}:{r+3}], v[{r+4}:{r+7}], {'0' if s == 0 else 'v[64:79]'}")
        if s + LA < 32: sread(s + LA)
    ts(6)
    a("s_nop 11" if not cfg.ts else "s_nop 10")
    a("v_max3_f32 v4, v64, v65, v66\nv_max3_f32 v5, v67, v68, v69\nv_max3_f32 v6, v70, v71, v72\nv_max3_f32 v7, v73, v74, v75")
    a("v_max3_f32 v4, v4, v76, v77\nv_max3_f32 v5, v5, v78, v79\nv_max3_f32 v4, v4, v6, v7\nv_max_f32 v4, v4, v5")
    a("v_mov_b32 v5, v4\ns_nop 1\nv_permlane32_swap_b32 v4, v5\nv_max_f32 v4, v4, v5")
    a("ds_write_b32 v48, v4")
    a("s_waitcnt lgkmcnt(0)")
    a("s_barrier")
    a("ds_read2_b32 v[4:5], v49 offset0:0 offset1:32")
    a("ds_read2_b32 v[6:7], v49 offset0:64 offset1:96")
    a("s_waitcnt lgkmcnt(0)")
    a("v_max3_f32 v4, v4, v5, v6\nv_max_f32 v56, v4, v7")
    for r in range(16): a(f"v_sub_f32 v{64+r}, v{64+r}, v56")
    for r in range(16): a(f"v_exp_f32 v{64+r}, v{64+r}")
    a("s_nop 0")
    for e in range(8): a(f"v_cvt_pk_bf16_f32 v{80+e}, v{64+2*e}, v{65+2*e}")
    a("ds_write_b128 v50, v[80:83]")
    a("ds_write_b128 v50, v[84:87] offset:1024")
    for e in range(8): a(f"v_add_f32 v{64+e}, v{64+e}, v{72+e}")
    for e in range(4): a(f"v_add_f32 v{64+e}, v{64+e}, v{68+e}")
    a("v_add_f32 v64, v64, v66\nv_add_f32 v65, v65, v67\nv_add_f32 v64, v64, v65")
    a("v_mov_b32 v65, v64\ns_nop 1\nv_permlane32_swap_b32 v64, v65\nv_add_f32 v64, v64, v65")
    a("ds_write_b32 v48, v64 offset:512")
    a("s_waitcnt lgkmcnt(0)")
    a("s_barrier")
    ts(7)
    for k in range(8):
        a(f"ds_read_b128 v[{64+4*k}:{67+4*k}], v51 offset:{1024*k}")
    seq = [(tp, k, jj) for tp in range(2) for k in range(8) for jj in (2*tp, 2*tp+1)]
    LB = 5
    def tread(n):
        tp, k, jj = seq[n]
        kb, t = k >> 1, k & 1
        r = 160 + 4 * (n % LB)
        base = (32 if kb < 2 else 40) + 2 * jj
        off = (32 * (kb & 1) + 16 * t) * 1024
        a(f"ds_read_b64_tr_b16 v[{r}:{r+1}], v{base} offset:{off}")
        a(f"ds_read_b64_tr_b16 v[{r+2}:{r+3}], v{base+1} offset:{off+8192}")
    a("s_waitcnt lgkmcnt(5)")
    for n in range(LB): tread(n)
    def epi(tp, r):
        a(f"v_cvt_pk_bf16_f32 v{184+(r&7)}, v{96+32*tp+r}, v{112+32*tp+r}")
        a(f"v_bfi_b32 v{184+(r&7)}, s47, v53, v{184+(r&7)}")
        a(f"buffer_store_dword v{184+(r&7)}, v52, s[8:11], s{48+r} offen offset:{128*tp} sc1")
    for n in range(32):
        tp, k, jj = seq[n]
        r = 160 + 4 * (n % LB)
        outstanding = min(LB, 32 - n)
        a(f"s_waitcnt lgkmcnt({2*(outstanding-1)})")
        acc = 96 + 16 * jj
        a(f"v_mfma_f32_32x32x16_bf16 v[{acc}:{acc+15}], v[{64+4*k}:{67+4*k}], v[{r}:{r+3}], {'0' if k == 0 else f'v[{acc}:{acc+15}]'}")
        if n + LB < 32: tread(n + LB)
        if n >= 20 and n - 20 < 12:
            epi(0, n - 20)
    for r in range(12, 16): epi(0, r)
    a("ds_read2_b32 v[4:5], v49 offset0:128 offset1:160")
    a("ds_read2_b32 v[6:7], v49 offset0:192 offset1:224")
    for r in range(16): epi(1, r)
    a("s_waitcnt lgkmcnt(0)")
    a("v_add_f32 v4, v4, v5\nv_add_f32 v6, v6, v7\nv_add_f32 v57, v4, v6")
    a("v_mov_b32 v58, s40\nv_mov_b32 v59, 0")
    a("s_mov_b32 exec_hi, 0")
    a("buffer_store_dwordx4 v[56:59], v54, s[8:11], s46 offen sc1")
    a("s_mov_b64 exec, -1")
    ts(8)
    a("s_cmp_lg_u32 s3, 0")
    a("s_cbranch_scc1 .LA_exit")
    a("s_cmp_lt_u32 s43, 96")
    a("s_cbranch_scc1 .LA_exit")
    a("s_sub_u32 s44, s43, 96")
    a("v_and_b32 v3, 7, v0\nv_lshrrev_b32 v2, 3, v0")
    a("v_lshlrev_b32 v4, 12, v2\nv_lshl_add_u32 v4, v3, 4, v4")
    a("v_and_b32 v5, 3, v0\nv_lshlrev_b32 v5, 3, v5\nv_mov_b32 v6, s40\nv_lshrrev_b32 v10, v5, v6")
    a("v_lshrrev_b32 v11, 2, v10\nv_lshrrev_b32 v12, 4, v10\nv_lshrrev_b32 v13, 6, v10")
    a("s_lshl_b32 s45, s44, 6")
    a("v_lshlrev_b32 v14, 3, v3")
    a("buffer_load_dwordx2 v[16:17], v14, s[4:7], s45 offen")
    a(f"s_lshl_b32 s46, s44, 7\ns_add_u32 s47, s46, {WS_F}\ns_add_u32 s46, s46, {WS_S}")
    def gather(n, sbase, lab, lastmask=None):
        budget()
        a(f"{lab}:")
        spend(f"{lab}_ok")
        a(f"s_mov_b32 s48, {sbase}")
        for i in range(n):
            if lastmask is not None and i == n - 1:
                for k in range(4): a(f"v_mov_b32 v{32+4*i+k}, v{10+k}")
                a(f"s_mov_b32 exec_lo, {lastmask}\ns_mov_b32 exec_hi, 0")
            a(f"buffer_load_dwordx4 v[{32+4*i}:{35+4*i}], v4, s[8:11], s48 offen sc1")
            if i < n - 1: a("s_add_u32 s48, s48, 32768")
        if lastmask is not None: a("s_mov_b64 exec, -1")
        for i in range(n):
            a(f"s_waitcnt vmcnt({n-1-i})")
            for k in range(4):
                if i == 0 and k == 0: a(f"v_xor_b32 v20, v32, v10")
                else: a(f"v_bitop3_b32 v20, v20, v{32+4*i+k}, v{10+k} bitop3:0xf6")
            if lastmask is not None and i == n - 1:
                a(f"s_mov_b32 exec_lo, {lastmask}\ns_mov_b32 exec_hi, 0")
            if i:
                for k in range(4): a(f"v_add_f32 v{32+k}, v{32+k}, v{32+4*i+k}")
            if lastmask is not None and i == n - 1: a("s_mov_b64 exec, -1")
        a("v_and_b32 v20, 3, v20")
        a("v_cmp_ne_u32 vcc, 0, v20")
        a(f"s_cbranch_vccz {lab}_ok")
        psleep()
        a(f"s_branch {lab}")
        a(f"{lab}_ok:")
        for k in range(4):
            a(f"v_add_f32_dpp v{32+k}, v{32+k}, v{32+k} row_ror:8 row_mask:0xf bank_mask:0xf")
        for sw in ("v_permlane16_swap_b32", "v_permlane32_swap_b32"):
            for k in range(4): a(f"v_mov_b32 v{36+k}, v{32+k}")
            a("s_nop 0")
            for k in range(4): a(f"{sw} v{32+k}, v{36+k}")
            for k in range(4): a(f"v_add_f32 v{32+k}, v{32+k}, v{36+k}")
    gather(6, "s47", ".LZ_f", lastmask=0x00ffffff)
    ts(9)
    a("v_cvt_pk_bf16_f32 v32, v32, v33\nv_cvt_pk_bf16_f32 v34, v34, v35")
    a("v_lshlrev_b32 v24, 16, v32\nv_and_b32 v25, 0xffff0000, v32\nv_lshlrev_b32 v26, 16, v34\nv_and_b32 v27, 0xffff0000, v34")
    for k in range(4): a(f"v_mul_f32 v{32+k}, {hex(f2u(-LOG2E))}, v{24+k}")
    for k in range(4): a(f"v_exp_f32 v{32+k}, v{32+k}")
    a("s_nop 0")
    for k in range(4): a(f"v_add_f32 v{32+k}, 1.0, v{32+k}")
    for k in range(4): a(f"v_rcp_f32 v{32+k}, v{32+k}")
    a("s_nop 0")
    for k in range(4): a(f"v_mul_f32 v{24+k}, v{24+k}, v{32+k}")
    a("v_cvt_pk_bf16_f32 v32, v24, v25\nv_cvt_pk_bf16_f32 v34, v26, v27")
    a("v_lshlrev_b32 v24, 16, v32\nv_and_b32 v25, 0xffff0000, v32\nv_lshlrev_b32 v26, 16, v34\nv_and_b32 v27, 0xffff0000, v34")
    a("v_lshlrev_b32 v28, 16, v16\nv_and_b32 v29, 0xffff0000, v16\nv_lshlrev_b32 v30, 16, v17\nv_and_b32 v31, 0xffff0000, v17")
    gather(16, "s46", ".LZ_s")
    ts(10)
    a("v_cvt_pk_bf16_f32 v32, v32, v33\nv_cvt_pk_bf16_f32 v34, v34, v35")
    a("v_and_b32 v33, 0xffff0000, v32\nv_lshlrev_b32 v32, 16, v32\nv_and_b32 v35, 0xffff0000, v34\nv_lshlrev_b32 v34, 16, v34")
    for k in range(4): a(f"v_mul_f32 v{32+k}, v{32+k}, v{24+k}")
    a("v_cvt_pk_bf16_f32 v32, v32, v33\nv_cvt_pk_bf16_f32 v34, v34, v35")
    a("v_and_b32 v33, 0xffff0000, v32\nv_lshlrev_b32 v32, 16, v32\nv_and_b32 v35, 0xffff0000, v34\nv_lshlrev_b32 v34, 16, v34")
    for k in range(4): a(f"v_add_f32 v{32+k}, v{32+k}, v{28+k}")
    a("v_cvt_pk_bf16_f32 v32, v32, v33\nv_cvt_pk_bf16_f32 v33, v34, v35")
    a("s_mov_b64 exec, 0xff")
    a("buffer_store_dwordx2 v[32:33], v14, s[32:35], s45 offen")
    if cfg.dbgt:
        a("s_memrealtime s[48:49]")
        a("s_waitcnt lgkmcnt(0)")
        a("v_mov_b32 v10, s48")
        a("s_lshl_b32 s45, s44, 2")
        a("buffer_store_dword v10, v9, s[12:15], s45 offen offset:8")
        if cfg.amp:
            a("buffer_load_dword v10, v9, s[12:15], 0 offen offset:4 sc1")
            a("s_waitcnt vmcnt(0)")
            a("v_readfirstlane_b32 s50, v10")
            a("s_sub_u32 s51, s48, s50")
            a("s_min_u32 s51, s51, 10000")
            a(f"s_mul_i32 s51, s51, {cfg.amp}")
            a("s_add_u32 s51, s51, s48")
            a(".LZ_amp:")
            a("s_memrealtime s[48:49]")
            a("s_waitcnt lgkmcnt(0)")
            a("s_sub_u32 s52, s48, s51")
            a("s_cmp_lt_i32 s52, 0")
            a("s_cbranch_scc1 .LZ_amp")
    ts(11)
    a(".LA_exit:")
    ts_flush()
    a(".L_end:")
    a("s_endpgm")
    a(".L_codeend:")
    body = a.text()
    return assemble([(K, 256, 512, 163840)], [(K, body, 256, 102, 256, "")]), body

if __name__ == "__main__":
    import argparse
    ap = argparse.ArgumentParser()
    ap.add_argument("-o", default="k.s")
    ap.add_argument("--set", action="append", default=[])
    args = ap.parse_args()
    for s in args.set:
        k, v = s.split("=")
        setattr(Cfg, k, eval(v))
    txt, body = gen(Cfg)
    open(args.o, "w").write(txt)
    for p in hazard.check(txt): print("HAZARD", p)
```

```python
import sys
from asmlib import *
import hazard

WS_H1 = 0x000000
WS_Q  = 0x080000
WS_QF = 0x0A0000
WS_GO = 0x0B0000
WS_ML = 0x100000
WS_S  = 0x200000
WS_F  = 0x300000
WS_G  = 0x380000
WS_O  = 0x400000
WS_TS = 0x1000000
WS_SIZE = 268435456
LOG2E = 1.4426950408889634
QSCALE = LOG2E * 128 ** -0.5
import struct
def f2u(x): return struct.unpack("<I", struct.pack("<f", x))[0]

class Cfg:
    ts = False
    npre = 2
    go_cnt = 8
    cwin = 0
    nsamp = 7
    samp_sleep = 3
    prefetch = True
    poll_sleep = 1
    nt = "nt"
    nt_wo = "nt"
    spin = 30000
    dbgt = False
    amp = 0
    wuk_wait = 3
    pf_wave = 1

def gen(cfg=Cfg):
    a = Asm()
    K = NAME + "_kernel"
    NT = cfg.nt
    tsn = [0]
    def ts(idx):
        if cfg.ts:
            a(f"s_memrealtime s[{64+2*idx}:{65+2*idx}]")
    def ts_flush(nmax=16):
        if not cfg.ts: return
        a("s_waitcnt lgkmcnt(0)")
        a("s_lshl_b32 s44, s2, 3\ns_add_u32 s44, s44, s3\ns_lshl_b32 s44, s44, 6")
        a(f"s_add_u32 s44, s44, {WS_TS}")
        a("s_mov_b64 exec, 1")
        a("v_mov_b32 v1, 0")
        for q in range(4):
            for k in range(4):
                a(f"v_mov_b32 v{4+k}, s{64+2*(4*q+k)}")
            a(f"buffer_store_dwordx4 v[4:7], v1, s[8:11], s44 offen offset:{16*q}")
            a("s_nop 1")
        a("s_waitcnt vmcnt(0)")
    def srd(base, size):
        a(f"s_mov_b32 s{base+2}, {size}\ns_mov_b32 s{base+3}, 0x20000")
    def allreduce16(v, t, op):
        for r in (8, 4, 2, 1):
            a("s_nop 1")
            a(f"{op}_dpp v{v}, v{v}, v{v} row_ror:{r} row_mask:0xf bank_mask:0xf")
        for sw in ("v_permlane16_swap_b32", "v_permlane32_swap_b32"):
            a(f"v_mov_b32 v{t}, v{v}")
            a("s_nop 1")
            a(f"{sw} v{v}, v{t}")
            a(f"{op} v{v}, v{v}, v{t}")
    def layernorm(vx, vo, vt):
        f = [vt + i for i in range(8)]
        s, t, u = vt + 8, vt + 9, vt + 10
        for i in range(4):
            a(f"v_lshlrev_b32 v{f[2*i]}, 16, v{vx+i}")
            a(f"v_and_b32 v{f[2*i+1]}, 0xffff0000, v{vx+i}")
        a(f"v_add_f32 v{s}, v{f[0]}, v{f[1]}")
        a(f"v_add_f32 v{t}, v{f[2]}, v{f[3]}")
        a(f"v_add_f32 v{u}, v{f[4]}, v{f[5]}")
        a(f"v_add_f32 v{s}, v{s}, v{f[6]}")
        a(f"v_add_f32 v{t}, v{t}, v{f[7]}")
        a(f"v_add_f32 v{s}, v{s}, v{u}")
        a(f"v_add_f32 v{s}, v{s}, v{t}")
        allreduce16(s, t, "v_add_f32")
        a(f"v_mul_f32 v{s}, {hex(f2u(1/512))}, v{s}")
        m2 = vt + 11
        a(f"v_sub_f32 v{t}, v{f[0]}, v{s}")
        a(f"v_mul_f32 v{m2}, v{t}, v{t}")
        for i in range(1, 8):
            a(f"v_sub_f32 v{t}, v{f[i]}, v{s}")
            a(f"v_fmac_f32 v{m2}, v{t}, v{t}")
        allreduce16(m2, t, "v_add_f32")
        a(f"v_mul_f32 v{m2}, {hex(f2u(1/512))}, v{m2}")
        a(f"v_cvt_pk_bf16_f32 v{t}, v{s}, v{m2}")
        a(f"v_lshlrev_b32 v{s}, 16, v{t}")
        a(f"v_and_b32 v{m2}, 0xffff0000, v{t}")
        a(f"v_add_f32 v{m2}, {hex(f2u(1e-5))}, v{m2}")
        a(f"v_cvt_pk_bf16_f32 v{m2}, v{m2}, v{m2}")
        a(f"v_and_b32 v{m2}, 0xffff0000, v{m2}")
        a(f"v_sqrt_f32 v{m2}, v{m2}")
        for i in range(8):
            a(f"v_sub_f32 v{f[i]}, v{f[i]}, v{s}")
        a(f"v_cvt_pk_bf16_f32 v{m2}, v{m2}, v{m2}")
        a(f"v_and_b32 v{m2}, 0xffff0000, v{m2}")
        a(f"v_rcp_f32 v{m2}, v{m2}")
        for i in range(4):
            a(f"v_cvt_pk_bf16_f32 v{vo+i}, v{f[2*i]}, v{f[2*i+1]}")
        for i in range(4):
            a(f"v_lshlrev_b32 v{f[2*i]}, 16, v{vo+i}")
            a(f"v_and_b32 v{f[2*i+1]}, 0xffff0000, v{vo+i}")
        for i in range(8):
            a(f"v_mul_f32 v{f[i]}, v{f[i]}, v{m2}")
        for i in range(4):
            a(f"v_cvt_pk_bf16_f32 v{vo+i}, v{f[2*i]}, v{f[2*i+1]}")
    def psleep():
        if cfg.poll_sleep: a(f"s_sleep {cfg.poll_sleep}")
    def budget():
        a(f"s_movk_i32 s96, {cfg.spin}")
    def spend(exit_label):
        a("s_sub_u32 s96, s96, 1")
        a(f"s_cbranch_scc1 {exit_label}")

    if cfg.ts:
        for i in range(1, 16): a(f"s_mov_b32 s{64+2*i}, 0")
    ts(0)
    a("s_cmp_ge_u32 s2, 128")
    a("s_cbranch_scc1 .L_A")
    XN = 32768
    XNS = 1088
    NL = XN + 2304
    QV = NL + 64
    QS = QV + 576
    a("s_load_dwordx2 s[12:13], s[0:1], 88")
    a("s_memrealtime s[48:49]")
    a("s_load_dwordx2 s[16:17], s[0:1], 16")
    a("s_load_dwordx2 s[4:5], s[0:1], 0")
    a("s_load_dwordx2 s[20:21], s[0:1], 24")
    a("s_load_dwordx2 s[8:9], s[0:1], 96")
    a("v_lshrrev_b32 v1, 6, v0")
    a("v_and_b32 v0, 63, v0")
    a("v_readfirstlane_b32 s3, v1")
    a("s_and_b32 s41, s2, 7\ns_lshl_b32 s41, s41, 2\ns_lshr_b32 s43, s2, 5\ns_add_u32 s41, s41, s43")
    a("s_bfe_u32 s42, s2, 0x20003")
    srd(16, 4194304); srd(4, 2048); srd(12, 256); srd(20, 4194304); srd(8, WS_SIZE); srd(24, 4194304); srd(28, 4194304)
    a("v_lshrrev_b32 v2, 4, v0")
    a("v_and_b32 v3, 15, v0")
    a("v_lshlrev_b32 v4, 1, v2")
    a("v_xor_b32 v4, v3, v4")
    a("v_lshlrev_b32 v4, 4, v4")
    a("v_lshl_add_u32 v5, v2, 13, v4")
    a("v_xor_b32 v6, 0x80, v5")
    a("v_xor_b32 v7, v3, v2")
    a("v_lshlrev_b32 v7, 4, v7")
    a("v_lshl_add_u32 v7, v2, 13, v7")
    a("s_lshl_b32 s44, s42, 7\ns_lshl_b32 s45, s3, 4\ns_add_u32 s44, s44, s45\ns_lshl_b32 s44, s44, 13")
    a("s_lshl_b32 s45, s41, 8\ns_add_u32 s44, s44, s45")
    a("s_lshl_b32 s46, s3, 12")
    a("v_lshlrev_b32 v8, 4, v0")
    a("v_mov_b32 v9, 0")
    a("s_lshl_b32 s47, s3, 10")
    a("s_waitcnt lgkmcnt(0)")
    ts(1)
    a("s_cmp_gt_u32 s3, 1")
    a("s_cbranch_scc1 .LW_nox")
    a("buffer_load_dwordx4 v[12:15], v8, s[4:7], s47 offen")
    a(".LW_nox:")
    a("s_cmp_lg_u32 s3, 2")
    a("s_cbranch_scc1 .LW_non0")
    a("s_cmp_lg_u32 s2, 0")
    a("s_cbranch_scc1 .LW_nogen")
    if cfg.dbgt:
        a("v_mov_b32 v10, s48")
        a("buffer_store_dword v10, v9, s[12:15], 0 offen offset:4 sc1")
    a("s_mul_i32 s48, s48, 0x9E3779B1")
    a("s_lshr_b32 s49, s48, 15\ns_xor_b32 s48, s48, s49")
    a("s_mul_i32 s48, s48, 0x85EBCA6B")
    a("s_lshr_b32 s49, s48, 13\ns_xor_b32 s48, s48, s49")
    a("s_max_u32 s48, s48, 1")
    a("v_mov_b32 v10, s48")
    a("s_mov_b64 exec, 1")
    a("buffer_store_dword v10, v9, s[12:15], 0 offen sc1")
    a("s_mov_b64 exec, -1")
    a(".LW_nogen:")
    a("buffer_load_dword v12, v9, s[12:15], 0 offen sc1")
    a(".LW_non0:")
    a("s_mov_b32 m0, s46")
    a("s_mov_b32 s45, s44")
    for i in range(4):
        a(f"buffer_load_dwordx4 v{5 if i < 2 else 6}, s[16:19], s45 offen {NT} lds")
        if i < 3:
            a("s_add_u32 m0, m0, 1024\ns_add_u32 s45, s45, 32768")
    ts(2)
    a("s_load_dwordx2 s[24:25], s[0:1], 32")
    a("s_load_dwordx2 s[28:29], s[0:1], 40")
    a("s_add_u32 s46, s46, 65536")
    a("s_cmp_gt_u32 s3, 2")
    a("s_cbranch_scc1 .LW_win")
    a("s_cmp_eq_u32 s3, 2")
    a("s_cbranch_scc1 .LW_samp")
    a("s_waitcnt vmcnt(4)")
    layernorm(12, 16, 20)
    a(f"s_mul_i32 s45, s3, {XNS}\ns_add_u32 s45, s45, {XN}")
    a("v_add_u32 v10, s45, v8")
    a("ds_write_b128 v10, v[16:19]")
    a("s_branch .LW_win")
    a(".LW_samp:")
    for k in range(1, cfg.nsamp):
        a(f"s_sleep {cfg.samp_sleep}")
        a(f"buffer_load_dword v{12+k}, v9, s[12:15], 0 offen sc1")
    a("s_mov_b32 m0, s46\ns_mov_b32 s45, s44")
    for i in range(4):
        if i: a(f"v_xor_b32 v10, {64*i}, v7")
        a(f"buffer_load_dwordx4 v{10 if i else 7}, s[20:23], s45 offen {NT} lds")
        if i < 3:
            a("s_add_u32 m0, m0, 1024\ns_add_u32 s45, s45, 32768")
    a("s_waitcnt vmcnt(4)")
    for k in range(1, cfg.nsamp):
        a(f"v_max_u32 v12, v12, v{12+k}")
    budget()
    a(".LW_nchk:")
    a("s_nop 0")
    a("v_readfirstlane_b32 s40, v12")
    a("s_cmp_lg_u32 s40, 0")
    a("s_cbranch_scc1 .LW_ngot")
    spend(".LW_ngot")
    a("buffer_load_dword v12, v9, s[12:15], 0 offen sc1")
    a("s_waitcnt vmcnt(0)")
    a("s_branch .LW_nchk")
    a(".LW_ngot:")
    a(f"v_mov_b32 v10, {NL}")
    a("ds_write_b32 v10, v12")
    a("s_branch .LW_b1")
    a(".LW_win:")
    a("s_mov_b32 m0, s46\ns_mov_b32 s45, s44")
    for i in range(4):
        if i: a(f"v_xor_b32 v10, {64*i}, v7")
        if cfg.wuk_wait == "slide": a("s_waitcnt vmcnt(3)")
        elif i == 0 and cfg.wuk_wait is not None: a(f"s_waitcnt vmcnt({cfg.wuk_wait})")
        elif i == 0: a("s_nop 0")
        a(f"buffer_load_dwordx4 v{10 if i else 7}, s[20:23], s45 offen {NT} lds")
        if i < 3:
            a("s_add_u32 m0, m0, 1024\ns_add_u32 s45, s45, 32768")
    a(".LW_b1:")
    a("v_lshrrev_b32 v20, 2, v3")
    a("v_and_b32 v21, 1, v2")
    a("v_lshlrev_b32 v21, 3, v21")
    a("v_lshl_add_u32 v21, v20, 1, v21")
    a("v_bfe_u32 v22, v0, 1, 1")
    a("s_lshl_b32 s45, s3, 1")
    a("v_add_u32 v23, s45, v22")
    a("v_xor_b32 v23, v23, v21")
    a("v_lshlrev_b32 v23, 4, v23")
    a("v_lshl_add_u32 v24, v2, 3, v20")
    a("v_lshl_add_u32 v23, v24, 8, v23")
    a("v_and_b32 v25, 1, v0")
    a("v_lshl_add_u32 v11, v25, 3, v23")
    a(f"v_mul_u32_u24 v26, {XNS}, v25")
    a("v_lshl_add_u32 v26, v2, 4, v26")
    a(f"s_lshl_b32 s45, s42, 8\ns_add_u32 s45, s45, {XN}")
    a("v_add_u32 v26, s45, v26")
    a("s_waitcnt vmcnt(4) lgkmcnt(0)")
    ts(3)
    a("s_barrier")
    ts(4)
    a(f"v_mov_b32 v27, {NL}")
    a("ds_read_b32 v27, v27")
    for s in range(4):
        a(f"ds_read_b128 v[{32+4*s}:{35+4*s}], v26 offset:{64*s}")
        a(f"ds_read_b64_tr_b16 v[{48+4*s}:{49+4*s}], v11 offset:{(32*s)*256}")
        a(f"ds_read_b64_tr_b16 v[{50+4*s}:{51+4*s}], v11 offset:{(32*s+4)*256}")
    a("v_lshlrev_b32 v28, 9, v25")
    a("v_lshl_add_u32 v28, v2, 4, v28")
    a("s_lshl_b32 s50, s41, 2\ns_add_u32 s50, s50, s42")
    a(f"s_lshl_b32 s45, s50, 10\ns_lshl_b32 s47, s3, 6\ns_add_u32 s45, s45, s47")
    if WS_H1: a(f"s_add_u32 s45, s45, {WS_H1}")
    a("v_lshlrev_b32 v29, 3, v2")
    a("s_waitcnt lgkmcnt(9)")
    a("v_mfma_f32_16x16x32_bf16 v[64:67], v[48:51], v[32:35], 0")
    a("v_readfirstlane_b32 s40, v27")
    a("v_lshrrev_b32 v29, v29, v27")
    a("s_waitcnt lgkmcnt(6)")
    a("v_mfma_f32_16x16x32_bf16 v[64:67], v[52:55], v[36:39], v[64:67]")
    a("v_lshrrev_b32 v30, 2, v29")
    a("s_waitcnt lgkmcnt(3)")
    a("v_mfma_f32_16x16x32_bf16 v[64:67], v[56:59], v[40:43], v[64:67]")
    a("v_lshrrev_b32 v31, 4, v29")
    a("s_waitcnt lgkmcnt(0)")
    a("v_mfma_f32_16x16x32_bf16 v[64:67], v[60:63], v[44:47], v[64:67]")
    a("v_lshrrev_b32 v27, 6, v29")
    a("s_mov_b32 exec_lo, 0x00030003\ns_mov_b32 exec_hi, 0x00030003")
    a("s_nop 4")
    a("v_bfi_b32 v64, 3, v29, v64\nv_bfi_b32 v65, 3, v30, v65\nv_bfi_b32 v66, 3, v31, v66\nv_bfi_b32 v67, 3, v27, v67")
    a("buffer_store_dwordx4 v[64:67], v28, s[8:11], s45 offen sc1")
    a("s_mov_b64 exec, -1")
    ts(5)
    a("v_xor_b32 v20, v2, v3")
    a("v_lshlrev_b32 v20, 4, v20")
    a("v_lshl_add_u32 v20, v3, 8, v20")
    a("s_lshl_b32 s45, s3, 12\ns_add_u32 s45, s45, 65536")
    a("v_add_u32 v20, s45, v20")
    a("s_cmp_lg_u32 s3, 0")
    a("s_cbranch_scc1 .LW_h1w")
    a("v_and_b32 v21, 3, v0\nv_lshlrev_b32 v21, 3, v21")
    a("v_mov_b32 v22, s40")
    a("v_lshrrev_b32 v22, v21, v22")
    a("v_lshrrev_b32 v23, 2, v22\nv_lshrrev_b32 v24, 4, v22\nv_lshrrev_b32 v21, 6, v22")
    a(f"s_lshl_b32 s45, s41, 12")
    if WS_H1: a(f"s_add_u32 s45, s45, {WS_H1}")
    budget()
    a(".LW_h1p:")
    spend(".LW_h1g")
    for i in range(4):
        a(f"buffer_load_dwordx4 v[{32+4*i}:{35+4*i}], v8, s[8:11], s45 offen offset:{1024*i} sc1")
    a("s_waitcnt vmcnt(3)")
    a("v_xor_b32 v48, v32, v22")
    a("v_bitop3_b32 v48, v48, v33, v23 bitop3:0xf6\nv_bitop3_b32 v48, v48, v34, v24 bitop3:0xf6\nv_bitop3_b32 v48, v48, v35, v21 bitop3:0xf6")
    for i in range(1, 4):
        a(f"s_waitcnt vmcnt({3-i})")
        for k, e in enumerate((22, 23, 24, 21)):
            a(f"v_bitop3_b32 v48, v48, v{32+4*i+k}, v{e} bitop3:0xf6")
        for k in range(4):
            a(f"v_add_f32 v{32+k}, v{32+k}, v{32+4*i+k}")
    a("v_and_b32 v48, 3, v48")
    a("v_cmp_ne_u32 vcc, 0, v48")
    a("s_cbranch_vccnz .LW_h1p")
    a(".LW_h1g:")
    a("v_cvt_pk_bf16_f32 v32, v32, v33\nv_cvt_pk_bf16_f32 v33, v34, v35")
    a("v_lshrrev_b32 v34, 5, v0\nv_mul_u32_u24 v34, 272, v34\nv_and_b32 v35, 31, v0\nv_lshl_add_u32 v34, v35, 3, v34")
    a(f"ds_write_b64 v34, v[32:33] offset:{QV}")
    a(".LW_h1w:")
    a("s_waitcnt vmcnt(0)")
    for s in range(4):
        if s: a(f"v_xor_b32 v21, {64*s}, v20")
        a(f"ds_read_b128 v[{48+4*s}:{51+4*s}], v{21 if s else 20}")
    a("v_mul_u32_u24 v26, 272, v25")
    a("v_lshl_add_u32 v26, v2, 4, v26")
    a("s_waitcnt lgkmcnt(0)")
    ts(6)
    a("s_barrier")
    for s in range(4):
        a(f"ds_read_b128 v[{32+4*s}:{35+4*s}], v26 offset:{QV+64*s}")
    a("v_lshlrev_b32 v27, 8, v25")
    a("v_lshl_add_u32 v27, v2, 3, v27")
    a("s_lshl_b32 s45, s3, 5")
    a("v_add_u32 v27, s45, v27")
    a(f"s_mov_b32 s47, {hex(f2u(QSCALE))}")
    for s in range(4):
        a(f"s_waitcnt lgkmcnt({3-s})")
        a(f"v_mfma_f32_16x16x32_bf16 v[64:67], v[{48+4*s}:{51+4*s}], v[{32+4*s}:{35+4*s}], {'0' if s == 0 else 'v[64:67]'}")
    a("s_mov_b32 exec_lo, 0x00030003\ns_mov_b32 exec_hi, 0x00030003")
    a("s_nop 5")
    for k in range(4): a(f"v_mul_f32 v{64+k}, s47, v{64+k}")
    a("v_cvt_pk_bf16_f32 v64, v64, v65\nv_cvt_pk_bf16_f32 v65, v66, v67")
    a(f"ds_write_b64 v27, v[64:65] offset:{QS}")
    a("s_mov_b64 exec, -1")
    a("s_waitcnt lgkmcnt(0)")
    a("s_barrier")
    a("s_cmp_lg_u32 s3, 0")
    a("s_cbranch_scc1 .LW_go")
    a(f"ds_read_b128 v[32:35], v8 offset:{QS}")
    a("v_lshlrev_b32 v36, 15, v2\nv_lshl_add_u32 v36, v3, 4, v36")
    a(f"s_lshl_b32 s45, s41, 10\ns_lshl_b32 s47, s42, 8\ns_add_u32 s45, s45, s47\ns_add_u32 s45, s45, {WS_Q}")
    a("s_mov_b32 exec_hi, 0")
    a("s_waitcnt lgkmcnt(0)")
    a("buffer_store_dwordx4 v[32:35], v36, s[8:11], s45 offen sc1")
    a(f"s_lshl_b32 s45, s50, 7\ns_add_u32 s45, s45, {WS_QF}")
    a("v_mov_b32 v37, s40")
    a("s_mov_b32 exec_lo, 1")
    a("s_waitcnt vmcnt(0)")
    a("buffer_store_dword v37, v9, s[8:11], s45 offen sc1")
    ts(7)
    a(f"s_lshl_b32 s45, s2, 7\ns_add_u32 s45, s45, {WS_GO}")
    budget()
    a(".LW_gop:")
    spend(".LW_gog")
    a("buffer_load_dword v37, v9, s[8:11], s45 offen sc1")
    a("s_waitcnt vmcnt(0)")
    a("v_readfirstlane_b32 s47, v37")
    a("s_cmp_eq_u32 s47, s40")
    a("s_cbranch_scc1 .LW_gog")
    psleep()
    a("s_branch .LW_gop")
    a(".LW_gog:")
    a("s_mov_b64 exec, -1")
    a(".LW_go:")
    a("v_and_b32 v20, 1, v2\nv_lshlrev_b32 v20, 5, v20\nv_lshrrev_b32 v21, 1, v2\nv_lshl_add_u32 v20, v21, 4, v20")
    a("v_lshl_add_u32 v20, v20, 13, v4")
    a("v_xor_b32 v21, 0x80, v20")
    a("s_lshl_b32 s44, s42, 7\ns_lshr_b32 s45, s3, 2\ns_lshl_b32 s45, s45, 6\ns_add_u32 s44, s44, s45")
    a("s_and_b32 s45, s3, 3\ns_lshl_b32 s45, s45, 2\ns_add_u32 s44, s44, s45\ns_lshl_b32 s44, s44, 13")
    a("s_lshl_b32 s45, s41, 8\ns_add_u32 s44, s44, s45")
    a("s_lshl_b32 s46, s3, 12\ns_add_u32 s46, s46, 131072")
    a("s_barrier")
    ts(8)
    a("s_mov_b32 m0, s46")
    for i in range(4):
        if i == 0: a("s_nop 0")
        a(f"buffer_load_dwordx4 v{20 if i < 2 else 21}, s[24:27], s44 offen {NT} lds")
        if i < 3:
            a("s_add_u32 m0, m0, 1024\ns_add_u32 s44, s44, 8192")
    a("s_lshl_b32 s46, s3, 14")
    a("s_lshl_b32 s44, s41, 17\ns_add_u32 s44, s44, s46")
    a("s_mov_b32 m0, s46")
    for i in range(16):
        f1 = 2 * ((i & 3) + 4 * ((i >> 3) & 1))
        if i % 4 == 0 and i:
            a("s_add_u32 m0, m0, 4096\ns_add_u32 s44, s44, 4096")
        a(f"v_xor_b32 v22, {16*f1}, v8")
        a(f"buffer_load_dwordx4 v22, s[28:31], s44 offen offset:{1024*(i&3)} {cfg.nt_wo} lds")
    a("v_lshrrev_b32 v20, 2, v3")
    a("v_and_b32 v21, 1, v2\nv_lshlrev_b32 v21, 3, v21\nv_lshl_add_u32 v21, v20, 1, v21")
    a("v_bfe_u32 v22, v0, 1, 1")
    a("s_lshl_b32 s45, s3, 3")
    a("v_add_u32 v23, s45, v22")
    a("v_xor_b32 v23, v23, v21\nv_lshlrev_b32 v23, 4, v23")
    a("v_lshl_add_u32 v24, v2, 3, v20")
    a("v_lshl_add_u32 v23, v24, 10, v23")
    a("v_lshl_add_u32 v12, v25, 3, v23")
    a("v_xor_b32 v13, 32, v12\nv_xor_b32 v14, 64, v12\nv_xor_b32 v15, 96, v12")
    for k in range(4): a(f"v_add_u32 v{16+k}, 0x10000, v{12+k}")
    a("v_add_u32 v20, 0x20000, v11")
    a("s_waitcnt vmcnt(0)")
    ts(9)
    a("s_barrier")
    cnt = 0
    for s in range(4):
        a(f"ds_read_b64_tr_b16 v[{96+4*s}:{97+4*s}], v20 offset:{(32*s)*256}")
        a(f"ds_read_b64_tr_b16 v[{98+4*s}:{99+4*s}], v20 offset:{(32*s+4)*256}")
    for jb in range(4):
        for s in range(4):
            base = (12 if s < 2 else 16) + jb
            r = 112 + 4 * (jb * 4 + s)
            a(f"ds_read_b64_tr_b16 v[{r}:{r+1}], v{base} offset:{(32*(s&1))*1024}")
            a(f"ds_read_b64_tr_b16 v[{r+2}:{r+3}], v{base} offset:{(32*(s&1)+4)*1024}")
    SC = 32768; XX = SC + 512; YY = XX + 576; FL = YY + 576
    a("v_lshl_add_u32 v12, v2, 8, v4")
    a("v_xor_b32 v13, 0x80, v12")
    a(f"s_lshl_b32 s44, s50, 15\ns_lshl_b32 s46, s3, 12\ns_add_u32 s44, s44, s46\ns_add_u32 s44, s44, {WS_O}")
    a("s_and_b32 s45, s3, 1\ns_lshl_b32 s45, s45, 4")
    a("v_add_u32 v14, s45, v3")
    a("v_mov_b32 v15, s40")
    a("v_lshrrev_b32 v14, v14, v15")
    a("v_and_b32 v14, 1, v14")
    a("v_mul_u32_u24 v14, 0x10001, v14")
    a("v_lshrrev_b32 v16, 1, v3\nv_lshlrev_b32 v16, 6, v16\nv_lshl_add_u32 v16, v25, 11, v16\nv_lshl_add_u32 v16, v2, 4, v16")
    a(f"s_lshl_b32 s51, s2, 12\ns_lshl_b32 s45, s3, 8\ns_add_u32 s51, s51, s45\ns_add_u32 s51, s51, {WS_S}")
    a("v_lshlrev_b32 v17, 3, v2\nv_lshrrev_b32 v17, v17, v15")
    a("v_lshrrev_b32 v18, 2, v17\nv_lshrrev_b32 v19, 4, v17\nv_lshrrev_b32 v20, 6, v17")
    a("v_mul_u32_u24 v21, 272, v25\nv_lshl_add_u32 v21, v2, 3, v21\ns_lshl_b32 s45, s3, 5\nv_add_u32 v21, s45, v21")
    a("v_lshlrev_b32 v22, 4, v2")
    a("s_lshl_b32 s45, s3, 2\nv_mov_b32 v23, s45")
    a("s_mov_b32 s52, 0xaaaaaaaa\ns_mov_b32 s53, 0xaaaaaaaa")
    a("s_mov_b32 s54, 0xcccccccc\ns_mov_b32 s55, 0xcccccccc")
    a("s_mov_b32 s56, 0xf0f0f0f0\ns_mov_b32 s57, 0xf0f0f0f0")
    a("s_cmp_lg_u32 s3, 0")
    a("s_cbranch_scc1 .LW_mlw")
    a("v_lshlrev_b32 v24, 11, v0")
    a(f"s_lshl_b32 s45, s42, 9\ns_lshl_b32 s47, s41, 4\ns_add_u32 s45, s45, s47\ns_add_u32 s45, s45, {WS_ML}\ns_add_u32 s47, s45, {64*2048}")
    budget()
    a(".LW_mlp:")
    spend(".LW_mlw")
    a("buffer_load_dwordx4 v[32:35], v24, s[8:11], s45 offen sc1")
    a("buffer_load_dwordx4 v[36:39], v24, s[8:11], s47 offen sc1")
    a("s_waitcnt vmcnt(0)")
    a("v_cmp_ne_u32 vcc, s40, v34")
    a("v_cmp_ne_u32 s[58:59], s40, v38")
    a("s_or_b64 vcc, vcc, s[58:59]")
    a("s_cbranch_vccz .LW_mlw")
    psleep()
    a("s_branch .LW_mlp")
    a(".LW_mlw:")
    a("s_waitcnt lgkmcnt(0)")
    budget()
    a(".LW_retry:")
    a("s_barrier")
    ts(10)
    a("s_mov_b32 m0, s46")
    for i in range(4):
        if i == 0: a("s_nop 0")
        a(f"buffer_load_dwordx4 v{12 if i < 2 else 13}, s[8:11], s44 offen offset:{1024*i} sc1 lds")
    a("s_cmp_lg_u32 s3, 0")
    a("s_cbranch_scc1 .LW_scw")
    a("v_mov_b32 v40, v32\nv_mov_b32 v41, v36")
    allreduce16(40, 42, "v_max_f32")
    allreduce16(41, 42, "v_max_f32")
    a("v_sub_f32 v40, v32, v40\nv_sub_f32 v41, v36, v41")
    a("v_exp_f32 v40, v40\nv_exp_f32 v41, v41")
    a("s_nop 0")
    a("v_mul_f32 v43, v40, v33\nv_mul_f32 v44, v41, v37")
    allreduce16(43, 42, "v_add_f32")
    allreduce16(44, 42, "v_add_f32")
    a("v_rcp_f32 v43, v43\nv_rcp_f32 v44, v44")
    a("s_nop 0")
    a("v_mul_f32 v40, v40, v43\nv_mul_f32 v41, v41, v44")
    a("v_cvt_pk_bf16_f32 v40, v40, v41")
    a("v_lshlrev_b32 v42, 1, v0")
    a(f"ds_write_b16 v42, v40 offset:{SC}")
    a(f"ds_write_b16_d16_hi v42, v40 offset:{SC+128}")
    a(".LW_scw:")
    a("s_waitcnt vmcnt(0) lgkmcnt(0)")
    ts(11)
    a("s_barrier")
    for s in range(4):
        a(f"ds_read_b128 v[{48+4*s}:{51+4*s}], v22 offset:{SC+64*s}")
        a(f"ds_read_b64_tr_b16 v[{64+4*s}:{65+4*s}], v11 offset:{(32*s)*256}")
        a(f"ds_read_b64_tr_b16 v[{66+4*s}:{67+4*s}], v11 offset:{(32*s+4)*256}")
    a("s_waitcnt lgkmcnt(9)")
    a("v_mfma_f32_16x16x32_bf16 v[80:83], v[64:67], v[48:51], 0")
    a("v_xor_b32 v27, v64, v14")
    for k in (65, 66, 67): a(f"v_bitop3_b32 v27, v27, v{k}, v14 bitop3:0xf6")
    a("s_waitcnt lgkmcnt(6)")
    a("v_mfma_f32_16x16x32_bf16 v[80:83], v[68:71], v[52:55], v[80:83]")
    for k in range(68, 72): a(f"v_bitop3_b32 v27, v27, v{k}, v14 bitop3:0xf6")
    a("s_waitcnt lgkmcnt(3)")
    a("v_mfma_f32_16x16x32_bf16 v[84:87], v[72:75], v[56:59], 0")
    for k in range(72, 76): a(f"v_bitop3_b32 v27, v27, v{k}, v14 bitop3:0xf6")
    a("s_waitcnt lgkmcnt(0)")
    a("v_mfma_f32_16x16x32_bf16 v[84:87], v[76:79], v[60:63], v[84:87]")
    for k in range(76, 80): a(f"v_bitop3_b32 v27, v27, v{k}, v14 bitop3:0xf6")
    a("v_and_b32 v27, 0x10001, v27")
    a("v_cmp_ne_u32 vcc, 0, v27")
    a("s_or_b32 s45, vcc_lo, vcc_hi")
    a("v_mov_b32 v27, s45")
    a("s_mov_b32 exec_lo, 0x00030003\ns_mov_b32 exec_hi, 0x00030003")
    for k in range(4): a(f"v_cndmask_b32 v{80+k}, v{80+k}, v{84+k}, s[52:53]")
    a("v_cvt_pk_bf16_f32 v80, v80, v81\nv_cvt_pk_bf16_f32 v81, v82, v83")
    a(f"ds_write_b64 v21, v[80:81] offset:{XX}")
    a(f"ds_write_b32 v23, v27 offset:{FL}")
    a("s_mov_b64 exec, -1")
    a("s_waitcnt lgkmcnt(0)")
    a("s_barrier")
    ts(14)
    for s in range(4):
        a(f"ds_read_b128 v[{48+4*s}:{51+4*s}], v26 offset:{XX+64*s}")
    a(f"ds_read_b128 v[64:67], v9 offset:{FL}")
    a(f"ds_read_b128 v[68:71], v9 offset:{FL+16}")
    for s in range(4):
        a(f"s_waitcnt lgkmcnt({5-s})")
        a(f"v_mfma_f32_16x16x32_bf16 v[80:83], v[{96+4*s}:{99+4*s}], v[{48+4*s}:{51+4*s}], {'0' if s == 0 else 'v[80:83]'}")
    a("s_waitcnt lgkmcnt(0)")
    a("v_or3_b32 v64, v64, v65, v66\nv_or3_b32 v64, v64, v67, v68\nv_or3_b32 v64, v64, v69, v70\nv_or_b32 v64, v64, v71")
    a("s_mov_b32 exec_lo, 0x00030003\ns_mov_b32 exec_hi, 0x00030003")
    a("v_readfirstlane_b32 s45, v64")
    a("v_cvt_pk_bf16_f32 v80, v80, v81\nv_cvt_pk_bf16_f32 v81, v82, v83")
    a(f"ds_write_b64 v21, v[80:81] offset:{YY}")
    a("s_mov_b64 exec, -1")
    a("s_waitcnt lgkmcnt(0)")
    a("s_cmp_eq_u32 s45, 0")
    a("s_cbranch_scc1 .LW_rok")
    a("s_sub_u32 s96, s96, 1")
    a("s_cbranch_scc0 .LW_retry")
    a(".LW_rok:")
    a("s_barrier")
    ts(15)
    for s in range(4):
        a(f"ds_read_b128 v[{48+4*s}:{51+4*s}], v26 offset:{YY+64*s}")
    for s in range(4):
        a(f"s_waitcnt lgkmcnt({3-s})")
        for jb in range(4):
            r = 112 + 4 * (jb * 4 + s)
            a(f"v_mfma_f32_16x16x32_bf16 v[{64+4*jb}:{67+4*jb}], v[{r}:{r+3}], v[{48+4*s}:{51+4*s}], {'0' if s == 0 else f'v[{64+4*jb}:{67+4*jb}]'}")
    a("s_mov_b32 exec_lo, 0x00ff00ff\ns_mov_b32 exec_hi, 0x00ff00ff")
    a("s_nop 3")
    for k in range(4): a(f"v_cndmask_b32 v{64+k}, v{64+k}, v{68+k}, s[54:55]")
    for k in range(4): a(f"v_cndmask_b32 v{72+k}, v{72+k}, v{76+k}, s[54:55]")
    for k in range(4): a(f"v_cndmask_b32 v{64+k}, v{64+k}, v{72+k}, s[56:57]")
    for k in range(4): a(f"v_bfi_b32 v{64+k}, 3, v{17+k}, v{64+k}")
    a("buffer_store_dwordx4 v[64:67], v16, s[8:11], s51 offen sc1")
    ts(12)
    if cfg.ts:
        a("s_waitcnt vmcnt(0)")
        ts(13)
    ts_flush()
    a("s_endpgm")

    QR = 131072
    MX = QR; LS = QR + 512; NLA = QR + 1024 - 16; PX = QR + 1024
    FXN = QR + 16384; FG = FXN + 2304; FH = FG + 8192
    a(".L_A:")
    a("s_cmp_ge_u32 s2, 256")
    a("s_cbranch_scc1 .L_end")
    a("s_load_dwordx2 s[16:17], s[0:1], 8")
    a("s_load_dwordx2 s[12:13], s[0:1], 88")
    a("s_load_dwordx2 s[8:9], s[0:1], 96")
    a("s_load_dwordx2 s[4:5], s[0:1], 0")
    a("s_load_dwordx2 s[20:21], s[0:1], 56")
    a("s_load_dwordx2 s[24:25], s[0:1], 64")
    a("s_load_dwordx2 s[28:29], s[0:1], 72")
    a("v_lshrrev_b32 v1, 6, v0")
    a("v_and_b32 v0, 63, v0")
    a("v_readfirstlane_b32 s3, v1")
    a("s_sub_u32 s43, s2, 128")
    a("s_bfe_u32 s41, s43, 0x10002")
    a("s_lshr_b32 s42, s43, 3\ns_lshl_b32 s42, s42, 2\ns_and_b32 s44, s43, 3\ns_add_u32 s42, s42, s44")
    a("s_lshl_b32 s44, s41, 6\ns_add_u32 s42, s42, s44")
    srd(16, 16777216); srd(12, 256); srd(8, WS_SIZE); srd(4, 2048); srd(20, 1409024); srd(24, 1409024); srd(28, 1409024)
    a("v_lshlrev_b32 v8, 4, v0")
    a("v_mov_b32 v9, 0")
    a("s_cmp_lt_u32 s3, 4")
    a("s_cbranch_scc1 .LA_comp")
    a("s_sub_u32 s47, s3, 4")
    a("s_lshl_b32 s46, s47, 15")
    a("s_lshl_b32 s44, s42, 17\ns_add_u32 s44, s44, s46")
    a("s_mov_b32 m0, s46")
    a("s_waitcnt lgkmcnt(0)")
    ts(1)
    a("v_lshlrev_b32 v4, 5, v0")
    a("buffer_load_dwordx4 v[12:15], v4, s[4:7], 0 offen")
    a("buffer_load_dwordx4 v[16:19], v4, s[4:7], 0 offen offset:16")
    a("v_lshrrev_b32 v2, 4, v0\nv_and_b32 v3, 15, v0\nv_and_b32 v25, 1, v0")
    a("s_and_b32 s50, s43, 7\ns_lshl_b32 s50, s50, 1\ns_lshr_b32 s51, s47, 1\ns_add_u32 s50, s50, s51")
    a("v_lshlrev_b32 v4, 10, v25\nv_lshl_add_u32 v4, v2, 4, v4")
    a("s_lshl_b32 s45, s50, 6")
    a("buffer_load_dwordx4 v[20:23], v4, s[4:7], s45 offen")
    def crow(i):
        f = ((i & 3) << 2) | ((i >> 2) & 3)
        if i % 4 == 0 and i:
            a("s_add_u32 m0, m0, 4096\ns_add_u32 s44, s44, 4096")
        a(f"v_xor_b32 v10, {16*f}, v8")
        a(f"buffer_load_dwordx4 v10, s[16:19], s44 offen offset:{1024*(i&3)} {NT} lds")
    for i in range(cfg.npre): crow(i)
    a("v_mov_b32 v11, s46")
    a("s_barrier")
    ts(2)
    a(f"ds_read_b32 v11, v11 offset:{31*1024}")
    for i in range(cfg.npre, 32):
        if cfg.cwin and i >= cfg.cwin: a(f"s_waitcnt vmcnt({cfg.cwin-1})")
        if i == 31: a("s_waitcnt lgkmcnt(0)")
        crow(i)
    ts(3)
    a(f"s_lshl_b32 s45, s43, 7\ns_add_u32 s45, s45, {WS_GO}")
    a("s_cmp_lg_u32 s3, 4")
    a("s_cbranch_scc1 .LH_nogo")
    a(f"s_waitcnt vmcnt({cfg.go_cnt}) lgkmcnt(0)")
    a("s_mov_b64 exec, 1")
    a("buffer_store_dword v11, v9, s[8:11], s45 offen sc1")
    a("s_mov_b64 exec, -1")
    a(".LH_nogo:")
    a("s_waitcnt lgkmcnt(0)")
    a("v_readfirstlane_b32 s40, v11")
    a("s_mov_b32 s52, 0x05040100\ns_mov_b32 s53, 0x07060302")
    a("s_mov_b32 s54, 0xffff0000\ns_mov_b32 s55, 0xffff0000")
    a("s_mov_b32 s56, 0\ns_mov_b32 s57, -1")
    a("s_mov_b32 s58, 0xaaaaaaaa\ns_mov_b32 s59, 0xaaaaaaaa")
    a("v_and_b32 v26, 1, v2\nv_lshlrev_b32 v27, 5, v3\nv_lshl_add_u32 v27, v26, 4, v27")
    a("v_lshl_add_u32 v26, v25, 1, v26\nv_lshlrev_b32 v26, 3, v26\nv_lshrrev_b32 v28, v26, v11")
    a("v_lshrrev_b32 v29, 2, v28\nv_lshrrev_b32 v30, 4, v28\nv_lshrrev_b32 v31, 6, v28")
    a("v_lshrrev_b32 v26, 1, v2")
    a("v_lshlrev_b32 v5, 13, v2\nv_lshl_add_u32 v5, v3, 4, v5")
    a("s_sub_u32 s62, s43, 85")
    a("s_lshl_b32 s46, s62, 15\ns_lshl_b32 s45, s47, 8\ns_add_u32 s46, s46, s45")
    def transpose8(src, dst):
        for j in range(8):
            for e in range(4):
                a(f"v_perm_b32 v{dst+4*j+e}, v{src+4*(2*e+1)+(j>>1)}, v{src+4*(2*e)+(j>>1)}, s{52+(j&1)}")
    def w2loads():
        for i in range(8):
            r = 96 + 4 * i
            if i == 4: a("s_add_u32 s46, s46, 4096")
            a(f"buffer_load_dwordx4 v[{r}:{r+3}], v5, s[28:31], s46 offen offset:{1024*(i&3)} {NT}")
    def gemv_out(afrag, wfrag, voff, soff):
        for j in range(8):
            a(f"v_mfma_f32_16x16x32_bf16 v[{32+4*j}:{35+4*j}], v[{afrag}:{afrag+3}], v[{wfrag+4*j}:{wfrag+3+4*j}], 0")
        a("s_nop 4")
        for k in range(4):
            a(f"v_cndmask_b32 v{64+k}, v{32+4*k}, v{32+4*(4+k)}, s[54:55]")
        for k in range(4):
            a(f"v_cndmask_b32 v{68+k}, v{33+4*k}, v{33+4*(4+k)}, s[54:55]")
        for k in range(4):
            a(f"v_cndmask_b32 v{64+k}, v{64+k}, v{68+k}, s[56:57]")
        for k in range(4):
            a(f"v_bfi_b32 v{64+k}, 3, v{28+k}, v{64+k}")
        a(f"buffer_store_dwordx4 v[64:67], v{voff}, s[8:11], s{soff} offen sc1")
    a("s_cmp_lt_u32 s43, 88")
    a("s_cbranch_scc1 .LH_F1")
    a("s_waitcnt vmcnt(0)")
    ts(4)
    a("s_barrier")
    w2loads()
    a("s_barrier\ns_barrier\ns_barrier")
    a("s_branch .LH_F2")
    a(".LH_F1:")
    a("s_waitcnt vmcnt(32)")
    for i in range(8):
        a(f"v_lshlrev_b32 v{32+2*i}, 16, v{12+i}")
        a(f"v_and_b32 v{33+2*i}, 0xffff0000, v{12+i}")
    a("v_add_f32 v48, v32, v33")
    for i in range(2, 16): a(f"v_add_f32 v48, v48, v{32+i}")
    def halfreduce(v, t):
        for r in (8, 4, 2, 1):
            a("s_nop 1")
            a(f"v_add_f32_dpp v{v}, v{v}, v{v} row_ror:{r} row_mask:0xf bank_mask:0xf")
        a(f"v_mov_b32 v{t}, v{v}\ns_nop 1\nv_permlane16_swap_b32 v{v}, v{t}\nv_add_f32 v{v}, v{v}, v{t}")
    halfreduce(48, 49)
    a(f"v_mul_f32 v48, {hex(f2u(1/512))}, v48")
    a("v_sub_f32 v49, v32, v48\nv_mul_f32 v50, v49, v49")
    for i in range(1, 16): a(f"v_sub_f32 v49, v{32+i}, v48\nv_fmac_f32 v50, v49, v49")
    halfreduce(50, 49)
    a(f"v_mul_f32 v50, {hex(f2u(1/512))}, v50")
    a("v_cvt_pk_bf16_f32 v48, v48, v50")
    a("v_mov_b32 v49, v48\ns_nop 1\nv_permlane32_swap_b32 v48, v49")
    a("v_cndmask_b32 v48, v48, v49, s[58:59]")
    a("v_and_b32 v50, 0xffff0000, v48\nv_lshlrev_b32 v48, 16, v48")
    a(f"v_add_f32 v50, {hex(f2u(1e-5))}, v50")
    a("v_cvt_pk_bf16_f32 v50, v50, v50\nv_and_b32 v50, 0xffff0000, v50\nv_sqrt_f32 v50, v50")
    for i in range(4):
        a(f"v_lshlrev_b32 v{32+2*i}, 16, v{20+i}")
        a(f"v_and_b32 v{33+2*i}, 0xffff0000, v{20+i}")
    a("v_cvt_pk_bf16_f32 v50, v50, v50\nv_and_b32 v50, 0xffff0000, v50\nv_rcp_f32 v50, v50")
    for i in range(8): a(f"v_sub_f32 v{32+i}, v{32+i}, v48")
    for i in range(4): a(f"v_cvt_pk_bf16_f32 v{20+i}, v{32+2*i}, v{33+2*i}")
    for i in range(4):
        a(f"v_lshlrev_b32 v{32+2*i}, 16, v{20+i}")
        a(f"v_and_b32 v{33+2*i}, 0xffff0000, v{20+i}")
    for i in range(8): a(f"v_mul_f32 v{32+i}, v{32+i}, v50")
    for i in range(4): a(f"v_cvt_pk_bf16_f32 v{20+i}, v{32+2*i}, v{33+2*i}")
    a("v_mul_u32_u24 v4, 22016, v2\nv_lshl_add_u32 v4, v3, 4, v4")
    a(f"s_mul_i32 s44, s50, {32*2752}\ns_lshr_b32 s51, s43, 3\ns_lshl_b32 s45, s51, 8\ns_add_u32 s44, s44, s45")
    a("s_bitcmp1_b32 s47, 0")
    a("s_cselect_b32 s20, s24, s20\ns_cselect_b32 s21, s25, s21")
    a("v_lshl_add_u32 v6, v26, 9, v27")
    a(f"s_lshl_b32 s61, s51, 15\ns_and_b32 s45, s47, 1\ns_lshl_b32 s45, s45, 14\ns_add_u32 s61, s61, s45\ns_lshl_b32 s45, s50, 10\ns_add_u32 s61, s61, s45\ns_add_u32 s61, s61, {WS_G}")
    a("s_waitcnt vmcnt(0)")
    ts(4)
    a("s_barrier")
    for i in range(8):
        a(f"buffer_load_dwordx4 v[{64+4*i}:{67+4*i}], v4, s[20:23], s44 offen {NT}")
        if i < 7: a("s_add_u32 s44, s44, 2752")
    a("s_barrier\ns_barrier\ns_barrier")
    a("s_waitcnt vmcnt(0)")
    transpose8(64, 128)
    a("s_nop 0")
    gemv_out(20, 128, 6, 61)
    ts(5)
    a("s_cmp_lt_u32 s43, 85")
    a("s_cbranch_scc1 .LA_exit")
    w2loads()
    a(".LH_F2:")
    a("v_lshrrev_b32 v7, 3, v0\nv_lshlrev_b32 v7, 9, v7\nv_and_b32 v10, 7, v0\nv_lshl_add_u32 v7, v10, 4, v7")
    a(f"s_lshr_b32 s44, s62, 2\ns_lshl_b32 s44, s44, 15\ns_and_b32 s45, s62, 3\ns_lshl_b32 s45, s45, 7\ns_add_u32 s44, s44, s45\ns_add_u32 s44, s44, {WS_G}")
    a("v_and_b32 v10, 3, v0\nv_lshlrev_b32 v10, 3, v10\nv_lshrrev_b32 v12, v10, v11")
    a("v_lshrrev_b32 v13, 2, v12\nv_lshrrev_b32 v14, 4, v12\nv_lshrrev_b32 v15, 6, v12")
    a("v_lshlrev_b32 v16, 5, v25\nv_lshl_add_u32 v16, v2, 3, v16\nv_add_u32 v17, 4, v16")
    a("v_lshl_add_u32 v6, v26, 11, v27")
    a(f"s_lshl_b32 s61, s62, 12\ns_lshl_b32 s45, s47, 9\ns_add_u32 s61, s61, s45\ns_add_u32 s61, s61, {WS_F}")
    a("s_waitcnt vmcnt(0)")
    transpose8(96, 128)
    budget()
    a(".LF_gp:")
    spend(".LF_gg")
    a("s_mov_b32 s45, s44")
    for i in range(8):
        a(f"buffer_load_dwordx4 v[{32+4*i}:{35+4*i}], v7, s[8:11], s45 offen sc1")
        if i < 7: a("s_add_u32 s45, s45, 4096")
    for i in range(8):
        a(f"s_waitcnt vmcnt({7-i})")
        for k in range(4):
            if i == 0 and k == 0: a("v_xor_b32 v18, v32, v12")
            else: a(f"v_bitop3_b32 v18, v18, v{32+4*i+k}, v{12+k} bitop3:0xf6")
        if i & 3:
            for k in range(4): a(f"v_add_f32 v{32+16*(i>>2)+k}, v{32+16*(i>>2)+k}, v{32+4*i+k}")
    a("v_and_b32 v18, 3, v18")
    a("v_cmp_ne_u32 vcc, 0, v18")
    a("s_cbranch_vccz .LF_gg")
    psleep()
    a("s_branch .LF_gp")
    a(".LF_gg:")
    for sw in ("v_permlane16_swap_b32", "v_permlane32_swap_b32"):
        for k in range(4): a(f"v_mov_b32 v{36+k}, v{32+k}\nv_mov_b32 v{52+k}, v{48+k}")
        a("s_nop 0")
        for k in range(4): a(f"{sw} v{32+k}, v{36+k}\n{sw} v{48+k}, v{52+k}")
        for k in range(4): a(f"v_add_f32 v{32+k}, v{32+k}, v{36+k}\nv_add_f32 v{48+k}, v{48+k}, v{52+k}")
    for k in range(4): a(f"v_cvt_pk_bf16_f32 v{32+k}, v{32+k}, v{48+k}")
    for k in range(4): a(f"v_and_b32 v{48+k}, 0xffff0000, v{32+k}\nv_lshlrev_b32 v{32+k}, 16, v{32+k}")
    for k in range(4): a(f"v_mul_f32 v{36+k}, {hex(f2u(-LOG2E))}, v{32+k}")
    for k in range(4): a(f"v_exp_f32 v{36+k}, v{36+k}")
    a("s_nop 0")
    for k in range(4): a(f"v_add_f32 v{36+k}, 1.0, v{36+k}")
    for k in range(4): a(f"v_rcp_f32 v{36+k}, v{36+k}")
    a("s_nop 0")
    for k in range(4): a(f"v_mul_f32 v{32+k}, v{32+k}, v{36+k}")
    a("v_cvt_pk_bf16_f32 v32, v32, v33\nv_cvt_pk_bf16_f32 v34, v34, v35")
    a("v_and_b32 v33, 0xffff0000, v32\nv_lshlrev_b32 v32, 16, v32\nv_and_b32 v35, 0xffff0000, v34\nv_lshlrev_b32 v34, 16, v34")
    for k in range(4): a(f"v_mul_f32 v{32+k}, v{32+k}, v{48+k}")
    a("v_cvt_pk_bf16_f32 v32, v32, v33\nv_cvt_pk_bf16_f32 v33, v34, v35")
    a("ds_bpermute_b32 v20, v16, v32\nds_bpermute_b32 v21, v16, v33\nds_bpermute_b32 v22, v17, v32\nds_bpermute_b32 v23, v17, v33")
    a("s_waitcnt lgkmcnt(0)")
    gemv_out(20, 128, 6, 61)
    ts(6)
    a("s_branch .LA_exit")

    a(".LA_comp:")
    a("s_load_dwordx2 s[32:33], s[0:1], 80")
    srd(32, 2048)
    a("s_waitcnt lgkmcnt(0)")
    ts(1)
    if cfg.prefetch:
        a(f"s_cmp_lg_u32 s3, {cfg.pf_wave}")
        a("s_cbranch_scc1 .LA_nopf")
        a("s_getpc_b64 s[36:37]")
        a(".LA_pc:")
        a(f"s_sub_u32 s36, s36, .LA_pc-{K}\ns_subb_u32 s37, s37, 0")
        a(f"s_mov_b32 s38, .L_codeend-{K}\ns_mov_b32 s39, 0x20000")
        a("s_mov_b32 s45, 0")
        a(".LA_pfl:")
        a("buffer_load_dwordx4 v[12:15], v8, s[36:39], s45 offen")
        a("s_add_u32 s45, s45, 1024")
        a(f"s_cmp_lt_u32 s45, .L_codeend-{K}")
        a("s_cbranch_scc1 .LA_pfl")
        a(".LA_nopf:")
    a("s_cmp_lg_u32 s3, 0")
    a("s_cbranch_scc1 .LA_b0")
    budget()
    a(".LA_np:")
    spend(".LA_ng")
    a("buffer_load_dword v12, v9, s[12:15], 0 offen sc1")
    a("s_waitcnt vmcnt(0)")
    a("v_readfirstlane_b32 s40, v12")
    a("s_cmp_eq_u32 s40, 0")
    a("s_cbranch_scc1 .LA_np")
    a(".LA_ng:")
    a(f"v_lshlrev_b32 v10, 13, v0\nv_add_u32 v10, {QR}, v10")
    a(f"v_lshlrev_b32 v13, 15, v0\nv_add_u32 v13, {31*1024 - 4*32768}, v13")
    a("v_cmp_gt_u32 vcc, 4, v0\ns_mov_b64 exec, 0xff\ns_nop 0\nv_cndmask_b32 v10, v13, v10, vcc")
    a("ds_write_b32 v10, v12")
    a("s_mov_b64 exec, -1")
    a("s_waitcnt lgkmcnt(0)")
    a(".LA_b0:")
    a(f"s_lshl_b32 s45, s3, 13\ns_add_u32 s45, s45, {QR}\nv_mov_b32 v10, s45")
    a("s_barrier")
    ts(2)
    a("ds_read_b32 v11, v10")
    a("v_lshrrev_b32 v2, 5, v0")
    a("v_and_b32 v3, 31, v0")
    a("v_and_b32 v4, 3, v3\nv_lshlrev_b32 v4, 2, v4\nv_bfe_u32 v5, v3, 2, 2\nv_or_b32 v4, v4, v5")
    a("v_xor_b32 v4, v4, v2\nv_lshlrev_b32 v4, 4, v4\nv_lshl_add_u32 v4, v3, 10, v4")
    a("s_lshl_b32 s45, s3, 15")
    a("v_add_u32 v16, s45, v4")
    a(f"v_add_u32 v24, {QR}, v4")
    for k in range(1, 8):
        a(f"v_xor_b32 v{16+k}, {32*k}, v16\nv_xor_b32 v{24+k}, {32*k}, v24")
    a("v_bfe_u32 v4, v0, 2, 2")
    a("v_lshl_add_u32 v5, v2, 2, v4\nv_lshlrev_b32 v5, 10, v5\nv_lshl_add_u32 v5, v4, 6, v5")
    a("v_bfe_u32 v6, v0, 4, 1\nv_bfe_u32 v7, v0, 1, 1\nv_lshl_add_u32 v6, v6, 1, v7\nv_xor_b32 v6, v6, v2\nv_lshl_add_u32 v5, v6, 4, v5")
    a("v_and_b32 v6, 1, v0\nv_lshl_add_u32 v5, v6, 3, v5")
    a("s_lshl_b32 s45, s3, 8")
    a("v_add_u32 v32, s45, v5")
    for jj in range(4):
        for q in range(2):
            if jj or q: a(f"v_xor_b32 v{32+2*jj+q}, {64*jj + 32*q}, v32")
    for k in range(8): a(f"v_add_u32 v{40+k}, 0x10000, v{32+k}")
    a(f"s_lshl_b32 s45, s3, 7\ns_add_u32 s45, s45, {MX}")
    a("v_lshlrev_b32 v48, 2, v3")
    a(f"v_add_u32 v49, {MX}, v48")
    a("v_add_u32 v48, s45, v48")
    a(f"s_lshl_b32 s45, s3, 11\ns_add_u32 s45, s45, {PX}")
    a("v_add_u32 v50, s45, v8")
    a(f"v_add_u32 v51, {PX}, v8")
    a("v_bfe_u32 v4, v0, 4, 1\nv_lshl_add_u32 v5, v2, 2, v4\nv_lshlrev_b32 v52, 17, v5\nv_and_b32 v5, 15, v0\nv_lshl_add_u32 v52, v5, 3, v52")
    a(f"s_lshl_b32 s44, s3, 15\ns_lshl_b32 s45, s42, 8\ns_add_u32 s44, s44, s45\ns_add_u32 s44, s44, {WS_O}")
    for r in range(0, 16, 2):
        a(f"s_add_u32 s{48+r//2}, s44, {((r & 3) + 8 * (r >> 2)) * 131072}")
    a("s_waitcnt lgkmcnt(0)")
    a("v_readfirstlane_b32 s40, v11")
    a("v_and_b32 v4, 7, v0\nv_bfe_u32 v5, v0, 4, 1\nv_lshl_add_u32 v4, v4, 1, v5\nv_lshlrev_b32 v4, 1, v4\nv_lshrrev_b32 v4, v4, v11\nv_and_b32 v5, 1, v4\nv_bfe_u32 v4, v4, 1, 1\nv_lshl_or_b32 v53, v4, 16, v5")
    a("v_lshlrev_b32 v54, 4, v3")
    a(f"s_lshl_b32 s46, s42, 11\ns_lshl_b32 s45, s3, 9\ns_add_u32 s46, s46, s45\ns_add_u32 s46, s46, {WS_ML}")
    a("v_lshlrev_b32 v4, 7, v3")
    a(f"s_lshl_b32 s45, s3, 12\ns_add_u32 s45, s45, {WS_QF}")
    budget()
    a(".LA_qp:")
    spend(".LA_qg")
    a("buffer_load_dword v5, v4, s[8:11], s45 offen sc1")
    a("s_waitcnt vmcnt(0)")
    a("v_cmp_ne_u32 vcc, s40, v5")
    a("s_cbranch_vccz .LA_qg")
    psleep()
    a("s_branch .LA_qp")
    a(".LA_qg:")
    ts(3)
    a(f"s_lshl_b32 s45, s3, 13\ns_add_u32 m0, s45, {QR}")
    a(f"s_lshl_b32 s47, s41, 15\ns_add_u32 s45, s45, s47\ns_add_u32 s45, s45, {WS_Q}")
    a("s_and_b32 s47, s3, 1\ns_lshl_b32 s47, s47, 5")
    a("v_xor_b32 v4, s47, v8")
    for i in range(8):
        if i == 4: a("s_add_u32 m0, m0, 4096\ns_add_u32 s45, s45, 4096")
        a(f"v_xor_b32 v5, {16*(((i&3)<<2) | (i>>2))}, v4")
        a(f"buffer_load_dwordx4 v5, s[8:11], s45 offen offset:{1024*(i&3)} sc1 lds")
    a("s_mov_b32 s47, 0x00010001")
    a("s_waitcnt vmcnt(0)")
    ts(4)
    a("s_barrier")
    ts(5)
    LA = 4
    def sread(s):
        r = 80 + 8 * (s % LA)
        a(f"ds_read_b128 v[{r}:{r+3}], v{16+(s&7)} offset:{256*(s>>3)}")
        a(f"ds_read_b128 v[{r+4}:{r+7}], v{24+(s&7)} offset:{256*(s>>3)}")
    for s in range(LA): sread(s)
    for s in range(32):
        r = 80 + 8 * (s % LA)
        outstanding = min(LA, 32 - s)
        a(f"s_waitcnt lgkmcnt({2*(outstanding-1)})")
        if s == 31: a("s_barrier")
        a(f"v_mfma_f32_32x32x16_bf16 v[64:79], v[{r}:{r+3}], v[{r+4}:{r+7}], {'0' if s == 0 else 'v[64:79]'}")
        if s + LA < 32: sread(s + LA)
    ts(6)
    a("s_nop 11" if not cfg.ts else "s_nop 10")
    a("v_max3_f32 v4, v64, v65, v66\nv_max3_f32 v5, v67, v68, v69\nv_max3_f32 v6, v70, v71, v72\nv_max3_f32 v7, v73, v74, v75")
    a("v_max3_f32 v4, v4, v76, v77\nv_max3_f32 v5, v5, v78, v79\nv_max3_f32 v4, v4, v6, v7\nv_max_f32 v4, v4, v5")
    a("v_mov_b32 v5, v4\ns_nop 1\nv_permlane32_swap_b32 v4, v5\nv_max_f32 v4, v4, v5")
    a("ds_write_b32 v48, v4")
    a("s_waitcnt lgkmcnt(0)")
    a("s_barrier")
    a("ds_read2_b32 v[4:5], v49 offset0:0 offset1:32")
    a("ds_read2_b32 v[6:7], v49 offset0:64 offset1:96")
    a("s_waitcnt lgkmcnt(0)")
    a("v_max3_f32 v4, v4, v5, v6\nv_max_f32 v56, v4, v7")
    for r in range(16): a(f"v_sub_f32 v{64+r}, v{64+r}, v56")
    for r in range(16): a(f"v_exp_f32 v{64+r}, v{64+r}")
    a("s_nop 0")
    for e in range(8): a(f"v_cvt_pk_bf16_f32 v{80+e}, v{64+2*e}, v{65+2*e}")
    a("ds_write_b128 v50, v[80:83]")
    a("ds_write_b128 v50, v[84:87] offset:1024")
    for e in range(8): a(f"v_add_f32 v{64+e}, v{64+e}, v{72+e}")
    for e in range(4): a(f"v_add_f32 v{64+e}, v{64+e}, v{68+e}")
    a("v_add_f32 v64, v64, v66\nv_add_f32 v65, v65, v67\nv_add_f32 v64, v64, v65")
    a("v_mov_b32 v65, v64\ns_nop 1\nv_permlane32_swap_b32 v64, v65\nv_add_f32 v64, v64, v65")
    a("ds_write_b32 v48, v64 offset:512")
    a("s_waitcnt lgkmcnt(0)")
    a("s_barrier")
    ts(7)
    for k in range(8):
        a(f"ds_read_b128 v[{64+4*k}:{67+4*k}], v51 offset:{1024*k}")
    seq = [(tp, k, jj) for tp in range(2) for k in range(8) for jj in (2*tp, 2*tp+1)]
    LB = 5
    def tread(n):
        tp, k, jj = seq[n]
        kb, t = k >> 1, k & 1
        r = 160 + 4 * (n % LB)
        base = (32 if kb < 2 else 40) + 2 * jj
        off = (32 * (kb & 1) + 16 * t) * 1024
        a(f"ds_read_b64_tr_b16 v[{r}:{r+1}], v{base} offset:{off}")
        a(f"ds_read_b64_tr_b16 v[{r+2}:{r+3}], v{base+1} offset:{off+8192}")
    a("s_waitcnt lgkmcnt(5)")
    for n in range(LB): tread(n)
    def epiA(tp, pr):
        t = 184 + 2 * (pr & 7); r = 2 * pr
        a(f"v_cvt_pk_bf16_f32 v{t}, v{96+32*tp+r}, v{112+32*tp+r}")
        a(f"v_cvt_pk_bf16_f32 v{t+1}, v{97+32*tp+r}, v{113+32*tp+r}")
        a(f"v_bfi_b32 v{t}, s47, v53, v{t}")
        a(f"v_bfi_b32 v{t+1}, s47, v53, v{t+1}")
    def epiB(tp, pr):
        t = 184 + 2 * (pr & 7)
        a(f"v_permlane16_swap_b32 v{t}, v{t+1}")
        a(f"buffer_store_dwordx2 v[{t}:{t+1}], v52, s[8:11], s{48+pr} offen offset:{128*tp} sc1")
    for n in range(32):
        tp, k, jj = seq[n]
        r = 160 + 4 * (n % LB)
        outstanding = min(LB, 32 - n)
        a(f"s_waitcnt lgkmcnt({2*(outstanding-1)})")
        acc = 96 + 16 * jj
        a(f"v_mfma_f32_32x32x16_bf16 v[{acc}:{acc+15}], v[{64+4*k}:{67+4*k}], v[{r}:{r+3}], {'0' if k == 0 else f'v[{acc}:{acc+15}]'}")
        if n + LB < 32: tread(n + LB)
        if n >= 19:
            m = n - 19
            if m % 3 == 0: epiA(0, (m // 3) * 2) if m // 3 * 2 < 8 else None
            if m % 3 == 1:
                if (m // 3) * 2 < 8: epiB(0, (m // 3) * 2);
                if (m // 3) * 2 + 1 < 8: epiA(0, (m // 3) * 2 + 1)
            if m % 3 == 2 and (m // 3) * 2 + 1 < 8: epiB(0, (m // 3) * 2 + 1)
    a("ds_read2_b32 v[4:5], v49 offset0:128 offset1:160")
    a("ds_read2_b32 v[6:7], v49 offset0:192 offset1:224")
    a("s_nop 9")
    epiA(1, 0)
    for pr in range(8):
        if pr < 7: epiA(1, pr + 1)
        else: a("s_nop 1")
        epiB(1, pr)
    a("s_waitcnt lgkmcnt(0)")
    a("v_add_f32 v4, v4, v5\nv_add_f32 v6, v6, v7\nv_add_f32 v57, v4, v6")
    a("v_mov_b32 v58, s40\nv_mov_b32 v59, 0")
    a("s_mov_b32 exec_hi, 0")
    a("buffer_store_dwordx4 v[56:59], v54, s[8:11], s46 offen sc1")
    a("s_mov_b64 exec, -1")
    ts(8)
    a("s_cmp_lg_u32 s3, 0")
    a("s_cbranch_scc1 .LA_exit")
    a("s_cmp_lt_u32 s43, 96")
    a("s_cbranch_scc1 .LA_exit")
    a("s_sub_u32 s44, s43, 96")
    a("v_and_b32 v3, 7, v0\nv_lshrrev_b32 v2, 3, v0")
    a("v_lshlrev_b32 v4, 12, v2\nv_lshl_add_u32 v4, v3, 4, v4")
    a("v_and_b32 v5, 3, v0\nv_lshlrev_b32 v5, 3, v5\nv_mov_b32 v6, s40\nv_lshrrev_b32 v10, v5, v6")
    a("v_lshrrev_b32 v11, 2, v10\nv_lshrrev_b32 v12, 4, v10\nv_lshrrev_b32 v13, 6, v10")
    a("s_lshl_b32 s45, s44, 6")
    a("v_lshlrev_b32 v14, 3, v3")
    a("buffer_load_dwordx2 v[16:17], v14, s[4:7], s45 offen")
    a(f"s_lshl_b32 s46, s44, 7\ns_add_u32 s47, s46, {WS_F}\ns_add_u32 s46, s46, {WS_S}")
    def gather(n, sbase, lab, lastmask=None):
        budget()
        a(f"{lab}:")
        spend(f"{lab}_ok")
        a(f"s_mov_b32 s48, {sbase}")
        for i in range(n):
            if lastmask is not None and i == n - 1:
                for k in range(4): a(f"v_mov_b32 v{32+4*i+k}, v{10+k}")
                a(f"s_mov_b32 exec_lo, {lastmask}\ns_mov_b32 exec_hi, 0")
            a(f"buffer_load_dwordx4 v[{32+4*i}:{35+4*i}], v4, s[8:11], s48 offen sc1")
            if i < n - 1: a("s_add_u32 s48, s48, 32768")
        if lastmask is not None: a("s_mov_b64 exec, -1")
        for i in range(n):
            a(f"s_waitcnt vmcnt({n-1-i})")
            for k in range(4):
                if i == 0 and k == 0: a(f"v_xor_b32 v20, v32, v10")
                else: a(f"v_bitop3_b32 v20, v20, v{32+4*i+k}, v{10+k} bitop3:0xf6")
            if lastmask is not None and i == n - 1:
                a(f"s_mov_b32 exec_lo, {lastmask}\ns_mov_b32 exec_hi, 0")
            if i:
                for k in range(4): a(f"v_add_f32 v{32+k}, v{32+k}, v{32+4*i+k}")
            if lastmask is not None and i == n - 1: a("s_mov_b64 exec, -1")
        a("v_and_b32 v20, 3, v20")
        a("v_cmp_ne_u32 vcc, 0, v20")
        a(f"s_cbranch_vccz {lab}_ok")
        psleep()
        a(f"s_branch {lab}")
        a(f"{lab}_ok:")
        for k in range(4):
            a(f"v_add_f32_dpp v{32+k}, v{32+k}, v{32+k} row_ror:8 row_mask:0xf bank_mask:0xf")
        for sw in ("v_permlane16_swap_b32", "v_permlane32_swap_b32"):
            for k in range(4): a(f"v_mov_b32 v{36+k}, v{32+k}")
            a("s_nop 0")
            for k in range(4): a(f"{sw} v{32+k}, v{36+k}")
            for k in range(4): a(f"v_add_f32 v{32+k}, v{32+k}, v{36+k}")
    gather(6, "s47", ".LZ_f", lastmask=0x00ffffff)
    ts(9)
    a("v_cvt_pk_bf16_f32 v32, v32, v33\nv_cvt_pk_bf16_f32 v34, v34, v35")
    a("v_lshlrev_b32 v24, 16, v32\nv_and_b32 v25, 0xffff0000, v32\nv_lshlrev_b32 v26, 16, v34\nv_and_b32 v27, 0xffff0000, v34")
    for k in range(4): a(f"v_mul_f32 v{32+k}, {hex(f2u(-LOG2E))}, v{24+k}")
    for k in range(4): a(f"v_exp_f32 v{32+k}, v{32+k}")
    a("s_nop 0")
    for k in range(4): a(f"v_add_f32 v{32+k}, 1.0, v{32+k}")
    for k in range(4): a(f"v_rcp_f32 v{32+k}, v{32+k}")
    a("s_nop 0")
    for k in range(4): a(f"v_mul_f32 v{24+k}, v{24+k}, v{32+k}")
    a("v_cvt_pk_bf16_f32 v32, v24, v25\nv_cvt_pk_bf16_f32 v34, v26, v27")
    a("v_lshlrev_b32 v24, 16, v32\nv_and_b32 v25, 0xffff0000, v32\nv_lshlrev_b32 v26, 16, v34\nv_and_b32 v27, 0xffff0000, v34")
    a("v_lshlrev_b32 v28, 16, v16\nv_and_b32 v29, 0xffff0000, v16\nv_lshlrev_b32 v30, 16, v17\nv_and_b32 v31, 0xffff0000, v17")
    gather(16, "s46", ".LZ_s")
    ts(10)
    a("v_cvt_pk_bf16_f32 v32, v32, v33\nv_cvt_pk_bf16_f32 v34, v34, v35")
    a("v_and_b32 v33, 0xffff0000, v32\nv_lshlrev_b32 v32, 16, v32\nv_and_b32 v35, 0xffff0000, v34\nv_lshlrev_b32 v34, 16, v34")
    for k in range(4): a(f"v_mul_f32 v{32+k}, v{32+k}, v{24+k}")
    a("v_cvt_pk_bf16_f32 v32, v32, v33\nv_cvt_pk_bf16_f32 v34, v34, v35")
    a("v_and_b32 v33, 0xffff0000, v32\nv_lshlrev_b32 v32, 16, v32\nv_and_b32 v35, 0xffff0000, v34\nv_lshlrev_b32 v34, 16, v34")
    for k in range(4): a(f"v_add_f32 v{32+k}, v{32+k}, v{28+k}")
    a("v_cvt_pk_bf16_f32 v32, v32, v33\nv_cvt_pk_bf16_f32 v33, v34, v35")
    a("s_mov_b64 exec, 0xff")
    a("buffer_store_dwordx2 v[32:33], v14, s[32:35], s45 offen")
    if cfg.dbgt:
        a("s_memrealtime s[48:49]")
        a("s_waitcnt lgkmcnt(0)")
        a("v_mov_b32 v10, s48")
        a("s_lshl_b32 s45, s44, 2")
        a("buffer_store_dword v10, v9, s[12:15], s45 offen offset:8")
        if cfg.amp:
            a("buffer_load_dword v10, v9, s[12:15], 0 offen offset:4 sc1")
            a("s_waitcnt vmcnt(0)")
            a("v_readfirstlane_b32 s50, v10")
            a("s_sub_u32 s51, s48, s50")
            a("s_min_u32 s51, s51, 10000")
            a(f"s_mul_i32 s51, s51, {cfg.amp}")
            a("s_add_u32 s51, s51, s48")
            a(".LZ_amp:")
            a("s_memrealtime s[48:49]")
            a("s_waitcnt lgkmcnt(0)")
            a("s_sub_u32 s52, s48, s51")
            a("s_cmp_lt_i32 s52, 0")
            a("s_cbranch_scc1 .LZ_amp")
    ts(11)
    a(".LA_exit:")
    ts_flush()
    a(".L_end:")
    a("s_endpgm")
    a(".L_codeend:")
    body = a.text()
    return assemble([(K, 256, 512, 163840)], [(K, body, 256, 102, 256, "")]), body

if __name__ == "__main__":
    import argparse
    ap = argparse.ArgumentParser()
    ap.add_argument("-o", default="k.s")
    ap.add_argument("--set", action="append", default=[])
    args = ap.parse_args()
    for s in args.set:
        k, v = s.split("=")
        setattr(Cfg, k, eval(v))
    txt, body = gen(Cfg)
    open(args.o, "w").write(txt)
    for p in hazard.check(txt): print("HAZARD", p)
```

```python
import sys
from asmlib import *
import hazard

WS_H1 = 0x000000
WS_H4 = 0x020000
WS_SLOW = 0x040000
WS_Q  = 0x080000
WS_QF = 0x0A0000
WS_GO = 0x0B0000
WS_ML = 0x100000
WS_S  = 0x200000
WS_F  = 0x300000
WS_G  = 0x380000
WS_O  = 0x400000
WS_TS = 0x1000000
WS_SIZE = 268435456
LOG2E = 1.4426950408889634
QSCALE = LOG2E * 128 ** -0.5
import struct
def f2u(x): return struct.unpack("<I", struct.pack("<f", x))[0]

class Cfg:
    ts = False
    npre = 2
    go_cnt = 8
    cwin = 12
    nsamp = 7
    samp_sleep = 3
    prefetch = True
    poll_sleep = 1
    nt = "nt"
    nt_wo = ""
    spin = 30000
    dbgt = False
    amp = 0
    wuk_wait = 3
    fast_tries = 12
    slow_now = True
    tlbw = 0
    ns_cnt = 6
    h4ts = False
    f1_on = 'W'
    ml_pos = 15
    use_go = True
    pf_pre = False
    f1_gate = 0
    pf_nt = ''
    pf_cus = 16
    f1_delay = False
    nostore = False
    ost = 'sc1'
    nof1 = False
    h1ts = False
    a_nsleep = 20
    go_sleep = 4
    pre_rows = 1
    pf_wave = 1
    nt_wq = ''
    wq_wait = None
    nt_wuk = 'nt'
    pf_cnt = 6
    pf_delay = True
    wq_first = 1
    cwin1 = 2
    n1 = 4
    wo_wait = None
    nchain = 1
    q_row = 32
    q_ext = 0
    go_row = 31
    nonce_row = 4
    ml_early = 16
    pf = False
    z_pre = 32
    wo_bar = True
    go_group = True
    pv_pre = True

def gen(cfg=Cfg):
    a = Asm()
    K = NAME + "_kernel"
    NT = cfg.nt
    tsn = [0]
    def ts(idx):
        if cfg.ts:
            a(f"s_memrealtime s[{64+2*idx}:{65+2*idx}]")
    def ts_flush(nmax=16):
        if not cfg.ts: return
        a("s_waitcnt lgkmcnt(0)")
        a("s_lshl_b32 s44, s2, 3\ns_add_u32 s44, s44, s3\ns_lshl_b32 s44, s44, 6")
        a(f"s_add_u32 s44, s44, {WS_TS}")
        a("s_mov_b64 exec, 1")
        a("v_mov_b32 v1, 0")
        for q in range(4):
            for k in range(4):
                a(f"v_mov_b32 v{4+k}, s{64+2*(4*q+k)}")
            a(f"buffer_store_dwordx4 v[4:7], v1, s[8:11], s44 offen offset:{16*q}")
            a("s_nop 1")
        a("s_waitcnt vmcnt(0)")
    def srd(base, size):
        a(f"s_mov_b32 s{base+2}, {size}\ns_mov_b32 s{base+3}, 0x20000")
    def allreduce16(v, t, op):
        for r in (8, 4, 2, 1):
            a("s_nop 1")
            a(f"{op}_dpp v{v}, v{v}, v{v} row_ror:{r} row_mask:0xf bank_mask:0xf")
        for sw in ("v_permlane16_swap_b32", "v_permlane32_swap_b32"):
            a(f"v_mov_b32 v{t}, v{v}")
            a("s_nop 1")
            a(f"{sw} v{v}, v{t}")
            a(f"{op} v{v}, v{v}, v{t}")
    def allreduce2(v, w, t, u, op):
        for r in (8, 4, 2, 1):
            a("s_nop 0")
            a(f"{op}_dpp v{v}, v{v}, v{v} row_ror:{r} row_mask:0xf bank_mask:0xf")
            a(f"{op}_dpp v{w}, v{w}, v{w} row_ror:{r} row_mask:0xf bank_mask:0xf")
        for sw in ("v_permlane16_swap_b32", "v_permlane32_swap_b32"):
            a(f"v_mov_b32 v{t}, v{v}\nv_mov_b32 v{u}, v{w}\ns_nop 0")
            a(f"{sw} v{v}, v{t}\n{sw} v{w}, v{u}")
            a(f"{op} v{v}, v{v}, v{t}\n{op} v{w}, v{w}, v{u}")
    def quador(v):
        for qp in ("[1,0,3,2]", "[2,3,0,1]"):
            a("s_nop 1")
            a(f"v_or_b32_dpp v{v}, v{v}, v{v} quad_perm:{qp} row_mask:0xf bank_mask:0xf")
    def halfreduce(v, t):
        for r in (8, 4, 2, 1):
            a("s_nop 1")
            a(f"v_add_f32_dpp v{v}, v{v}, v{v} row_ror:{r} row_mask:0xf bank_mask:0xf")
        a(f"v_mov_b32 v{t}, v{v}\ns_nop 1\nv_permlane16_swap_b32 v{v}, v{t}\nv_add_f32 v{v}, v{v}, v{t}")
    def ln_stats(vx, vt):
        m, t, q, u = vt + 16, vt + 17, vt + 18, vt + 19
        for i in range(8):
            a(f"v_lshlrev_b32 v{vt+2*i}, 16, v{vx+i}")
            a(f"v_and_b32 v{vt+1+2*i}, 0xffff0000, v{vx+i}")
        a(f"v_add_f32 v{m}, v{vt}, v{vt+1}\nv_add_f32 v{t}, v{vt+2}, v{vt+3}")
        for i in range(4, 16, 2): a(f"v_add_f32 v{m}, v{m}, v{vt+i}\nv_add_f32 v{t}, v{t}, v{vt+i+1}")
        a(f"v_add_f32 v{m}, v{m}, v{t}")
        halfreduce(m, t)
        a(f"v_mul_f32 v{m}, {hex(f2u(1/512))}, v{m}")
        a(f"v_sub_f32 v{t}, v{vt}, v{m}\nv_sub_f32 v{u}, v{vt+1}, v{m}\nv_mul_f32 v{q}, v{t}, v{t}\nv_fmac_f32 v{q}, v{u}, v{u}")
        for i in range(2, 16, 2): a(f"v_sub_f32 v{t}, v{vt+i}, v{m}\nv_sub_f32 v{u}, v{vt+i+1}, v{m}\nv_fmac_f32 v{q}, v{t}, v{t}\nv_fmac_f32 v{q}, v{u}, v{u}")
        halfreduce(q, t)
        a(f"v_mul_f32 v{q}, {hex(f2u(1/512))}, v{q}")
        a(f"v_cvt_pk_bf16_f32 v{m}, v{m}, v{q}")
        a(f"v_mov_b32 v{t}, v{m}\ns_nop 1\nv_permlane32_swap_b32 v{m}, v{t}")
        a(f"v_cndmask_b32 v{m}, v{m}, v{t}, s[58:59]")
        a(f"v_and_b32 v{q}, 0xffff0000, v{m}\nv_lshlrev_b32 v{m}, 16, v{m}")
        a(f"v_add_f32 v{q}, {hex(f2u(1e-5))}, v{q}")
        a(f"v_cvt_pk_bf16_f32 v{q}, v{q}, v{q}\nv_and_b32 v{q}, 0xffff0000, v{q}\nv_sqrt_f32 v{q}, v{q}\ns_nop 0")
        a(f"v_cvt_pk_bf16_f32 v{q}, v{q}, v{q}\nv_and_b32 v{q}, 0xffff0000, v{q}\nv_rcp_f32 v{q}, v{q}")
    def ln_apply(vf, vt):
        m, q = vt + 16, vt + 18
        for i in range(4):
            a(f"v_lshlrev_b32 v{vt+2*i}, 16, v{vf+i}")
            a(f"v_and_b32 v{vt+1+2*i}, 0xffff0000, v{vf+i}")
        for i in range(8): a(f"v_sub_f32 v{vt+i}, v{vt+i}, v{m}")
        for i in range(4): a(f"v_cvt_pk_bf16_f32 v{vf+i}, v{vt+2*i}, v{vt+1+2*i}")
        for i in range(4):
            a(f"v_lshlrev_b32 v{vt+2*i}, 16, v{vf+i}")
            a(f"v_and_b32 v{vt+1+2*i}, 0xffff0000, v{vf+i}")
        for i in range(8): a(f"v_mul_f32 v{vt+i}, v{vt+i}, v{q}")
        for i in range(4): a(f"v_cvt_pk_bf16_f32 v{vf+i}, v{vt+2*i}, v{vt+1+2*i}")
    def layernorm(vx, vo, vt):
        f = [vt + i for i in range(8)]
        s_, t, u = vt + 8, vt + 9, vt + 10
        for i in range(4):
            a(f"v_lshlrev_b32 v{f[2*i]}, 16, v{vx+i}")
            a(f"v_and_b32 v{f[2*i+1]}, 0xffff0000, v{vx+i}")
        a(f"v_add_f32 v{s_}, v{f[0]}, v{f[1]}\nv_add_f32 v{t}, v{f[2]}, v{f[3]}\nv_add_f32 v{u}, v{f[4]}, v{f[5]}")
        a(f"v_add_f32 v{s_}, v{s_}, v{f[6]}\nv_add_f32 v{t}, v{t}, v{f[7]}\nv_add_f32 v{s_}, v{s_}, v{u}\nv_add_f32 v{s_}, v{s_}, v{t}")
        allreduce16(s_, t, "v_add_f32")
        a(f"v_mul_f32 v{s_}, {hex(f2u(1/512))}, v{s_}")
        m2 = vt + 11
        a(f"v_sub_f32 v{t}, v{f[0]}, v{s_}\nv_mul_f32 v{m2}, v{t}, v{t}")
        for i in range(1, 8):
            a(f"v_sub_f32 v{t}, v{f[i]}, v{s_}\nv_fmac_f32 v{m2}, v{t}, v{t}")
        allreduce16(m2, t, "v_add_f32")
        a(f"v_mul_f32 v{m2}, {hex(f2u(1/512))}, v{m2}")
        a(f"v_cvt_pk_bf16_f32 v{t}, v{s_}, v{m2}")
        a(f"v_lshlrev_b32 v{s_}, 16, v{t}\nv_and_b32 v{m2}, 0xffff0000, v{t}")
        a(f"v_add_f32 v{m2}, {hex(f2u(1e-5))}, v{m2}")
        a(f"v_cvt_pk_bf16_f32 v{m2}, v{m2}, v{m2}\nv_and_b32 v{m2}, 0xffff0000, v{m2}\nv_sqrt_f32 v{m2}, v{m2}")
        for i in range(8): a(f"v_sub_f32 v{f[i]}, v{f[i]}, v{s_}")
        a(f"v_cvt_pk_bf16_f32 v{m2}, v{m2}, v{m2}\nv_and_b32 v{m2}, 0xffff0000, v{m2}\nv_rcp_f32 v{m2}, v{m2}")
        for i in range(4): a(f"v_cvt_pk_bf16_f32 v{vo+i}, v{f[2*i]}, v{f[2*i+1]}")
        for i in range(4):
            a(f"v_lshlrev_b32 v{f[2*i]}, 16, v{vo+i}\nv_and_b32 v{f[2*i+1]}, 0xffff0000, v{vo+i}")
        for i in range(8): a(f"v_mul_f32 v{f[i]}, v{f[i]}, v{m2}")
        for i in range(4): a(f"v_cvt_pk_bf16_f32 v{vo+i}, v{f[2*i]}, v{f[2*i+1]}")
    def fconsts(vN):
        a("s_mov_b32 s52, 0x05040100\ns_mov_b32 s53, 0x07060302")
        a("s_mov_b32 s54, 0xffff0000\ns_mov_b32 s55, 0xffff0000")
        a("s_mov_b32 s56, 0\ns_mov_b32 s57, -1")
    def transpose8(src, dst):
        for j in range(8):
            for e in range(4):
                a(f"v_perm_b32 v{dst+4*j+e}, v{src+4*(2*e+1)+(j>>1)}, v{src+4*(2*e)+(j>>1)}, s{52+(j&1)}")
    def gemv_out(afrag, wfrag, voff, soff, tag, acc=32, out=64):
        for j in range(8):
            a(f"v_mfma_f32_16x16x32_bf16 v[{acc+4*j}:{acc+3+4*j}], v[{afrag}:{afrag+3}], v[{wfrag+4*j}:{wfrag+3+4*j}], 0")
        a("s_nop 4")
        for k in range(4):
            a(f"v_cndmask_b32 v{out+k}, v{acc+4*k}, v{acc+4*(4+k)}, s[54:55]")
        for k in range(4):
            a(f"v_cndmask_b32 v{out+4+k}, v{acc+1+4*k}, v{acc+1+4*(4+k)}, s[54:55]")
        for k in range(4):
            a(f"v_cndmask_b32 v{out+k}, v{out+k}, v{out+4+k}, s[56:57]")
        for k in range(4):
            a(f"v_bfi_b32 v{out+k}, 3, v{tag+k}, v{out+k}")
        a(f"buffer_store_dwordx4 v[{out}:{out+3}], v{voff}, s[8:11], s{soff} offen sc1")
    def ftags(vN, tag, voff, t):
        a(f"v_and_b32 v{t}, 1, v2\nv_lshlrev_b32 v{voff}, 5, v3\nv_lshl_add_u32 v{voff}, v{t}, 4, v{voff}")
        a(f"v_lshl_add_u32 v{t}, v25, 1, v{t}\nv_lshlrev_b32 v{t}, 3, v{t}\nv_lshrrev_b32 v{tag}, v{t}, v{vN}")
        a(f"v_lshrrev_b32 v{tag+1}, 2, v{tag}\nv_lshrrev_b32 v{tag+2}, 4, v{tag}\nv_lshrrev_b32 v{tag+3}, 6, v{tag}")
    def psleep():
        if cfg.poll_sleep: a(f"s_sleep {cfg.poll_sleep}")
    def budget():
        a(f"s_movk_i32 s96, {cfg.spin}")
    def spend(exit_label):
        a("s_sub_u32 s96, s96, 1")
        a(f"s_cbranch_scc1 {exit_label}")

    if cfg.ts:
        for i in range(1, 16): a(f"s_mov_b32 s{64+2*i}, 0")
    ts(0)
    a("s_cmp_ge_u32 s2, 128")
    a("s_cbranch_scc1 .L_A")
    XN = 0x20000; XNS = 1088
    QV = 0; QS = 1024; SC = 2048; XX = 2560; YY = 3200
    a("s_load_dwordx2 s[12:13], s[0:1], 88")
    a("s_memrealtime s[48:49]")
    a("s_load_dwordx2 s[16:17], s[0:1], 16")
    a("s_load_dwordx2 s[4:5], s[0:1], 0")
    a("s_load_dwordx2 s[20:21], s[0:1], 24")
    a("s_load_dwordx2 s[8:9], s[0:1], 96")
    a("v_lshrrev_b32 v1, 6, v0")
    a("v_and_b32 v0, 63, v0")
    a("v_readfirstlane_b32 s3, v1")
    a("s_and_b32 s41, s2, 7\ns_lshl_b32 s41, s41, 2\ns_lshr_b32 s43, s2, 5\ns_add_u32 s41, s41, s43")
    a("s_bfe_u32 s42, s2, 0x20003")
    srd(16, 4194304); srd(4, 2048); srd(12, 256); srd(20, 4194304); srd(8, WS_SIZE)
    a("v_lshrrev_b32 v2, 4, v0")
    a("v_and_b32 v3, 15, v0")
    a("v_lshlrev_b32 v4, 1, v2")
    a("v_xor_b32 v4, v3, v4")
    a("v_lshlrev_b32 v4, 4, v4")
    a("v_lshl_add_u32 v5, v2, 13, v4")
    a("v_xor_b32 v6, 0x80, v5")
    a("s_lshl_b32 s44, s42, 20\ns_lshl_b32 s43, s3, 17\ns_add_u32 s44, s44, s43\ns_lshl_b32 s45, s41, 8\ns_add_u32 s44, s44, s45")
    a("s_lshl_b32 s46, s3, 12")
    a("v_lshlrev_b32 v8, 4, v0")
    a("v_mov_b32 v9, 0")
    a("s_lshl_b32 s47, s3, 10")
    a("s_mov_b32 m0, s46")
    a("s_or_b32 s45, s2, s3")
    a("s_cmp_lg_u32 s45, 0")
    a("s_waitcnt lgkmcnt(0)")
    ts(1)
    a("s_cbranch_scc1 .LW_nogen")
    if cfg.dbgt:
        a("v_mov_b32 v12, s48")
        a("buffer_store_dword v12, v9, s[12:15], 0 offen offset:4 sc1")
    a("s_mul_i32 s48, s48, 0x9E3779B1")
    a("s_lshr_b32 s49, s48, 15\ns_xor_b32 s48, s48, s49")
    a("s_mul_i32 s48, s48, 0x85EBCA6B")
    a("s_lshr_b32 s49, s48, 13\ns_xor_b32 s48, s48, s49")
    a("s_max_u32 s48, s48, 1")
    a("v_mov_b32 v12, s48")
    a("s_mov_b64 exec, 1")
    a("buffer_store_dword v12, v9, s[12:15], 0 offen sc1")
    a("s_mov_b64 exec, -1")
    a(".LW_nogen:")
    a("s_lshl_b32 s49, s41, 12")
    a("s_cmp_gt_u32 s3, 1")
    a("s_cbranch_scc1 .LW_nox")
    a("buffer_load_dwordx4 v[12:15], v8, s[4:7], s47 offen")
    a(".LW_nox:")
    a("s_mov_b32 s45, s44")
    for i in range(4):
        if i: a("s_add_u32 m0, m0, 1024\ns_add_u32 s45, s45, 32768")
        a(f"buffer_load_dwordx4 v{5 if i < 2 else 6}, s[16:19], s45 offen {NT} lds")
    a("s_cmp_lg_u32 s3, 2")
    a("s_cbranch_scc1 .LW_nowarm")
    a(f"s_lshl_b32 s45, s42, 10\ns_add_u32 s45, s45, s49")
    if WS_H1: a(f"s_add_u32 s45, s45, {WS_H1}")
    a("buffer_load_dwordx4 v[12:15], v8, s[8:11], s45 offen sc1")
    a(".LW_nowarm:")
    a("v_xor_b32 v7, v3, v2\nv_lshlrev_b32 v7, 4, v7\nv_lshl_add_u32 v7, v2, 13, v7")
    a("s_add_u32 m0, s46, 0x8000")
    a("s_mov_b32 s45, s44")
    for i in range(4):
        if i: a(f"v_xor_b32 v10, {64*i}, v7\ns_add_u32 m0, m0, 1024\ns_add_u32 s45, s45, 32768")
        a(f"buffer_load_dwordx4 v{10 if i else 7}, s[20:23], s45 offen {NT} lds")
    ts(2)
    a("s_load_dwordx2 s[24:25], s[0:1], 32")
    a("s_load_dwordx2 s[28:29], s[0:1], 40")
    a("s_load_dwordx4 s[36:39], s[0:1], 56")
    srd(24, 4194304); srd(28, 4194304)
    a("v_and_b32 v25, 1, v0")
    a("s_cmp_gt_u32 s3, 1")
    a("s_cbranch_scc1 .LW_noln")
    a("s_waitcnt vmcnt(8)")
    layernorm(12, 16, 40)
    a(f"s_mul_i32 s45, s3, {XNS}\ns_add_u32 s45, s45, {XN}")
    a("v_add_u32 v10, s45, v8")
    a("ds_write_b128 v10, v[16:19]")
    a(".LW_noln:")
    a("s_cmp_lt_u32 s2, 88\ns_cselect_b32 s62, s3, 4\ns_lshr_b32 s62, s62, 2\ns_xor_b32 s62, s62, 1")
    if cfg.nof1 or cfg.f1_on == "A": a("s_mov_b32 s62, 0")
    a("s_and_b32 s63, s2, 7\ns_lshl_b32 s63, s63, 1\ns_bfe_u32 s45, s3, 0x10001\ns_add_u32 s63, s63, s45")
    a(f"v_mul_u32_u24 v26, {XNS}, v25\nv_lshl_add_u32 v26, v2, 4, v26")
    a(f"s_lshl_b32 s45, s63, 6\ns_add_u32 s45, s45, {XN}\nv_add_u32 v23, s45, v26")
    a(f"s_lshl_b32 s45, s42, 8\ns_add_u32 s45, s45, {XN}\nv_add_u32 v24, s45, v26")
    a("v_lshrrev_b32 v20, 2, v3\nv_and_b32 v21, 1, v2\nv_lshlrev_b32 v21, 3, v21\nv_lshl_add_u32 v21, v20, 1, v21")
    a("v_bfe_u32 v22, v0, 1, 1\ns_lshl_b32 s45, s3, 1\nv_add_u32 v22, s45, v22\nv_xor_b32 v22, v22, v21\nv_lshlrev_b32 v22, 4, v22")
    a("v_lshl_add_u32 v20, v2, 3, v20\nv_lshl_add_u32 v22, v20, 8, v22\nv_lshl_add_u32 v11, v25, 3, v22")
    a("v_lshlrev_b32 v16, 9, v25\nv_lshl_add_u32 v16, v2, 4, v16")
    a("s_lshl_b32 s51, s42, 10\ns_lshl_b32 s45, s3, 6\ns_add_u32 s51, s51, s45\ns_add_u32 s51, s51, s49")
    a("s_lshl_b32 s50, s41, 2\ns_add_u32 s50, s50, s42")
    a("v_mul_u32_u24 v26, 272, v25\nv_lshl_add_u32 v26, v2, 4, v26")
    a("v_lshrrev_b32 v21, 5, v0\nv_mul_u32_u24 v21, 272, v21\nv_and_b32 v22, 31, v0\nv_lshl_add_u32 v22, v22, 3, v21")
    a(f"s_waitcnt vmcnt({cfg.ns_cnt})")
    a("s_load_dword s40, s[12:13], 0")
    a("s_waitcnt vmcnt(4) lgkmcnt(0)")
    budget()
    a(".LW_nchk:")
    a("s_cmp_lg_u32 s40, 0")
    a("s_cbranch_scc1 .LW_ngot")
    spend(".LW_ngot")
    a("buffer_load_dword v27, v9, s[12:15], 0 offen sc1")
    a("s_waitcnt vmcnt(0)")
    a("v_readfirstlane_b32 s40, v27")
    a("s_branch .LW_nchk")
    a(".LW_ngot:")
    a("v_mov_b32 v27, s40")
    ts(4)
    a("s_barrier")
    ts(5)
    for s in range(4):
        a(f"ds_read_b128 v[{32+4*s}:{35+4*s}], v24 offset:{64*s}")
        a(f"ds_read_b64_tr_b16 v[{48+4*s}:{49+4*s}], v11 offset:{(32*s)*256}")
        a(f"ds_read_b64_tr_b16 v[{50+4*s}:{51+4*s}], v11 offset:{(32*s+4)*256}")
    a("ds_read_b128 v[128:131], v23")
    a("v_lshlrev_b32 v17, 3, v2\nv_lshrrev_b32 v17, v17, v27")
    a("v_lshrrev_b32 v18, 2, v17\nv_lshrrev_b32 v19, 4, v17\nv_lshrrev_b32 v20, 6, v17")
    a("s_waitcnt lgkmcnt(10)")
    a("v_mfma_f32_16x16x32_bf16 v[64:67], v[48:51], v[32:35], 0")
    a("s_waitcnt lgkmcnt(7)")
    a("v_mfma_f32_16x16x32_bf16 v[68:71], v[52:55], v[36:39], 0")
    a("s_waitcnt lgkmcnt(4)")
    a("v_mfma_f32_16x16x32_bf16 v[64:67], v[56:59], v[40:43], v[64:67]")
    a("s_waitcnt lgkmcnt(1)")
    a("v_mfma_f32_16x16x32_bf16 v[68:71], v[60:63], v[44:47], v[68:71]")
    def publish(acc, acc2, area, slow_lab):
        a(f"s_add_u32 s45, s51, {area}" if area else "s_mov_b32 s45, s51")
        a("s_mov_b32 exec_lo, 0x00030003\ns_mov_b32 exec_hi, 0x00030003")
        a("s_nop 4")
        for k in range(4): a(f"v_add_f32 v{acc+k}, v{acc+k}, v{acc2+k}")
        for k in range(4): a(f"v_bfi_b32 v{acc+k}, 3, v{17+k}, v{acc+k}")
        a(f"buffer_store_dwordx4 v[{acc}:{acc+3}], v16, s[8:11], s45 offen")
        a(f"s_add_u32 s45, s45, {WS_SLOW}")
        a("s_cmp_eq_u32 s3, 0")
        a(f"s_cbranch_scc1 {slow_lab}")
        if cfg.slow_now: a(f"buffer_store_dwordx4 v[{acc}:{acc+3}], v16, s[8:11], s45 offen sc1")
        a(f"{slow_lab}:")
        a("s_mov_b64 exec, -1")
    def gather4(acc, area, lab, dst):
        a(f"s_add_u32 s47, s49, {area}" if area else "s_mov_b32 s47, s49")
        budget()
        a(f"{lab}_p:")
        for i in range(4):
            a(f"buffer_load_dwordx4 v[{32+4*i}:{35+4*i}], v8, s[8:11], s47 offen offset:{1024*i} sc1")
        for i in range(4):
            a(f"s_waitcnt vmcnt({3-i})")
            for k in range(4):
                a("v_xor_b32 v48, v32, v28" if i == 0 and k == 0 else f"v_bitop3_b32 v48, v48, v{32+4*i+k}, v{28+k} bitop3:0xf6")
        for k in range(4): a(f"v_add_f32 v{32+k}, v{32+k}, v{36+k}\nv_add_f32 v{40+k}, v{40+k}, v{44+k}")
        a("v_and_b32 v48, 3, v48")
        a("v_cmp_ne_u32 vcc, 0, v48")
        a(f"s_cbranch_vccz {lab}_g")
        spend(f"{lab}_g")
        a(f"s_cmp_lg_u32 s96, {cfg.spin - cfg.fast_tries}")
        a(f"s_cbranch_scc1 {lab}_p")
        a("s_mov_b32 exec_lo, 0x00030003\ns_mov_b32 exec_hi, 0x00030003")
        a(f"buffer_store_dwordx4 v[{acc}:{acc+3}], v16, s[8:11], s45 offen sc1")
        a("s_mov_b64 exec, -1")
        a(f"s_add_u32 s47, s47, {WS_SLOW}")
        a(f"s_branch {lab}_p")
        a(f"{lab}_g:")
        for k in range(4): a(f"v_add_f32 v{32+k}, v{32+k}, v{40+k}")
        a("v_cvt_pk_bf16_f32 v32, v32, v33\nv_cvt_pk_bf16_f32 v33, v34, v35")
        a(f"ds_write_b64 v22, v[32:33] offset:{dst}")
        a("s_mov_b32 exec_lo, 0x00030003\ns_mov_b32 exec_hi, 0x00030003")
        a(f"buffer_store_dwordx4 v[{acc}:{acc+3}], v16, s[8:11], s45 offen sc1")
        a("s_mov_b64 exec, -1")
    publish(64, 68, WS_H1, ".LW_s1")
    ts(6)
    a("v_and_b32 v28, 3, v0\nv_lshlrev_b32 v28, 3, v28\nv_lshrrev_b32 v28, v28, v27")
    a("v_lshrrev_b32 v29, 2, v28\nv_lshrrev_b32 v30, 4, v28\nv_lshrrev_b32 v31, 6, v28")
    a("v_xor_b32 v21, v2, v3\nv_lshlrev_b32 v21, 4, v21\nv_lshl_add_u32 v21, v3, 8, v21\nv_add_u32 v21, s46, v21")
    a("s_cmp_lg_u32 s3, 0")
    a("s_cbranch_scc1 .LW_h1w")
    gather4(64, WS_H1, ".LW_h1", QV)
    if cfg.h1ts and cfg.ts:
        ts(2)
        a(f"s_sub_u32 s72, {cfg.spin}, s96\ns_mul_i32 s72, s72, 100\ns_add_u32 s72, s72, s64\ns_add_u32 s72, s72, 100")
    a(".LW_h1w:")
    a("s_waitcnt vmcnt(2)")
    if cfg.h1ts: ts(1)
    for sq in range(4):
        if sq: a(f"v_xor_b32 v10, {64*sq}, v21")
        a(f"ds_read_b128 v[{48+4*sq}:{51+4*sq}], v{10 if sq else 21} offset:32768")
    a("s_and_b32 s45, s3, 1\ns_lshl_b32 s45, s45, 4")
    a("v_lshl_add_u32 v10, v2, 2, s45")
    a("v_lshrrev_b32 v10, v10, v27")
    for r in range(4):
        a(f"v_bfe_u32 v{72+r}, v10, {r}, 1\nv_lshlrev_b32 v{72+r}, 16, v{72+r}")
    for r in range(4): a(f"v_xor_b32 v{76+r}, 0x10000, v{72+r}")
    a("v_lshlrev_b32 v10, 8, v25\nv_lshl_add_u32 v10, v2, 3, v10\ns_lshl_b32 s45, s3, 5\nv_add_u32 v10, s45, v10")
    a(f"s_mov_b32 s47, {hex(f2u(QSCALE))}\ns_mov_b32 s53, 0xfffe0000\ns_mov_b32 s52, 0x07060302")
    a("s_waitcnt lgkmcnt(0)")
    a("s_barrier")
    for sq in range(4):
        a(f"ds_read_b128 v[{32+4*sq}:{35+4*sq}], v26 offset:{QV+64*sq}")
    a("s_waitcnt lgkmcnt(2)")
    a("v_mfma_f32_16x16x32_bf16 v[64:67], v[48:51], v[32:35], 0")
    a("v_mfma_f32_16x16x32_bf16 v[68:71], v[52:55], v[36:39], 0")
    a("s_waitcnt lgkmcnt(0)")
    a("v_mfma_f32_16x16x32_bf16 v[64:67], v[56:59], v[40:43], v[64:67]")
    a("v_mfma_f32_16x16x32_bf16 v[68:71], v[60:63], v[44:47], v[68:71]")
    a("s_mov_b32 exec_lo, 0x00030003\ns_mov_b32 exec_hi, 0x00030003")
    a("s_nop 5")
    for k in range(4): a(f"v_add_f32 v{64+k}, v{64+k}, v{68+k}")
    for k in range(4): a(f"v_mul_f32 v{64+k}, s47, v{64+k}")
    for k in range(4): a(f"v_add_u32 v{64+k}, v{64+k}, v{76+k}")
    for k in range(4): a(f"v_and_or_b32 v{64+k}, v{64+k}, s53, v{72+k}")
    a("v_perm_b32 v64, v65, v64, s52\nv_perm_b32 v65, v67, v66, s52")
    a(f"ds_write_b64 v10, v[64:65] offset:{QS}")
    a("s_mov_b64 exec, -1")
    a("s_waitcnt lgkmcnt(0)")
    a("s_barrier")
    a("s_cmp_lg_u32 s3, 0")
    a("s_cbranch_scc1 .LW_go")
    a(f"ds_read_b128 v[32:35], v8 offset:{QS}")
    a("v_lshlrev_b32 v36, 15, v2\nv_lshl_add_u32 v36, v3, 4, v36")
    a(f"s_lshl_b32 s45, s41, 10\ns_lshl_b32 s47, s42, 8\ns_add_u32 s45, s45, s47\ns_add_u32 s45, s45, {WS_Q}")
    a("s_mov_b32 exec_hi, 0")
    a("s_waitcnt lgkmcnt(0)")
    a("buffer_store_dwordx4 v[32:35], v36, s[8:11], s45 offen sc1")
    a("s_mov_b32 exec_lo, 1")
    ts(7)
    if cfg.use_go:
        a(f"s_lshl_b32 s45, s2, 7\ns_add_u32 s45, s45, {WS_GO}")
        budget()
        a(".LW_gop:")
        spend(".LW_gog")
        a(f"s_sleep {cfg.go_sleep}")
        a("buffer_load_dword v37, v9, s[8:11], s45 offen sc1")
        a("s_waitcnt vmcnt(0)")
        a("v_readfirstlane_b32 s47, v37")
        a("s_cmp_lg_u32 s47, s40")
        a("s_cbranch_scc1 .LW_gop")
        a(".LW_gog:")
    a("s_mov_b64 exec, -1")
    a(".LW_go:")
    if cfg.tlbw:
        a(f"s_cmp_lg_u32 s3, 5")
        a("s_cbranch_scc1 .LW_notlb")
        a("s_waitcnt lgkmcnt(0)")
        a(f"v_lshlrev_b32 v44, {cfg.tlbw}, v0")
        n = (1 << 20) >> cfg.tlbw
        a(f"s_mov_b64 exec, {(1 << min(n, 32)) - 1}" if n < 64 else "s_nop 0")
        a("s_lshl_b32 s45, s42, 20")
        a("buffer_load_dword v45, v44, s[24:27], s45 offen")
        a("s_mov_b32 s32, s36\ns_mov_b32 s33, s37")
        srd(32, 1409024)
        a("s_and_b32 s45, s2, 7\ns_mul_i32 s45, s45, 176128")
        a(f"s_mov_b64 exec, {(1 << max(1, min(n // 4, 32))) - 1}")
        a("buffer_load_dword v45, v44, s[32:35], s45 offen")
        a("s_mov_b32 s32, s38\ns_mov_b32 s33, s39")
        a("buffer_load_dword v45, v44, s[32:35], s45 offen")
        a("s_lshl_b32 s45, s41, 17")
        a(f"s_mov_b64 exec, {(1 << max(1, min(n // 8, 32))) - 1}")
        a("buffer_load_dword v45, v44, s[28:31], s45 offen")
        a("s_mov_b64 exec, 1")
        a(f"s_lshl_b32 s45, s41, 17\ns_add_u32 s45, s45, {WS_O}")
        a("buffer_load_dword v45, v9, s[8:11], s45 offen offset:0")
        a(f"s_mov_b32 s45, {WS_S + 0x40000}")
        a("buffer_load_dword v45, v9, s[8:11], s45 offen")
        a(f"s_mov_b32 s45, {WS_ML + 0x40000}")
        a("buffer_load_dword v45, v9, s[8:11], s45 offen")
        a("s_mov_b64 exec, -1")
        a(".LW_notlb:")
    a("v_and_b32 v12, 1, v2\nv_lshlrev_b32 v12, 5, v12\nv_lshrrev_b32 v13, 1, v2\nv_lshl_add_u32 v12, v13, 4, v12")
    a("v_lshl_add_u32 v12, v12, 13, v4\nv_xor_b32 v13, 0x80, v12")
    a("s_lshl_b32 s44, s42, 7\ns_lshr_b32 s45, s3, 2\ns_lshl_b32 s45, s45, 6\ns_add_u32 s44, s44, s45")
    a("s_and_b32 s45, s3, 3\ns_lshl_b32 s45, s45, 2\ns_add_u32 s44, s44, s45\ns_lshl_b32 s44, s44, 13")
    a("s_lshl_b32 s45, s41, 8\ns_add_u32 s44, s44, s45")
    a("v_lshl_add_u32 v14, v2, 10, v4\nv_xor_b32 v15, 0x80, v14")
    a("s_lshl_b32 s43, s41, 17\ns_lshl_b32 s45, s3, 14\ns_add_u32 s43, s43, s45\ns_lshl_b32 s45, s42, 8\ns_add_u32 s43, s43, s45")
    a("s_add_u32 m0, s46, 0x10000")
    a("s_barrier")
    ts(8)
    if cfg.f1_on == "W":
        a("s_cmp_eq_u32 s62, 0")
        a("s_cbranch_scc1 .LW_nof1")
        a("s_bitcmp1_b32 s3, 0")
        a("s_cselect_b32 s32, s38, s36\ns_cselect_b32 s33, s39, s37")
        srd(32, 1409024)
        a("v_mul_u32_u24 v46, 22016, v2\nv_lshl_add_u32 v46, v3, 4, v46")
        a(f"s_mul_i32 s45, s63, {32*2752}\ns_lshr_b32 s47, s2, 3\ns_lshl_b32 s47, s47, 8\ns_add_u32 s45, s45, s47")
        for i in range(8):
            a(f"buffer_load_dwordx4 v[{132+4*i}:{135+4*i}], v46, s[32:35], s45 offen {NT}")
            if i < 7: a("s_add_u32 s45, s45, 2752")
        a(".LW_nof1:")
        if cfg.f1_gate:
            a(f"s_waitcnt vmcnt({cfg.f1_gate - 1})")
            a("s_barrier")
    for i in range(4):
        if i: a("s_add_u32 m0, m0, 1024\ns_add_u32 s44, s44, 8192")
        a(f"buffer_load_dwordx4 v{12 if i < 2 else 13}, s[24:27], s44 offen {NT} lds")
    a("s_add_u32 m0, s46, 0x18000")
    for i in range(4):
        if i: a("s_add_u32 m0, m0, 1024\ns_add_u32 s43, s43, 4096")
        else: a("s_nop 0")
        a(f"buffer_load_dwordx4 v{14 if i < 2 else 15}, s[28:31], s43 offen {NT} lds")
    a("s_cmp_lg_u32 s3, 6")
    a("s_cbranch_scc1 .LW_nowarm2")
    a(f"s_lshl_b32 s45, s42, 10\ns_add_u32 s45, s45, s49\ns_add_u32 s45, s45, {WS_H4}")
    a("buffer_load_dwordx4 v[32:35], v8, s[8:11], s45 offen sc1")
    a(".LW_nowarm2:")
    if cfg.f1_on == "W":
        a("s_cmp_eq_u32 s62, 0")
        a("s_cbranch_scc1 .LW_nof2")
        fconsts(27)
        ftags(27, 40, 44, 45)
        a("v_lshrrev_b32 v45, 1, v2\nv_lshl_add_u32 v44, v45, 9, v44")
        a(f"s_lshr_b32 s61, s2, 3\ns_lshl_b32 s61, s61, 15\ns_and_b32 s45, s3, 1\ns_lshl_b32 s45, s45, 14\ns_add_u32 s61, s61, s45\ns_lshl_b32 s45, s63, 10\ns_add_u32 s61, s61, s45\ns_add_u32 s61, s61, {WS_G}")
        a("s_waitcnt vmcnt(8)")
        transpose8(132, 164)
        a("s_nop 0")
        gemv_out(128, 164, 44, 61, 40, acc=64, out=96)
        ts(13)
        a("s_waitcnt vmcnt(1)")
        a("s_branch .LW_f2d")
        a(".LW_nof2:")
        a("s_waitcnt vmcnt(0)")
        a(".LW_f2d:")
    else:
        a("s_waitcnt vmcnt(0)")
    a("v_lshl_add_u32 v12, v2, 8, v4\nv_xor_b32 v13, 0x80, v12")
    a(f"s_lshl_b32 s44, s50, 15\ns_add_u32 s44, s44, s46\ns_add_u32 s44, s44, {WS_O}")
    a("s_add_u32 s46, s46, 0x20000")
    a("v_add_u32 v14, s46, v12\nv_xor_b32 v15, 0x80, v14")
    for k in range(4):
        a(f"v_bfe_u32 v10, v28, {2*k}, 1\nv_bfe_u32 v21, v28, {2*k+1}, 1\nv_lshl_or_b32 v{40+k}, v21, 16, v10")
    a("v_mul_u32_u24 v21, 272, v25\nv_lshl_add_u32 v21, v2, 3, v21\ns_lshl_b32 s45, s3, 5\nv_add_u32 v21, s45, v21")
    a("v_lshlrev_b32 v23, 4, v2")
    a("v_add_u32 v10, 0x10000, v11\nv_add_u32 v11, 0x20000, v11")
    a("s_mov_b32 s52, 0xaaaaaaaa\ns_mov_b32 s53, 0xaaaaaaaa")
    ts(9)
    a("s_barrier")
    for s in range(4):
        a(f"ds_read_b64_tr_b16 v[{96+4*s}:{97+4*s}], v10 offset:{(32*s)*256}")
        a(f"ds_read_b64_tr_b16 v[{98+4*s}:{99+4*s}], v10 offset:{(32*s+4)*256}")
    a("s_waitcnt lgkmcnt(4)")
    for s in range(4):
        a(f"ds_read_b64_tr_b16 v[{112+4*s}:{113+4*s}], v10 offset:{32768+(32*s)*256}")
        a(f"ds_read_b64_tr_b16 v[{114+4*s}:{115+4*s}], v10 offset:{32768+(32*s+4)*256}")
    a("s_cmp_lg_u32 s3, 0")
    a("s_cbranch_scc1 .LW_mlw")
    a("v_lshlrev_b32 v24, 11, v0")
    a(f"s_lshl_b32 s45, s42, 9\ns_lshl_b32 s47, s41, 4\ns_add_u32 s45, s45, s47\ns_add_u32 s45, s45, {WS_ML}\ns_add_u32 s47, s45, {64*2048}")
    budget()
    a("s_and_b32 s48, s2, 63")
    a("s_lshl_b64 exec, 1, s48")
    a(".LW_ml1:")
    spend(".LW_ml2")
    psleep()
    a("buffer_load_dwordx4 v[32:35], v24, s[8:11], s45 offen sc1")
    a("s_waitcnt vmcnt(0)")
    a("v_cmp_ne_u32 vcc, s40, v34")
    a("s_cbranch_vccnz .LW_ml1")
    a(".LW_ml2:")
    ts(3)
    budget()
    a("s_mov_b64 s[58:59], -1\ns_mov_b64 s[60:61], -1")
    a(".LW_mlp:")
    spend(".LW_mlx")
    a("s_mov_b64 exec, s[58:59]")
    a("s_cbranch_execz .LW_mls0")
    a("buffer_load_dwordx4 v[32:35], v24, s[8:11], s45 offen sc1")
    a(".LW_mls0:")
    a("s_mov_b64 exec, s[60:61]")
    a("s_cbranch_execz .LW_mls1")
    a("buffer_load_dwordx4 v[36:39], v24, s[8:11], s47 offen sc1")
    a(".LW_mls1:")
    a("s_mov_b64 exec, -1")
    a("s_waitcnt vmcnt(0)")
    a("v_cmp_ne_u32 s[58:59], s40, v34")
    a("v_cmp_ne_u32 s[60:61], s40, v38")
    a("s_or_b64 vcc, s[58:59], s[60:61]")
    a("s_cbranch_vccnz .LW_mlp")
    a(".LW_mlx:")
    a("s_mov_b64 exec, -1")
    a(".LW_mlw:")
    a("s_barrier")
    ts(10)
    def paydma():
        a("s_mov_b32 m0, s46")
        for i in range(4):
            if i == 0: a("s_nop 0")
            a(f"buffer_load_dwordx4 v{12 if i < 2 else 13}, s[8:11], s44 offen offset:{1024*i} sc1 lds")
    paydma()
    a("s_cmp_lg_u32 s3, 0")
    a("s_cbranch_scc1 .LW_scw")
    a("v_mov_b32 v48, v32\nv_mov_b32 v49, v36")
    allreduce2(48, 49, 50, 51, "v_max_f32")
    a("v_sub_f32 v48, v32, v48\nv_sub_f32 v49, v36, v49")
    a("v_exp_f32 v48, v48\nv_exp_f32 v49, v49")
    a("v_lshlrev_b32 v50, 1, v0")
    a("v_mul_f32 v52, v48, v33\nv_mul_f32 v53, v49, v37")
    allreduce2(52, 53, 54, 55, "v_add_f32")
    a("v_rcp_f32 v52, v52\nv_rcp_f32 v53, v53")
    a("s_nop 0")
    a("v_mul_f32 v48, v48, v52\nv_mul_f32 v49, v49, v53")
    a("v_cvt_pk_bf16_f32 v48, v48, v49")
    a(f"ds_write_b16 v50, v48 offset:{SC}")
    a(f"ds_write_b16_d16_hi v50, v48 offset:{SC+128}")
    a(".LW_scw:")
    budget()
    a(".LW_pv:")
    a("s_waitcnt vmcnt(0)")
    for i in range(4):
        a(f"ds_read_b128 v[{64+4*i}:{67+4*i}], v{14 if i < 2 else 15} offset:{1024*i}")
    for i in range(4):
        a(f"s_waitcnt lgkmcnt({3-i})")
        for k in range(4):
            a("v_xor_b32 v44, v64, v40" if i == 0 and k == 0 else f"v_bitop3_b32 v44, v44, v{64+4*i+k}, v{40+k} bitop3:0xf6")
    a("v_and_b32 v44, 0x10001, v44")
    a("v_cmp_ne_u32 vcc, 0, v44")
    a("s_cbranch_vccz .LW_pk")
    spend(".LW_pk")
    paydma()
    a("s_branch .LW_pv")
    a(".LW_pk:")
    ts(11)
    a("s_barrier")
    for s in range(4):
        a(f"ds_read_b128 v[{48+4*s}:{51+4*s}], v23 offset:{SC+64*s}")
        a(f"ds_read_b64_tr_b16 v[{64+4*s}:{65+4*s}], v11 offset:{(32*s)*256}")
        a(f"ds_read_b64_tr_b16 v[{66+4*s}:{67+4*s}], v11 offset:{(32*s+4)*256}")
    a("s_waitcnt lgkmcnt(9)")
    a("v_mfma_f32_16x16x32_bf16 v[80:83], v[64:67], v[48:51], 0")
    a("s_waitcnt lgkmcnt(3)")
    a("v_mfma_f32_16x16x32_bf16 v[84:87], v[72:75], v[56:59], 0")
    a("v_mfma_f32_16x16x32_bf16 v[80:83], v[68:71], v[52:55], v[80:83]")
    a("s_waitcnt lgkmcnt(0)")
    a("v_mfma_f32_16x16x32_bf16 v[84:87], v[76:79], v[60:63], v[84:87]")
    a("s_mov_b32 exec_lo, 0x00030003\ns_mov_b32 exec_hi, 0x00030003")
    a("s_nop 5")
    for k in range(4): a(f"v_cndmask_b32 v{80+k}, v{80+k}, v{84+k}, s[52:53]")
    a("v_cvt_pk_bf16_f32 v80, v80, v81\nv_cvt_pk_bf16_f32 v81, v82, v83")
    a(f"ds_write_b64 v21, v[80:81] offset:{XX}")
    a("s_mov_b64 exec, -1")
    a("s_waitcnt lgkmcnt(0)")
    a("s_barrier")
    ts(14)
    for s in range(4):
        a(f"ds_read_b128 v[{48+4*s}:{51+4*s}], v26 offset:{XX+64*s}")
    a("s_waitcnt lgkmcnt(2)")
    a("v_mfma_f32_16x16x32_bf16 v[80:83], v[96:99], v[48:51], 0")
    a("v_mfma_f32_16x16x32_bf16 v[84:87], v[100:103], v[52:55], 0")
    a("s_waitcnt lgkmcnt(0)")
    a("v_mfma_f32_16x16x32_bf16 v[80:83], v[104:107], v[56:59], v[80:83]")
    a("v_mfma_f32_16x16x32_bf16 v[84:87], v[108:111], v[60:63], v[84:87]")
    publish(80, 84, WS_H4, ".LW_s4")
    if cfg.h4ts: ts(1)
    a("s_cmp_lg_u32 s3, 0")
    a("s_cbranch_scc1 .LW_h4w")
    gather4(80, WS_H4, ".LW_h4", YY)
    if cfg.h4ts and cfg.ts:
        ts(2)
        a(f"s_sub_u32 s72, {cfg.spin}, s96\ns_mul_i32 s72, s72, 100\ns_add_u32 s72, s72, s64\ns_add_u32 s72, s72, 100")
    a("s_waitcnt lgkmcnt(0)")
    a(".LW_h4w:")
    a(f"s_add_u32 s45, s51, {WS_S}")
    a("s_barrier")
    ts(15)
    for s in range(4):
        a(f"ds_read_b128 v[{48+4*s}:{51+4*s}], v26 offset:{YY+64*s}")
    a("s_waitcnt lgkmcnt(2)")
    a("v_mfma_f32_16x16x32_bf16 v[64:67], v[112:115], v[48:51], 0")
    a("v_mfma_f32_16x16x32_bf16 v[68:71], v[116:119], v[52:55], 0")
    a("s_waitcnt lgkmcnt(0)")
    a("v_mfma_f32_16x16x32_bf16 v[64:67], v[120:123], v[56:59], v[64:67]")
    a("v_mfma_f32_16x16x32_bf16 v[68:71], v[124:127], v[60:63], v[68:71]")
    a("s_mov_b32 exec_lo, 0x00030003\ns_mov_b32 exec_hi, 0x00030003")
    a("s_nop 5")
    for k in range(4): a(f"v_add_f32 v{64+k}, v{64+k}, v{68+k}")
    for k in range(4): a(f"v_bfi_b32 v{64+k}, 3, v{17+k}, v{64+k}")
    a("buffer_store_dwordx4 v[64:67], v16, s[8:11], s45 offen sc1")
    ts(12)
    ts_flush()
    a("s_endpgm")

    QR = 131072
    MX = QR; LS = QR + 512; FLQ = QR + 1024; PX = QR + 2048
    FXN = QR + 16384; FG = FXN + 2304; FH = FG + 8192
    ZF, ZS = 0, 512
    def zprolog():
        a("v_and_b32 v3, 7, v0\nv_lshrrev_b32 v2, 3, v0")
        a("v_lshlrev_b32 v4, 12, v2\nv_lshl_add_u32 v4, v3, 4, v4")
        a("v_and_b32 v5, 3, v0\nv_lshlrev_b32 v5, 3, v5\nv_mov_b32 v6, s40\nv_lshrrev_b32 v10, v5, v6")
        a("v_lshrrev_b32 v11, 2, v10\nv_lshrrev_b32 v12, 4, v10\nv_lshrrev_b32 v13, 6, v10")
    def zreduce():
        for k in range(4):
            a(f"v_add_f32_dpp v{32+k}, v{32+k}, v{32+k} row_ror:8 row_mask:0xf bank_mask:0xf")
        for sw in ("v_permlane16_swap_b32", "v_permlane32_swap_b32"):
            for k in range(4): a(f"v_mov_b32 v{36+k}, v{32+k}")
            a("s_nop 0")
            for k in range(4): a(f"{sw} v{32+k}, v{36+k}")
            for k in range(4): a(f"v_add_f32 v{32+k}, v{32+k}, v{36+k}")
    def zgather(n, sbase, lab, masks):
        budget()
        a(f"{lab}_1:")
        spend(f"{lab}_2")
        psleep()
        a(f"s_mov_b64 exec, s[{masks[0]}:{masks[0]+1}]")
        a(f"buffer_load_dwordx4 v[32:35], v4, s[8:11], {sbase} offen sc1")
        a("s_waitcnt vmcnt(0)")
        a("v_xor_b32 v20, v32, v10")
        for k in range(1, 4): a(f"v_bitop3_b32 v20, v20, v{32+k}, v{10+k} bitop3:0xf6")
        quador(20)
        a("v_and_b32 v20, 3, v20")
        a(f"v_cmp_ne_u32 s[{masks[0]}:{masks[0]+1}], 0, v20")
        a(f"s_bcnt1_i32_b64 s48, s[{masks[0]}:{masks[0]+1}]")
        a(f"s_cmp_gt_u32 s48, {cfg.z_pre}")
        a(f"s_cbranch_scc1 {lab}_1")
        a(f"{lab}_2:")
        budget()
        a(f"{lab}_p:")
        spend(f"{lab}_ok")
        for i in range(n):
            a(f"s_mov_b64 exec, s[{masks[i]}:{masks[i]+1}]")
            a(f"s_cbranch_execz {lab}_s{i}")
            if i: a(f"s_add_u32 s48, {sbase}, {32768*i}")
            a(f"buffer_load_dwordx4 v[{32+4*i}:{35+4*i}], v4, s[8:11], {'s48' if i else sbase} offen sc1")
            a(f"{lab}_s{i}:")
        a("s_waitcnt vmcnt(0)")
        a("s_mov_b64 vcc, 0")
        a("s_mov_b64 exec, -1")
        for i in range(n):
            a(f"v_xor_b32 v{60+i}, v{32+4*i}, v10")
            for k in range(1, 4): a(f"v_bitop3_b32 v{60+i}, v{60+i}, v{32+4*i+k}, v{10+k} bitop3:0xf6")
        for qp in ("[1,0,3,2]", "[2,3,0,1]"):
            if n < 3: a("s_nop 0")
            for i in range(n): a(f"v_or_b32_dpp v{60+i}, v{60+i}, v{60+i} quad_perm:{qp} row_mask:0xf bank_mask:0xf")
        for i in range(n): a(f"v_and_b32 v{60+i}, 3, v{60+i}")
        for i in range(n):
            a(f"s_mov_b64 exec, s[{masks[i]}:{masks[i]+1}]")
            a(f"v_cmp_ne_u32 s[{masks[i]}:{masks[i]+1}], 0, v{60+i}")
            a(f"s_or_b64 vcc, vcc, s[{masks[i]}:{masks[i]+1}]")
        a(f"s_cbranch_vccnz {lab}_p")
        a(f"{lab}_ok:")
        a("s_mov_b64 exec, -1")
    a(".L_A:")
    a("s_cmp_ge_u32 s2, 256")
    a("s_cbranch_scc1 .L_end")
    a("s_load_dwordx2 s[16:17], s[0:1], 8")
    a("s_load_dwordx2 s[4:5], s[0:1], 0")
    a("s_load_dwordx4 s[36:39], s[0:1], 56")
    a("s_load_dwordx2 s[12:13], s[0:1], 88")
    a("s_load_dwordx2 s[8:9], s[0:1], 96")
    a("s_load_dwordx2 s[28:29], s[0:1], 72")
    a("s_load_dwordx2 s[32:33], s[0:1], 80")
    a("v_lshrrev_b32 v1, 6, v0")
    a("v_and_b32 v0, 63, v0")
    a("v_readfirstlane_b32 s3, v1")
    a("s_sub_u32 s43, s2, 128")
    a("s_bfe_u32 s41, s43, 0x10002")
    a("s_lshr_b32 s42, s43, 3\ns_lshl_b32 s42, s42, 2\ns_and_b32 s44, s43, 3\ns_add_u32 s42, s42, s44")
    a("s_lshl_b32 s44, s41, 6\ns_add_u32 s42, s42, s44")
    srd(16, 16777216); srd(12, 256); srd(8, WS_SIZE); srd(4, 2048); srd(28, 1409024); srd(32, 2048)
    a("v_lshlrev_b32 v8, 4, v0")
    a("v_mov_b32 v9, 0")
    a("v_lshrrev_b32 v2, 4, v0\nv_and_b32 v3, 15, v0\nv_and_b32 v25, 1, v0")
    a("s_and_b32 s47, s3, 3")
    def pv_setup():
        a("v_lshrrev_b32 v7, 5, v0")
        a("v_bfe_u32 v4, v0, 2, 2")
        a("v_lshlrev_b32 v5, 10, v7\nv_lshl_add_u32 v5, v4, 8, v5\nv_lshl_add_u32 v5, v4, 6, v5")
        a("v_bfe_u32 v6, v0, 4, 1\nv_bfe_u32 v4, v0, 1, 1\nv_lshl_add_u32 v6, v6, 1, v4\nv_xor_b32 v6, v6, v7\nv_lshl_add_u32 v5, v6, 4, v5")
        a("v_lshl_add_u32 v5, v25, 3, v5")
        a("s_lshr_b32 s45, s3, 2\ns_lshl_b32 s45, s45, 7\nv_xor_b32 v5, s45, v5")
        a("s_lshl_b32 s44, s47, 15\nv_add_u32 v32, s44, v5")
        a("v_xor_b32 v33, 32, v32\nv_xor_b32 v34, 64, v32\nv_xor_b32 v35, 96, v32")
        a(f"v_add_u32 v51, {PX}, v8")
        a("v_bfe_u32 v4, v0, 4, 1\nv_lshl_add_u32 v5, v7, 2, v4\nv_lshlrev_b32 v52, 17, v5\nv_lshl_add_u32 v52, v3, 3, v52")
        a(f"s_add_u32 s44, s44, s45\ns_lshl_b32 s45, s42, 8\ns_add_u32 s44, s44, s45\ns_add_u32 s44, s44, {WS_O}")
        for r in range(0, 16, 2):
            a(f"s_add_u32 s{48+r//2}, s44, {((r & 3) + 8 * (r >> 2)) * 131072}")
        a("v_and_b32 v5, 7, v0\nv_lshl_add_u32 v4, v5, 1, v4\nv_lshlrev_b32 v4, 1, v4\nv_lshrrev_b32 v4, v4, v11\nv_and_b32 v5, 1, v4\nv_bfe_u32 v4, v4, 1, 1\nv_lshl_or_b32 v53, v4, 16, v5")
        a("s_mov_b32 s56, 0x00010001")
    def tread(n):
        k, j = n >> 1, n & 1
        off = (8 * (k >> 1) + 4 * (k & 1)) * 1024
        r = 96 + 4 * n
        a(f"ds_read_b64_tr_b16 v[{r}:{r+1}], v{32+2*j} offset:{off}")
        a(f"ds_read_b64_tr_b16 v[{r+2}:{r+3}], v{33+2*j} offset:{off+2048}")
    a("s_cmp_lt_u32 s3, 4")
    a("s_cbranch_scc1 .LA_comp")
    if cfg.pf:
        a("s_load_dwordx2 s[20:21], s[0:1], 24")
        srd(20, 4194304)
    a("s_lshl_b32 s46, s47, 13")
    a("s_lshl_b32 s44, s42, 17\ns_lshl_b32 s45, s47, 15\ns_add_u32 s44, s44, s45")
    a("v_lshlrev_b32 v4, 2, v2\nv_xor_b32 v4, v4, v3\nv_lshlrev_b32 v4, 4, v4\nv_lshl_add_u32 v4, v2, 10, v4")
    a("v_xor_b32 v5, 16, v4\nv_xor_b32 v6, 32, v4\nv_xor_b32 v7, 48, v4")
    a("s_mov_b32 m0, s46")
    a("s_waitcnt lgkmcnt(0)")
    ts(1)
    if cfg.pf:
        a("s_and_b32 s45, s43, 7\ns_lshl_b32 s45, s45, 2\ns_lshr_b32 s48, s43, 5\ns_add_u32 s45, s45, s48\ns_lshl_b32 s45, s45, 8")
        a("s_bfe_u32 s48, s43, 0x20003\ns_lshl_b32 s48, s48, 20\ns_add_u32 s45, s45, s48\ns_lshl_b32 s48, s47, 18\ns_add_u32 s45, s45, s48")
        a("v_lshlrev_b32 v10, 13, v2\nv_lshl_add_u32 v10, v3, 4, v10")
        a(f"s_add_u32 m0, s46, {QR}")
        if cfg.pf_pre: a("buffer_load_dword v12, v9, s[4:7], 0 offen\ns_waitcnt vmcnt(0)")
        else: a("s_nop 0")
        for i in range(8):
            a(f"buffer_load_dwordx4 v10, s[20:23], s45 offen {cfg.pf_nt} lds")
            if i < 7: a("s_add_u32 s45, s45, 32768")
        a("s_mov_b32 m0, s46")
    else:
        a("buffer_load_dword v12, v9, s[4:7], 0 offen")
    def crow(i):
        if i:
            if i % 8: a("s_add_u32 m0, m0, 1024\ns_add_u32 s44, s44, 4096")
            else: a(f"s_add_u32 m0, m0, {32768 - 7*1024}\ns_sub_u32 s44, s44, {7*4096 - 256}")
        a(f"buffer_load_dwordx4 v{4 + (i & 3)}, s[16:19], s44 offen {NT} lds")
    a(f"s_add_u32 s60, s46, {QR}")
    a(f"s_lshl_b32 s63, s41, 15\ns_add_u32 s63, s63, s46\ns_add_u32 s63, s63, {WS_Q}")
    a("s_and_b32 s45, s47, 1\ns_lshl_b32 s45, s45, 5")
    a("v_xor_b32 v24, s45, v8")
    a("v_add_u32 v58, s60, v24")
    def qrows():
        a("s_mov_b32 s61, m0\ns_mov_b32 m0, s60\ns_mov_b32 s45, s63")
        for i in range(8):
            if i == 4: a("s_add_u32 m0, m0, 4096\ns_add_u32 s45, s45, 4096")
            a(f"v_xor_b32 v10, {16*(((i&3)<<2) | (i>>2))}, v24")
            a(f"buffer_load_dwordx4 v10, s[8:11], s45 offen offset:{1024*(i&3)} sc1 lds")
        a("s_mov_b32 m0, s61")
    if cfg.pf: a(f"s_waitcnt vmcnt({cfg.pf_cnt})")
    elif cfg.pf_delay: a("s_waitcnt vmcnt(0)")
    ts(2)
    issued = []
    for i in range(32):
        win = cfg.cwin1 if i < cfg.n1 else cfg.cwin
        if i == cfg.nonce_row:
            a("buffer_load_dword v11, v9, s[12:15], 0 offen sc1"); issued.append("n")
        if i == cfg.go_row:
            k = len(issued) - 1 - issued.index("n")
            a(f"s_waitcnt vmcnt({min(k, 63)})")
            budget()
            a(".LH_nchk:")
            a("v_readfirstlane_b32 s40, v11")
            a("s_cmp_lg_u32 s40, 0")
            a("s_cbranch_scc1 .LH_ngot")
            spend(".LH_ngot")
            a("buffer_load_dword v11, v9, s[12:15], 0 offen sc1")
            a("s_waitcnt vmcnt(0)")
            a("s_branch .LH_nchk")
            a(".LH_ngot:")
            if cfg.use_go:
                a(f"s_lshl_b32 s45, s43, 7\ns_add_u32 s45, s45, {WS_GO}")
                a("s_cmp_lg_u32 s3, 4")
                a("s_cbranch_scc1 .LH_nogo")
                a("s_mov_b64 exec, 1")
                a("buffer_store_dword v11, v9, s[8:11], s45 offen sc1")
                a("s_mov_b64 exec, -1")
                a(".LH_nogo:")
        if i == cfg.q_row:
            qrows(); issued += ["q"] * 8
        if win and i >= win: a(f"s_waitcnt vmcnt({win-1 + (8 if cfg.q_row <= i < cfg.q_row + cfg.q_ext else 0)})")
        crow(i); issued.append("c")
    if cfg.q_row >= 32:
        qrows(); issued += ["q"] * 8
    assert cfg.q_row >= 24
    ts(3)
    pv_setup()
    a("v_and_b32 v10, 3, v0\nv_lshlrev_b32 v10, 3, v10\nv_lshrrev_b32 v12, v10, v11")
    for k in range(4):
        a(f"v_bfe_u32 v56, v12, {2*k}, 1\nv_bfe_u32 v57, v12, {2*k+1}, 1\nv_lshl_or_b32 v{60+k}, v57, 16, v56")
    a("v_lshlrev_b32 v5, 13, v2\nv_lshl_add_u32 v5, v3, 4, v5")
    a("s_sub_u32 s62, s43, 85\ns_lshl_b32 s46, s62, 15\ns_lshl_b32 s45, s47, 8\ns_add_u32 s46, s46, s45")
    NAFTERQ = len(issued) - 1 - max(j for j, t in enumerate(issued) if t == "q")
    a(f"s_waitcnt vmcnt({NAFTERQ})")
    ts(7)
    budget()
    a(".LH_qv:")
    for i in range(8):
        a(f"v_xor_b32 v10, {16*(((i&3)<<2) | (i>>2))}, v58")
        a(f"ds_read_b128 v[{64+4*i}:{67+4*i}], v10 offset:{1024*i}")
    for i in range(8):
        a(f"s_waitcnt lgkmcnt({7-i})")
        for k in range(4):
            a("v_xor_b32 v56, v64, v60" if i == 0 and k == 0 else f"v_bitop3_b32 v56, v56, v{64+4*i+k}, v{60+k} bitop3:0xf6")
    a("v_and_b32 v56, s56, v56")
    a("v_cmp_ne_u32 vcc, 0, v56")
    a("s_cbranch_vccz .LH_qk")
    spend(".LH_qk")
    qrows()
    a("s_waitcnt vmcnt(0)")
    a("s_branch .LH_qv")
    a(".LH_qk:")
    a("s_barrier")
    a("s_waitcnt vmcnt(0)")
    ts(4)
    a("s_barrier")
    a("s_cmp_lt_u32 s43, 85")
    a("s_cbranch_scc1 .LH_now2")
    for i in range(8):
        if i == 4: a("s_add_u32 s46, s46, 4096")
        a(f"buffer_load_dwordx4 v[{208+4*i}:{211+4*i}], v5, s[28:31], s46 offen offset:{1024*(i&3)} {NT}")
    a(".LH_now2:")
    a("s_barrier")
    for n in range(16):
        if n >= 7: a("s_waitcnt lgkmcnt(12)")
        tread(n)
        if n == 7: a("s_barrier")
    a("s_setprio 2")
    a("s_barrier")
    a("s_waitcnt lgkmcnt(7)")
    for k in range(8):
        a(f"ds_read_b128 v[{64+4*k}:{67+4*k}], v51 offset:{1024*k}")
    a("s_branch .LA_pv")

    a(".LA_comp:")
    a("s_waitcnt lgkmcnt(0)")
    ts(1)
    def a_nonce(lab):
        budget()
        a(f"{lab}p:")
        spend(f"{lab}g")
        a(f"s_sleep {cfg.a_nsleep}")
        a("buffer_load_dword v11, v9, s[12:15], 0 offen sc1")
        a("s_waitcnt vmcnt(0)")
        a("v_readfirstlane_b32 s40, v11")
        a("s_cmp_eq_u32 s40, 0")
        a(f"s_cbranch_scc1 {lab}p")
        a(f"{lab}g:")
    if cfg.f1_on == "A":
        a("s_cmp_ge_u32 s43, 88")
        a("s_cbranch_scc1 .LA_nof1")
        a("v_lshlrev_b32 v4, 5, v0")
        a("buffer_load_dwordx4 v[12:15], v4, s[4:7], 0 offen")
        a("buffer_load_dwordx4 v[16:19], v4, s[4:7], 0 offen offset:16")
        a("s_and_b32 s50, s43, 7\ns_lshl_b32 s50, s50, 1\ns_lshr_b32 s51, s3, 1\ns_add_u32 s50, s50, s51")
        a("v_lshlrev_b32 v4, 10, v25\nv_lshl_add_u32 v4, v2, 4, v4\ns_lshl_b32 s45, s50, 6")
        a("buffer_load_dwordx4 v[20:23], v4, s[4:7], s45 offen")
        a("s_bitcmp1_b32 s3, 0")
        a("s_cselect_b32 s20, s38, s36\ns_cselect_b32 s21, s39, s37")
        srd(20, 1409024)
        a("v_mul_u32_u24 v4, 22016, v2\nv_lshl_add_u32 v4, v3, 4, v4")
        a(f"s_mul_i32 s45, s50, {32*2752}\ns_lshr_b32 s51, s43, 3\ns_lshl_b32 s44, s51, 8\ns_add_u32 s45, s45, s44")
        if cfg.f1_delay: a("s_waitcnt vmcnt(0)")
        for i in range(8):
            a(f"buffer_load_dwordx4 v[{96+4*i}:{99+4*i}], v4, s[20:23], s45 offen {NT}")
            if i < 7: a("s_add_u32 s45, s45, 2752")
        a(".LA_nof1:")
    if cfg.prefetch:
        a(f"s_cmp_ge_u32 s43, {cfg.pf_cus}")
        a("s_cbranch_scc1 .LA_nopf")
        a("s_getpc_b64 s[24:25]")
        a(".LA_pc:")
        a(f"s_sub_u32 s24, s24, .LA_pc-{K}\ns_subb_u32 s25, s25, 0")
        a(f"s_mov_b32 s26, .L_codeend-{K}\ns_mov_b32 s27, 0x20000")
        a("s_mul_i32 s45, s3, 5120")
        for i in range(5):
            a(f"buffer_load_dwordx4 v[28:31], v8, s[24:27], s45 offen")
            if i < 4: a("s_add_u32 s45, s45, 1024")
        a(".LA_nopf:")
    if cfg.f1_on == "A":
        a("s_cmp_ge_u32 s43, 88")
        a("s_cbranch_scc1 .LA_nof2")
        a("s_mov_b32 s58, 0xaaaaaaaa\ns_mov_b32 s59, 0xaaaaaaaa")
        a("s_waitcnt vmcnt(8)")
        ln_stats(12, 32)
        ln_apply(20, 32)
        fconsts(11)
        a(f"s_lshl_b32 s61, s51, 15\ns_and_b32 s45, s3, 1\ns_lshl_b32 s45, s45, 14\ns_add_u32 s61, s61, s45\ns_lshl_b32 s45, s50, 10\ns_add_u32 s61, s61, s45\ns_add_u32 s61, s61, {WS_G}")
        a("s_waitcnt vmcnt(0)")
        transpose8(96, 128)
        a_nonce(".LA_n1")
        ftags(11, 28, 27, 26)
        a("v_lshrrev_b32 v26, 1, v2\nv_lshl_add_u32 v27, v26, 9, v27")
        gemv_out(20, 128, 27, 61, 28, acc=160, out=192)
        ts(3)
        a("s_branch .LA_n2g")
        a(".LA_nof2:")
    a_nonce(".LA_n2")
    ts(2)
    pv_setup()
    a("v_lshrrev_b32 v2, 5, v0")
    a("v_and_b32 v3, 31, v0")
    a("v_and_b32 v4, 3, v3\nv_bfe_u32 v5, v3, 2, 2\nv_lshl_or_b32 v5, v4, 2, v5\nv_xor_b32 v5, v5, v2\nv_lshlrev_b32 v5, 4, v5")
    a("v_lshl_add_u32 v24, v3, 10, v5")
    a(f"v_add_u32 v24, {QR}, v24")
    a("v_lshl_add_u32 v5, v4, 8, v5\nv_lshrrev_b32 v4, 2, v3\nv_lshl_add_u32 v5, v4, 10, v5")
    a("s_lshl_b32 s45, s3, 13\nv_add_u32 v16, s45, v5")
    for k in range(1, 8):
        a(f"v_xor_b32 v{16+k}, {32*k}, v16\nv_xor_b32 v{24+k}, {32*k}, v24")
    a(f"s_lshl_b32 s45, s3, 7\ns_add_u32 s45, s45, {MX}")
    a("v_lshlrev_b32 v48, 2, v3")
    a(f"v_add_u32 v49, {MX}, v48")
    a("v_add_u32 v48, s45, v48")
    a(f"s_lshl_b32 s45, s3, 11\ns_add_u32 s45, s45, {PX}")
    a("v_add_u32 v50, s45, v8")
    a("v_lshlrev_b32 v54, 4, v3")
    a(f"s_lshl_b32 s46, s42, 11\ns_lshl_b32 s45, s3, 9\ns_add_u32 s46, s46, s45\ns_add_u32 s46, s46, {WS_ML}")
    a("v_mov_b32 v58, s40\nv_mov_b32 v59, 0")
    ts(4)
    a("s_barrier")
    ts(5)
    LA = 4
    def sread(s):
        r = 208 + 8 * (s % LA)
        a(f"ds_read_b128 v[{r}:{r+3}], v{16+(s&7)} offset:{32768*((s>>3)&1)}")
        a(f"ds_read_b128 v[{r+4}:{r+7}], v{24+(s&7)} offset:{256*(s>>3)}")
        if 8 <= s < 16: a(f"v_add_u32 v{16+(s&7)}, 0x10000, v{16+(s&7)}")
    for s in range(LA): sread(s)
    for s in range(32):
        r = 208 + 8 * (s % LA)
        outstanding = min(LA, 32 - s)
        a(f"s_waitcnt lgkmcnt({2*(outstanding-1)})")
        if s == 31: a("s_barrier")
        a(f"v_mfma_f32_32x32x16_bf16 v[64:79], v[{r}:{r+3}], v[{r+4}:{r+7}], {'0' if s == 0 else 'v[64:79]'}")
        if s + LA == 24:
            a("s_barrier")
            ts(12)
        if s + LA < 32: sread(s + LA)
    ts(6)
    a("s_nop 11" if not cfg.ts else "s_nop 10")
    a("v_max3_f32 v4, v64, v65, v66\nv_max3_f32 v5, v67, v68, v69\nv_max3_f32 v6, v70, v71, v72\nv_max3_f32 v7, v73, v74, v75")
    a("v_max3_f32 v4, v4, v76, v77\nv_max3_f32 v5, v5, v78, v79\nv_max3_f32 v4, v4, v6, v7\nv_max_f32 v4, v4, v5")
    a("v_mov_b32 v5, v4\ns_nop 1\nv_permlane32_swap_b32 v4, v5\nv_max_f32 v4, v4, v5")
    a("ds_write_b32 v48, v4")
    a("s_waitcnt lgkmcnt(0)")
    a("s_barrier")
    a("ds_read2_b32 v[4:5], v49 offset0:0 offset1:32")
    a("ds_read2_b32 v[6:7], v49 offset0:64 offset1:96")
    a("s_waitcnt lgkmcnt(0)")
    a("v_max3_f32 v4, v4, v5, v6\nv_max_f32 v56, v4, v7")
    for r in range(8): a(f"v_sub_f32 v{64+r}, v{64+r}, v56")
    for r in range(8):
        a(f"v_exp_f32 v{64+r}, v{64+r}")
        a(f"v_sub_f32 v{72+r}, v{72+r}, v56")
    for e in range(4):
        a(f"v_exp_f32 v{72+2*e}, v{72+2*e}\nv_exp_f32 v{73+2*e}, v{73+2*e}")
        a(f"v_cvt_pk_bf16_f32 v{80+e}, v{64+2*e}, v{65+2*e}")
    a("ds_write_b128 v50, v[80:83]")
    for e in range(4, 8): a(f"v_cvt_pk_bf16_f32 v{80+e}, v{64+2*e}, v{65+2*e}")
    a("ds_write_b128 v50, v[84:87] offset:1024")
    for e in range(8): a(f"v_add_f32 v{64+e}, v{64+e}, v{72+e}")
    for e in range(4): a(f"v_add_f32 v{64+e}, v{64+e}, v{68+e}")
    a("v_add_f32 v64, v64, v66\nv_add_f32 v65, v65, v67\nv_add_f32 v64, v64, v65")
    a("v_mov_b32 v65, v64\ns_nop 1\nv_permlane32_swap_b32 v64, v65\nv_add_f32 v64, v64, v65")
    a("ds_write_b32 v48, v64 offset:512")
    a("s_waitcnt lgkmcnt(0)")
    a("s_barrier")
    ts(7)
    for k in range(8):
        a(f"ds_read_b128 v[{64+4*k}:{67+4*k}], v51 offset:{1024*k}")
    a("ds_read2_b32 v[4:5], v49 offset0:128 offset1:160")
    a("ds_read2_b32 v[6:7], v49 offset0:192 offset1:224")
    for n in range(2): tread(n)
    a("s_waitcnt lgkmcnt(4)")
    for n in range(2, 16):
        if n >= 7: a("s_waitcnt lgkmcnt(12)")
        tread(n)
        if n == cfg.ml_pos:
            a("v_add_f32 v4, v4, v5\nv_add_f32 v6, v6, v7\nv_add_f32 v57, v4, v6")
            a("s_mov_b32 exec_hi, 0")
            a("buffer_store_dwordx4 v[56:59], v54, s[8:11], s46 offen sc1")
            a("s_mov_b64 exec, -1")
    ts(15)
    a("s_waitcnt lgkmcnt(0)")
    a(".LA_pv:")
    ts(13)
    for n in range(16):
        k, j = n >> 1, n & 1
        if j == 0: a(f"s_waitcnt lgkmcnt({7-k})")
        acc = 160 + 16 * j
        a(f"v_mfma_f32_32x32x16_bf16 v[{acc}:{acc+15}], v[{64+4*k}:{67+4*k}], v[{96+4*n}:{99+4*n}], {'0' if k == 0 else f'v[{acc}:{acc+15}]'}")
    a("s_setprio 0")
    ts(14)
    def epiA(pr):
        t = 192 + 2 * pr; r = 2 * pr
        a(f"v_cvt_pk_bf16_f32 v{t}, v{160+r}, v{176+r}")
        a(f"v_cvt_pk_bf16_f32 v{t+1}, v{161+r}, v{177+r}")
        a(f"v_bfi_b32 v{t}, s56, v53, v{t}")
        a(f"v_bfi_b32 v{t+1}, s56, v53, v{t+1}")
    def epiB(pr):
        t = 192 + 2 * pr
        a(f"v_permlane16_swap_b32 v{t}, v{t+1}")
        if not cfg.nostore: a(f"buffer_store_dwordx2 v[{t}:{t+1}], v52, s[8:11], s{48+pr} offen {cfg.ost}")
    a("s_nop 10" if not cfg.ts else "s_nop 9")
    epiA(0)
    for pr in range(8):
        if pr < 7: epiA(pr + 1)
        else: a("s_nop 1")
        epiB(pr)
    ts(8)
    a("s_cmp_lt_u32 s3, 4")
    a("s_cbranch_scc1 .LA_zq")
    a("s_cmp_ge_u32 s43, 85")
    a("s_cbranch_scc1 .LH_F2")
    a("s_cmp_ge_u32 s43, 32")
    a("s_cbranch_scc1 .LA_exit")
    a("s_cmp_lg_u32 s3, 4")
    a("s_cbranch_scc1 .LA_exit")
    zprolog()
    a(f"s_lshl_b32 s46, s43, 7\ns_add_u32 s46, s46, {WS_F}")
    for k in range(4): a(f"v_mov_b32 v{52+k}, 0")
    for m in (50, 52, 54, 56, 58): a(f"s_mov_b64 s[{m}:{m+1}], -1")
    a("s_mov_b64 s[60:61], 0xffffff")
    zgather(6, "s46", ".LZ_f", [50, 52, 54, 56, 58, 60])
    for i in range(1, 6):
        for k in range(4): a(f"v_add_f32 v{32+k}, v{32+k}, v{32+4*i+k}")
    a("s_nop 0")
    zreduce()
    a("v_cvt_pk_bf16_f32 v32, v32, v33\nv_cvt_pk_bf16_f32 v34, v34, v35")
    a("v_lshlrev_b32 v24, 16, v32\nv_and_b32 v25, 0xffff0000, v32\nv_lshlrev_b32 v26, 16, v34\nv_and_b32 v27, 0xffff0000, v34")
    for k in range(4): a(f"v_mul_f32 v{32+k}, {hex(f2u(-LOG2E))}, v{24+k}")
    for k in range(4): a(f"v_exp_f32 v{32+k}, v{32+k}")
    a("s_nop 0")
    for k in range(4): a(f"v_add_f32 v{32+k}, 1.0, v{32+k}")
    for k in range(4): a(f"v_rcp_f32 v{32+k}, v{32+k}")
    a("s_nop 0")
    for k in range(4): a(f"v_mul_f32 v{24+k}, v{24+k}, v{32+k}")
    a("v_cvt_pk_bf16_f32 v32, v24, v25\nv_cvt_pk_bf16_f32 v34, v26, v27")
    a("v_lshlrev_b32 v24, 16, v32\nv_and_b32 v25, 0xffff0000, v32\nv_lshlrev_b32 v26, 16, v34\nv_and_b32 v27, 0xffff0000, v34")
    a(f"v_lshlrev_b32 v15, 4, v3\nv_add_u32 v15, {QR+12288}, v15")
    a("s_mov_b64 exec, 0xff")
    a("ds_write_b128 v15, v[24:27]")
    a("s_waitcnt lgkmcnt(0)")
    ts(6)
    a("s_branch .LA_exit")
    a(".LH_F2:")
    a("v_lshrrev_b32 v7, 3, v0\nv_lshlrev_b32 v7, 9, v7\nv_and_b32 v10, 7, v0\nv_lshl_add_u32 v7, v10, 4, v7")
    a(f"s_lshr_b32 s44, s62, 2\ns_lshl_b32 s44, s44, 15\ns_and_b32 s45, s62, 3\ns_lshl_b32 s45, s45, 7\ns_add_u32 s44, s44, s45\ns_add_u32 s44, s44, {WS_G}")
    def gloads():
        a("s_mov_b32 s45, s44")
        for i in range(8):
            a(f"buffer_load_dwordx4 v[{32+4*i}:{35+4*i}], v7, s[8:11], s45 offen sc1")
            if i < 7: a("s_add_u32 s45, s45, 4096")
    gloads()
    fconsts(11)
    ftags(11, 28, 27, 26)
    a("v_lshrrev_b32 v13, 2, v12\nv_lshrrev_b32 v14, 4, v12\nv_lshrrev_b32 v15, 6, v12")
    a("v_lshlrev_b32 v16, 5, v25\nv_lshl_add_u32 v16, v2, 3, v16\nv_add_u32 v17, 4, v16")
    a("v_lshrrev_b32 v26, 1, v2\nv_lshl_add_u32 v6, v26, 11, v27")
    a(f"s_lshl_b32 s61, s62, 12\ns_lshl_b32 s45, s47, 9\ns_add_u32 s61, s61, s45\ns_add_u32 s61, s61, {WS_F}")
    a("s_waitcnt vmcnt(16)")
    transpose8(208, 128)
    budget()
    a(".LF_gp:")
    a("s_waitcnt vmcnt(0)")
    for i in range(8):
        for k in range(4):
            if i == 0 and k == 0: a("v_xor_b32 v18, v32, v12")
            else: a(f"v_bitop3_b32 v18, v18, v{32+4*i+k}, v{12+k} bitop3:0xf6")
    a("v_and_b32 v18, 3, v18")
    a("v_cmp_ne_u32 vcc, 0, v18")
    a("s_cbranch_vccz .LF_g2")
    spend(".LF_g2")
    a("s_sleep 2")
    gloads()
    a("s_branch .LF_gp")
    a(".LF_g2:")
    for i in range(8):
        if i & 3:
            for k in range(4): a(f"v_add_f32 v{32+16*(i>>2)+k}, v{32+16*(i>>2)+k}, v{32+4*i+k}")
    for sw in ("v_permlane16_swap_b32", "v_permlane32_swap_b32"):
        for k in range(4): a(f"v_mov_b32 v{36+k}, v{32+k}\nv_mov_b32 v{52+k}, v{48+k}")
        a("s_nop 0")
        for k in range(4): a(f"{sw} v{32+k}, v{36+k}\n{sw} v{48+k}, v{52+k}")
        for k in range(4): a(f"v_add_f32 v{32+k}, v{32+k}, v{36+k}\nv_add_f32 v{48+k}, v{48+k}, v{52+k}")
    for k in range(4): a(f"v_cvt_pk_bf16_f32 v{32+k}, v{32+k}, v{48+k}")
    for k in range(4): a(f"v_and_b32 v{48+k}, 0xffff0000, v{32+k}\nv_lshlrev_b32 v{32+k}, 16, v{32+k}")
    for k in range(4): a(f"v_mul_f32 v{36+k}, {hex(f2u(-LOG2E))}, v{32+k}")
    for k in range(4): a(f"v_exp_f32 v{36+k}, v{36+k}")
    a("s_nop 0")
    for k in range(4): a(f"v_add_f32 v{36+k}, 1.0, v{36+k}")
    for k in range(4): a(f"v_rcp_f32 v{36+k}, v{36+k}")
    a("s_nop 0")
    for k in range(4): a(f"v_mul_f32 v{32+k}, v{32+k}, v{36+k}")
    a("v_cvt_pk_bf16_f32 v32, v32, v33\nv_cvt_pk_bf16_f32 v34, v34, v35")
    a("v_and_b32 v33, 0xffff0000, v32\nv_lshlrev_b32 v32, 16, v32\nv_and_b32 v35, 0xffff0000, v34\nv_lshlrev_b32 v34, 16, v34")
    for k in range(4): a(f"v_mul_f32 v{32+k}, v{32+k}, v{48+k}")
    a("v_cvt_pk_bf16_f32 v32, v32, v33\nv_cvt_pk_bf16_f32 v33, v34, v35")
    a("ds_bpermute_b32 v20, v16, v32\nds_bpermute_b32 v21, v16, v33\nds_bpermute_b32 v22, v17, v32\nds_bpermute_b32 v23, v17, v33")
    a("s_waitcnt lgkmcnt(0)")
    gemv_out(20, 128, 6, 61, 28)
    ts(6)
    a("s_branch .LA_exit")
    a(".LA_zq:")
    a("s_cmp_ge_u32 s43, 32")
    a("s_cbranch_scc1 .LA_exit")
    a("s_cmp_lg_u32 s3, 0")
    a("s_cbranch_scc1 .LA_exit")
    zprolog()
    a("s_lshl_b32 s45, s43, 6")
    a("v_lshlrev_b32 v14, 3, v3")
    a("buffer_load_dwordx2 v[16:17], v14, s[4:7], s45 offen")
    a(f"s_bfe_u32 s46, s43, 0x20002\ns_lshl_b32 s46, s46, 10\ns_lshr_b32 s48, s43, 4\ns_lshl_b32 s48, s48, 9\ns_add_u32 s46, s46, s48")
    a(f"s_and_b32 s48, s43, 3\ns_lshl_b32 s48, s48, 7\ns_add_u32 s46, s46, s48\ns_add_u32 s46, s46, {WS_S}")
    a(f"v_lshlrev_b32 v15, 4, v3\nv_add_u32 v15, {QR+12288}, v15")
    a("s_mov_b64 s[50:51], -1\ns_mov_b64 s[52:53], -1\ns_mov_b64 s[54:55], -1\ns_mov_b64 s[56:57], -1")
    a("s_waitcnt vmcnt(0)")
    a("v_lshlrev_b32 v28, 16, v16\nv_and_b32 v29, 0xffff0000, v16\nv_lshlrev_b32 v30, 16, v17\nv_and_b32 v31, 0xffff0000, v17")
    zgather(4, "s46", ".LZ_s", [50, 52, 54, 56])
    ts(10)
    a("s_barrier")
    a("ds_read_b128 v[24:27], v15")
    for k in range(4): a(f"v_add_f32 v{32+k}, v{32+k}, v{36+k}\nv_add_f32 v{40+k}, v{40+k}, v{44+k}")
    for k in range(4): a(f"v_add_f32 v{32+k}, v{32+k}, v{40+k}")
    zreduce()
    a("v_cvt_pk_bf16_f32 v32, v32, v33\nv_cvt_pk_bf16_f32 v34, v34, v35")
    a("v_and_b32 v33, 0xffff0000, v32\nv_lshlrev_b32 v32, 16, v32\nv_and_b32 v35, 0xffff0000, v34\nv_lshlrev_b32 v34, 16, v34")
    a("s_waitcnt lgkmcnt(0)")
    for k in range(4): a(f"v_mul_f32 v{32+k}, v{32+k}, v{24+k}")
    a("v_cvt_pk_bf16_f32 v32, v32, v33\nv_cvt_pk_bf16_f32 v34, v34, v35")
    a("v_and_b32 v33, 0xffff0000, v32\nv_lshlrev_b32 v32, 16, v32\nv_and_b32 v35, 0xffff0000, v34\nv_lshlrev_b32 v34, 16, v34")
    for k in range(4): a(f"v_add_f32 v{32+k}, v{32+k}, v{28+k}")
    a("v_cvt_pk_bf16_f32 v32, v32, v33\nv_cvt_pk_bf16_f32 v33, v34, v35")
    a("s_mov_b64 exec, 0xff")
    a("buffer_store_dwordx2 v[32:33], v14, s[32:35], s45 offen")
    if cfg.dbgt:
        a("s_memrealtime s[48:49]")
        a("s_waitcnt lgkmcnt(0)")
        a("v_mov_b32 v10, s48")
        a("s_lshl_b32 s45, s43, 2")
        a("s_mov_b64 exec, 1")
        a("buffer_store_dword v10, v9, s[12:15], s45 offen offset:8")
        if cfg.amp:
            a("buffer_load_dword v10, v9, s[12:15], 0 offen offset:4 sc1")
            a("s_waitcnt vmcnt(0)")
            a("v_readfirstlane_b32 s50, v10")
            a("s_sub_u32 s51, s48, s50")
            a("s_min_u32 s51, s51, 10000")
            a(f"s_mul_i32 s51, s51, {cfg.amp}")
            a("s_add_u32 s51, s51, s48")
            a(".LZ_amp:")
            a("s_memrealtime s[48:49]")
            a("s_waitcnt lgkmcnt(0)")
            a("s_sub_u32 s52, s48, s51")
            a("s_cmp_lt_i32 s52, 0")
            a("s_cbranch_scc1 .LZ_amp")
    ts(11)
    a(".LA_exit:")
    ts_flush()
    a(".L_end:")
    a("s_endpgm")
    a(".L_codeend:")
    body = a.text()
    return assemble([(K, 256, 512, 163840)], [(K, body, 256, 102, 256, "")]), body

if __name__ == "__main__":
    import argparse
    ap = argparse.ArgumentParser()
    ap.add_argument("-o", default="k.s")
    ap.add_argument("--set", action="append", default=[])
    args = ap.parse_args()
    for s in args.set:
        k, v = s.split("=")
        setattr(Cfg, k, eval(v))
    txt, body = gen(Cfg)
    open(args.o, "w").write(txt)
    for p in hazard.check(txt): print("HAZARD", p)
```

```python
import sys
from asmlib import *
import hazard

WS_H1 = 0x000000
WS_H4 = 0x020000
WS_SLOW = 0x040000
WS_Q  = 0x080000
WS_QF = 0x0A0000
WS_GO = 0x0B0000
WS_ML = 0x100000
WS_S  = 0x200000
WS_F  = 0x300000
WS_G  = 0x380000
WS_O  = 0x400000
WS_TS = 0x1000000
WS_SIZE = 268435456
LOG2E = 1.4426950408889634
QSCALE = LOG2E * 128 ** -0.5
import struct
def f2u(x): return struct.unpack("<I", struct.pack("<f", x))[0]

class Cfg:
    ts = False
    npre = 2
    go_cnt = 8
    cwin = 10
    nsamp = 7
    samp_sleep = 3
    prefetch = True
    poll_sleep = 1
    nt = "nt"
    nt_wo = ""
    spin = 30000
    dbgt = False
    amp = 0
    wuk_wait = 3
    fast_tries = 12
    slow_now = True
    tlbw = 0
    ns_cnt = 6
    h4ts = False
    f1_on = 'W'
    ml_pos = 4
    use_go = True
    pf_pre = False
    q_wait = 2
    xts = None
    ml_sleep = 2
    hf1_pre = True
    f1_early = False
    go_skip = True
    f1_rot = 64
    a_pf = 0
    a_pf_nt = ''
    f1_first = True
    fld = 'sc1'
    nowarm = False
    wld = 'sc1'
    fst = ''
    f1_gate = 0
    pf_nt = ''
    pf_cus = 16
    f1_delay = False
    nostore = False
    ost = 'sc1'
    nof1 = False
    h1ts = False
    a_nsleep = 20
    go_sleep = 4
    pre_rows = 1
    pf_wave = 1
    nt_wq = ''
    wq_wait = None
    nt_wuk = 'nt'
    pf_cnt = 6
    pf_delay = True
    wq_first = 1
    cwin1 = 2
    n1 = 4
    wo_wait = None
    nchain = 1
    q_row = 32
    q_ext = 0
    go_row = 18
    nonce_row = 4
    ml_early = 16
    pf = False
    z_pre = 32
    wo_bar = True
    go_group = True
    pv_pre = 0
    hprio = 2

def gen(cfg=Cfg):
    a = Asm()
    K = NAME + "_kernel"
    NT = cfg.nt
    tsn = [0]
    def ts(idx):
        if cfg.ts:
            a(f"s_memrealtime s[{64+2*idx}:{65+2*idx}]")
    def ts_flush(nmax=16):
        if not cfg.ts: return
        a("s_waitcnt lgkmcnt(0)")
        a("s_lshl_b32 s44, s2, 3\ns_add_u32 s44, s44, s3\ns_lshl_b32 s44, s44, 6")
        a(f"s_add_u32 s44, s44, {WS_TS}")
        a("s_mov_b64 exec, 1")
        a("v_mov_b32 v1, 0")
        for q in range(4):
            for k in range(4):
                a(f"v_mov_b32 v{4+k}, s{64+2*(4*q+k)}")
            a(f"buffer_store_dwordx4 v[4:7], v1, s[8:11], s44 offen offset:{16*q}")
            a("s_nop 1")
        a("s_waitcnt vmcnt(0)")
    def srd(base, size):
        a(f"s_mov_b32 s{base+2}, {size}\ns_mov_b32 s{base+3}, 0x20000")
    def allreduce16(v, t, op):
        for r in (8, 4, 2, 1):
            a("s_nop 1")
            a(f"{op}_dpp v{v}, v{v}, v{v} row_ror:{r} row_mask:0xf bank_mask:0xf")
        for sw in ("v_permlane16_swap_b32", "v_permlane32_swap_b32"):
            a(f"v_mov_b32 v{t}, v{v}")
            a("s_nop 1")
            a(f"{sw} v{v}, v{t}")
            a(f"{op} v{v}, v{v}, v{t}")
    def allreduce2(v, w, t, u, op):
        for r in (8, 4, 2, 1):
            a("s_nop 0")
            a(f"{op}_dpp v{v}, v{v}, v{v} row_ror:{r} row_mask:0xf bank_mask:0xf")
            a(f"{op}_dpp v{w}, v{w}, v{w} row_ror:{r} row_mask:0xf bank_mask:0xf")
        for sw in ("v_permlane16_swap_b32", "v_permlane32_swap_b32"):
            a(f"v_mov_b32 v{t}, v{v}\nv_mov_b32 v{u}, v{w}\ns_nop 0")
            a(f"{sw} v{v}, v{t}\n{sw} v{w}, v{u}")
            a(f"{op} v{v}, v{v}, v{t}\n{op} v{w}, v{w}, v{u}")
    def quador(v):
        for qp in ("[1,0,3,2]", "[2,3,0,1]"):
            a("s_nop 1")
            a(f"v_or_b32_dpp v{v}, v{v}, v{v} quad_perm:{qp} row_mask:0xf bank_mask:0xf")
    def halfreduce(v, t):
        for r in (8, 4, 2, 1):
            a("s_nop 1")
            a(f"v_add_f32_dpp v{v}, v{v}, v{v} row_ror:{r} row_mask:0xf bank_mask:0xf")
        a(f"v_mov_b32 v{t}, v{v}\ns_nop 1\nv_permlane16_swap_b32 v{v}, v{t}\nv_add_f32 v{v}, v{v}, v{t}")
    def ln_stats(vx, vt):
        m, t, q, u = vt + 16, vt + 17, vt + 18, vt + 19
        for i in range(8):
            a(f"v_lshlrev_b32 v{vt+2*i}, 16, v{vx+i}")
            a(f"v_and_b32 v{vt+1+2*i}, 0xffff0000, v{vx+i}")
        a(f"v_add_f32 v{m}, v{vt}, v{vt+1}\nv_add_f32 v{t}, v{vt+2}, v{vt+3}")
        for i in range(4, 16, 2): a(f"v_add_f32 v{m}, v{m}, v{vt+i}\nv_add_f32 v{t}, v{t}, v{vt+i+1}")
        a(f"v_add_f32 v{m}, v{m}, v{t}")
        halfreduce(m, t)
        a(f"v_mul_f32 v{m}, {hex(f2u(1/512))}, v{m}")
        a(f"v_sub_f32 v{t}, v{vt}, v{m}\nv_sub_f32 v{u}, v{vt+1}, v{m}\nv_mul_f32 v{q}, v{t}, v{t}\nv_fmac_f32 v{q}, v{u}, v{u}")
        for i in range(2, 16, 2): a(f"v_sub_f32 v{t}, v{vt+i}, v{m}\nv_sub_f32 v{u}, v{vt+i+1}, v{m}\nv_fmac_f32 v{q}, v{t}, v{t}\nv_fmac_f32 v{q}, v{u}, v{u}")
        halfreduce(q, t)
        a(f"v_mul_f32 v{q}, {hex(f2u(1/512))}, v{q}")
        a(f"v_cvt_pk_bf16_f32 v{m}, v{m}, v{q}")
        a(f"v_mov_b32 v{t}, v{m}\ns_nop 1\nv_permlane32_swap_b32 v{m}, v{t}")
        a(f"v_cndmask_b32 v{m}, v{m}, v{t}, s[58:59]")
        a(f"v_and_b32 v{q}, 0xffff0000, v{m}\nv_lshlrev_b32 v{m}, 16, v{m}")
        a(f"v_add_f32 v{q}, {hex(f2u(1e-5))}, v{q}")
        a(f"v_cvt_pk_bf16_f32 v{q}, v{q}, v{q}\nv_and_b32 v{q}, 0xffff0000, v{q}\nv_sqrt_f32 v{q}, v{q}\ns_nop 0")
        a(f"v_cvt_pk_bf16_f32 v{q}, v{q}, v{q}\nv_and_b32 v{q}, 0xffff0000, v{q}\nv_rcp_f32 v{q}, v{q}")
    def ln_apply(vf, vt):
        m, q = vt + 16, vt + 18
        for i in range(4):
            a(f"v_lshlrev_b32 v{vt+2*i}, 16, v{vf+i}")
            a(f"v_and_b32 v{vt+1+2*i}, 0xffff0000, v{vf+i}")
        for i in range(8): a(f"v_sub_f32 v{vt+i}, v{vt+i}, v{m}")
        for i in range(4): a(f"v_cvt_pk_bf16_f32 v{vf+i}, v{vt+2*i}, v{vt+1+2*i}")
        for i in range(4):
            a(f"v_lshlrev_b32 v{vt+2*i}, 16, v{vf+i}")
            a(f"v_and_b32 v{vt+1+2*i}, 0xffff0000, v{vf+i}")
        for i in range(8): a(f"v_mul_f32 v{vt+i}, v{vt+i}, v{q}")
        for i in range(4): a(f"v_cvt_pk_bf16_f32 v{vf+i}, v{vt+2*i}, v{vt+1+2*i}")
    def layernorm(vx, vo, vt):
        f = [vt + i for i in range(8)]
        s_, t, u = vt + 8, vt + 9, vt + 10
        for i in range(4):
            a(f"v_lshlrev_b32 v{f[2*i]}, 16, v{vx+i}")
            a(f"v_and_b32 v{f[2*i+1]}, 0xffff0000, v{vx+i}")
        a(f"v_add_f32 v{s_}, v{f[0]}, v{f[1]}\nv_add_f32 v{t}, v{f[2]}, v{f[3]}\nv_add_f32 v{u}, v{f[4]}, v{f[5]}")
        a(f"v_add_f32 v{s_}, v{s_}, v{f[6]}\nv_add_f32 v{t}, v{t}, v{f[7]}\nv_add_f32 v{s_}, v{s_}, v{u}\nv_add_f32 v{s_}, v{s_}, v{t}")
        allreduce16(s_, t, "v_add_f32")
        a(f"v_mul_f32 v{s_}, {hex(f2u(1/512))}, v{s_}")
        m2 = vt + 11
        a(f"v_sub_f32 v{t}, v{f[0]}, v{s_}\nv_mul_f32 v{m2}, v{t}, v{t}")
        for i in range(1, 8):
            a(f"v_sub_f32 v{t}, v{f[i]}, v{s_}\nv_fmac_f32 v{m2}, v{t}, v{t}")
        allreduce16(m2, t, "v_add_f32")
        a(f"v_mul_f32 v{m2}, {hex(f2u(1/512))}, v{m2}")
        a(f"v_cvt_pk_bf16_f32 v{t}, v{s_}, v{m2}")
        a(f"v_lshlrev_b32 v{s_}, 16, v{t}\nv_and_b32 v{m2}, 0xffff0000, v{t}")
        a(f"v_add_f32 v{m2}, {hex(f2u(1e-5))}, v{m2}")
        a(f"v_cvt_pk_bf16_f32 v{m2}, v{m2}, v{m2}\nv_and_b32 v{m2}, 0xffff0000, v{m2}\nv_sqrt_f32 v{m2}, v{m2}")
        for i in range(8): a(f"v_sub_f32 v{f[i]}, v{f[i]}, v{s_}")
        a(f"v_cvt_pk_bf16_f32 v{m2}, v{m2}, v{m2}\nv_and_b32 v{m2}, 0xffff0000, v{m2}\nv_rcp_f32 v{m2}, v{m2}")
        for i in range(4): a(f"v_cvt_pk_bf16_f32 v{vo+i}, v{f[2*i]}, v{f[2*i+1]}")
        for i in range(4):
            a(f"v_lshlrev_b32 v{f[2*i]}, 16, v{vo+i}\nv_and_b32 v{f[2*i+1]}, 0xffff0000, v{vo+i}")
        for i in range(8): a(f"v_mul_f32 v{f[i]}, v{f[i]}, v{m2}")
        for i in range(4): a(f"v_cvt_pk_bf16_f32 v{vo+i}, v{f[2*i]}, v{f[2*i+1]}")
    FS = [52, 54, 56]
    def fconsts(vN):
        a(f"s_mov_b32 s{FS[0]}, 0x05040100\ns_mov_b32 s{FS[0]+1}, 0x07060302")
        a(f"s_mov_b32 s{FS[1]}, 0xffff0000\ns_mov_b32 s{FS[1]+1}, 0xffff0000")
        a(f"s_mov_b32 s{FS[2]}, 0\ns_mov_b32 s{FS[2]+1}, -1")
    def transpose8(src, dst):
        for j in range(8):
            for e in range(4):
                a(f"v_perm_b32 v{dst+4*j+e}, v{src+4*(2*e+1)+(j>>1)}, v{src+4*(2*e)+(j>>1)}, s{FS[0]+(j&1)}")
    def gemv_out(afrag, wfrag, voff, soff, tag, acc=32, out=64):
        for j in range(8):
            a(f"v_mfma_f32_16x16x32_bf16 v[{acc+4*j}:{acc+3+4*j}], v[{afrag}:{afrag+3}], v[{wfrag+4*j}:{wfrag+3+4*j}], 0")
        a("s_nop 4")
        for k in range(4):
            a(f"v_cndmask_b32 v{out+k}, v{acc+4*k}, v{acc+4*(4+k)}, s[{FS[1]}:{FS[1]+1}]")
        for k in range(4):
            a(f"v_cndmask_b32 v{out+4+k}, v{acc+1+4*k}, v{acc+1+4*(4+k)}, s[{FS[1]}:{FS[1]+1}]")
        for k in range(4):
            a(f"v_cndmask_b32 v{out+k}, v{out+k}, v{out+4+k}, s[{FS[2]}:{FS[2]+1}]")
        for k in range(4):
            a(f"v_bfi_b32 v{out+k}, 3, v{tag+k}, v{out+k}")
        a(f"buffer_store_dwordx4 v[{out}:{out+3}], v{voff}, s[8:11], s{soff} offen sc1")
    def ftags(vN, tag, voff, t):
        a(f"v_and_b32 v{t}, 1, v2\nv_lshlrev_b32 v{voff}, 5, v3\nv_lshl_add_u32 v{voff}, v{t}, 4, v{voff}")
        a(f"v_lshl_add_u32 v{t}, v25, 1, v{t}\nv_lshlrev_b32 v{t}, 3, v{t}\nv_lshrrev_b32 v{tag}, v{t}, v{vN}")
        a(f"v_lshrrev_b32 v{tag+1}, 2, v{tag}\nv_lshrrev_b32 v{tag+2}, 4, v{tag}\nv_lshrrev_b32 v{tag+3}, 6, v{tag}")
    def psleep():
        if cfg.poll_sleep: a(f"s_sleep {cfg.poll_sleep}")
    def budget():
        a(f"s_movk_i32 s96, {cfg.spin}")
    def spend(exit_label):
        a("s_sub_u32 s96, s96, 1")
        a(f"s_cbranch_scc1 {exit_label}")

    if cfg.ts:
        for i in range(1, 16): a(f"s_mov_b32 s{64+2*i}, 0")
    ts(0)
    a("s_cmp_ge_u32 s2, 128")
    a("s_cbranch_scc1 .L_A")
    XN = 0x20000; XNS = 1088
    QV = 0; QS = 1024; SC = 2048; XX = 2560; YY = 3200
    a("s_load_dwordx2 s[12:13], s[0:1], 88")
    a("s_memrealtime s[48:49]")
    a("s_load_dwordx2 s[16:17], s[0:1], 16")
    a("s_load_dwordx2 s[4:5], s[0:1], 0")
    a("s_load_dwordx2 s[20:21], s[0:1], 24")
    a("s_load_dwordx2 s[8:9], s[0:1], 96")
    a("v_lshrrev_b32 v1, 6, v0")
    a("v_and_b32 v0, 63, v0")
    a("v_readfirstlane_b32 s3, v1")
    a("s_and_b32 s41, s2, 7\ns_lshl_b32 s41, s41, 2\ns_lshr_b32 s43, s2, 5\ns_add_u32 s41, s41, s43")
    a("s_bfe_u32 s42, s2, 0x20003")
    srd(16, 4194304); srd(4, 2048); srd(12, 256); srd(20, 4194304); srd(8, WS_SIZE)
    a("v_lshrrev_b32 v2, 4, v0")
    a("v_and_b32 v3, 15, v0")
    a("v_lshlrev_b32 v4, 1, v2")
    a("v_xor_b32 v4, v3, v4")
    a("v_lshlrev_b32 v4, 4, v4")
    a("v_lshl_add_u32 v5, v2, 13, v4")
    a("v_xor_b32 v6, 0x80, v5")
    a("s_lshl_b32 s44, s42, 20\ns_lshl_b32 s43, s3, 17\ns_add_u32 s44, s44, s43\ns_lshl_b32 s45, s41, 8\ns_add_u32 s44, s44, s45")
    a("s_lshl_b32 s46, s3, 12")
    a("v_lshlrev_b32 v8, 4, v0")
    a("v_mov_b32 v9, 0")
    a("s_lshl_b32 s47, s3, 10")
    a("s_mov_b32 m0, s46")
    a("s_or_b32 s45, s2, s3")
    a("s_cmp_lg_u32 s45, 0")
    a("s_waitcnt lgkmcnt(0)")
    ts(1)
    a("s_cbranch_scc1 .LW_nogen")
    if cfg.dbgt:
        a("v_mov_b32 v12, s48")
        a("buffer_store_dword v12, v9, s[12:15], 0 offen offset:4 sc1")
    a("s_mul_i32 s48, s48, 0x9E3779B1")
    a("s_lshr_b32 s49, s48, 15\ns_xor_b32 s48, s48, s49")
    a("s_mul_i32 s48, s48, 0x85EBCA6B")
    a("s_lshr_b32 s49, s48, 13\ns_xor_b32 s48, s48, s49")
    a("s_max_u32 s48, s48, 1")
    a("v_mov_b32 v12, s48")
    a("s_mov_b64 exec, 1")
    a("buffer_store_dword v12, v9, s[12:15], 0 offen sc1")
    a("s_mov_b64 exec, -1")
    a(".LW_nogen:")
    a("s_lshl_b32 s49, s41, 12")
    a("s_cmp_gt_u32 s3, 1")
    a("s_cbranch_scc1 .LW_nox")
    a("buffer_load_dwordx4 v[12:15], v8, s[4:7], s47 offen")
    a(".LW_nox:")
    a("s_mov_b32 s45, s44")
    for i in range(4):
        if i: a("s_add_u32 m0, m0, 1024\ns_add_u32 s45, s45, 32768")
        a(f"buffer_load_dwordx4 v{5 if i < 2 else 6}, s[16:19], s45 offen {NT} lds")
    a("s_cmp_lg_u32 s3, 2")
    a("s_cbranch_scc1 .LW_nowarm")
    a(f"s_lshl_b32 s45, s42, 10\ns_add_u32 s45, s45, s49")
    if WS_H1: a(f"s_add_u32 s45, s45, {WS_H1}")
    a("buffer_load_dwordx4 v[12:15], v8, s[8:11], s45 offen sc1")
    a(".LW_nowarm:")
    a("v_xor_b32 v7, v3, v2\nv_lshlrev_b32 v7, 4, v7\nv_lshl_add_u32 v7, v2, 13, v7")
    a("s_add_u32 m0, s46, 0x8000")
    a("s_mov_b32 s45, s44")
    for i in range(4):
        if i: a(f"v_xor_b32 v10, {64*i}, v7\ns_add_u32 m0, m0, 1024\ns_add_u32 s45, s45, 32768")
        a(f"buffer_load_dwordx4 v{10 if i else 7}, s[20:23], s45 offen {NT} lds")
    ts(2)
    a("s_load_dwordx2 s[24:25], s[0:1], 32")
    a("s_load_dwordx2 s[28:29], s[0:1], 40")
    a("s_load_dwordx4 s[36:39], s[0:1], 56")
    srd(24, 4194304); srd(28, 4194304)
    a("v_and_b32 v25, 1, v0")
    a("s_cmp_gt_u32 s3, 1")
    a("s_cbranch_scc1 .LW_noln")
    a("s_waitcnt vmcnt(8)")
    layernorm(12, 16, 40)
    a(f"s_mul_i32 s45, s3, {XNS}\ns_add_u32 s45, s45, {XN}")
    a("v_add_u32 v10, s45, v8")
    a("ds_write_b128 v10, v[16:19]")
    a(".LW_noln:")
    a(f"s_sub_u32 s97, s2, {cfg.f1_rot}\ns_and_b32 s97, s97, 127")
    a("s_cmp_lt_u32 s97, 88\ns_cselect_b32 s62, s3, 4\ns_lshr_b32 s62, s62, 2\ns_xor_b32 s62, s62, 1")
    if cfg.nof1 or cfg.f1_on != "W": a("s_mov_b32 s62, 0")
    a("s_and_b32 s63, s2, 7\ns_lshl_b32 s63, s63, 1\ns_bfe_u32 s45, s3, 0x10001\ns_add_u32 s63, s63, s45")
    a(f"v_mul_u32_u24 v26, {XNS}, v25\nv_lshl_add_u32 v26, v2, 4, v26")
    a(f"s_lshl_b32 s45, s63, 6\ns_add_u32 s45, s45, {XN}\nv_add_u32 v23, s45, v26")
    a(f"s_lshl_b32 s45, s42, 8\ns_add_u32 s45, s45, {XN}\nv_add_u32 v24, s45, v26")
    a("v_lshrrev_b32 v20, 2, v3\nv_and_b32 v21, 1, v2\nv_lshlrev_b32 v21, 3, v21\nv_lshl_add_u32 v21, v20, 1, v21")
    a("v_bfe_u32 v22, v0, 1, 1\ns_lshl_b32 s45, s3, 1\nv_add_u32 v22, s45, v22\nv_xor_b32 v22, v22, v21\nv_lshlrev_b32 v22, 4, v22")
    a("v_lshl_add_u32 v20, v2, 3, v20\nv_lshl_add_u32 v22, v20, 8, v22\nv_lshl_add_u32 v11, v25, 3, v22")
    a("v_lshlrev_b32 v16, 9, v25\nv_lshl_add_u32 v16, v2, 4, v16")
    a("s_lshl_b32 s51, s42, 10\ns_lshl_b32 s45, s3, 6\ns_add_u32 s51, s51, s45\ns_add_u32 s51, s51, s49")
    a("s_lshl_b32 s50, s41, 2\ns_add_u32 s50, s50, s42")
    a("v_mul_u32_u24 v26, 272, v25\nv_lshl_add_u32 v26, v2, 4, v26")
    a("v_bfe_u32 v21, v0, 1, 2\nv_lshl_add_u32 v1, v21, 10, v16")
    a("v_cmp_eq_u32 s[98:99], s42, v21")
    a("v_mul_u32_u24 v22, 272, v25\nv_lshl_add_u32 v22, v2, 3, v22\ns_lshl_b32 s45, s3, 5\nv_add_u32 v22, s45, v22")
    a("s_lshl_b32 s57, s3, 6\ns_add_u32 s57, s57, s49")
    a("v_xor_b32 v21, v2, v3\nv_lshlrev_b32 v21, 4, v21\nv_lshl_add_u32 v21, v3, 8, v21\nv_add_u32 v21, s46, v21")
    a(f"s_waitcnt vmcnt({cfg.ns_cnt})")
    a("s_load_dword s40, s[12:13], 0")
    a("s_waitcnt vmcnt(4) lgkmcnt(0)")
    budget()
    a(".LW_nchk:")
    a("s_cmp_lg_u32 s40, 0")
    a("s_cbranch_scc1 .LW_ngot")
    spend(".LW_ngot")
    a("buffer_load_dword v27, v9, s[12:15], 0 offen sc1")
    a("s_waitcnt vmcnt(0)")
    a("v_readfirstlane_b32 s40, v27")
    a("s_branch .LW_nchk")
    a(".LW_ngot:")
    a("v_mov_b32 v27, s40")
    ts(4)
    a("s_barrier")
    ts(5)
    for s in range(4):
        a(f"ds_read_b128 v[{32+4*s}:{35+4*s}], v24 offset:{64*s}")
        a(f"ds_read_b64_tr_b16 v[{48+4*s}:{49+4*s}], v11 offset:{(32*s)*256}")
        a(f"ds_read_b64_tr_b16 v[{50+4*s}:{51+4*s}], v11 offset:{(32*s+4)*256}")
    a("ds_read_b128 v[128:131], v23")
    a("v_add_u32 v23, 0x10000, v22\nv_add_u32 v24, 0x10000, v26")
    a("v_lshlrev_b32 v17, 3, v2\nv_lshrrev_b32 v17, v17, v27")
    a("v_lshrrev_b32 v18, 2, v17\nv_lshrrev_b32 v19, 4, v17\nv_lshrrev_b32 v20, 6, v17")
    a("v_and_b32 v28, 3, v0\nv_lshlrev_b32 v28, 3, v28\nv_lshrrev_b32 v28, v28, v27")
    a("v_lshrrev_b32 v29, 2, v28\nv_lshrrev_b32 v30, 4, v28\nv_lshrrev_b32 v31, 6, v28")
    a("s_waitcnt lgkmcnt(10)")
    a("v_mfma_f32_16x16x32_bf16 v[64:67], v[48:51], v[32:35], 0")
    a("s_waitcnt lgkmcnt(7)")
    a("v_mfma_f32_16x16x32_bf16 v[124:127], v[52:55], v[36:39], 0")
    a("s_waitcnt lgkmcnt(4)")
    a("v_mfma_f32_16x16x32_bf16 v[64:67], v[56:59], v[40:43], v[64:67]")
    a("s_waitcnt lgkmcnt(1)")
    a("v_mfma_f32_16x16x32_bf16 v[124:127], v[60:63], v[44:47], v[124:127]")
    def f1loads():
        a("s_cmp_eq_u32 s62, 0")
        a("s_cbranch_scc1 .LW_nof1")
        a("s_bitcmp1_b32 s3, 0")
        a("s_cselect_b32 s32, s38, s36\ns_cselect_b32 s33, s39, s37")
        srd(32, 1409024)
        a("v_mul_u32_u24 v46, 22016, v2\nv_lshl_add_u32 v46, v3, 4, v46")
        a(f"s_mul_i32 s48, s63, {32*2752}\ns_lshr_b32 s44, s97, 3\ns_lshl_b32 s44, s44, 8\ns_add_u32 s48, s48, s44")
        for i in range(8):
            a(f"buffer_load_dwordx4 v[{132+4*i}:{135+4*i}], v46, s[32:35], s48 offen {NT}")
            if i < 7: a("s_add_u32 s48, s48, 2752")
        a(".LW_nof1:")
    def exchange(acc, acc2, area, lab, dst, wreg=22, hook=None):
        a(f"s_add_u32 s45, s51, {area}" if area else "s_mov_b32 s45, s51")
        a(f"s_add_u32 s47, s57, {area}" if area else "s_mov_b32 s47, s57")
        budget()
        a("s_nop 4")
        for k in range(4): a(f"v_add_f32 v{acc+k}, v{acc+k}, v{acc2+k}")
        a("s_mov_b32 exec_lo, 0x00030003\ns_mov_b32 exec_hi, 0x00030003")
        for k in range(4): a(f"v_bfi_b32 v{acc2+k}, 3, v{17+k}, v{acc+k}")
        a(f"buffer_store_dwordx4 v[{acc2}:{acc2+3}], v16, s[8:11], s45 offen {cfg.fst}")
        a("s_mov_b64 exec, -1")
        a(f"s_add_u32 s45, s45, {WS_SLOW}")
        if cfg.xts == lab: ts(1)
        if hook: hook()
        a(f"{lab}_p:")
        a(f"buffer_load_dwordx4 v[32:35], v1, s[8:11], s47 offen {cfg.fld}")
        a("s_waitcnt vmcnt(0)")
        a("v_xor_b32 v36, v32, v17")
        for k in range(1, 4): a(f"v_bitop3_b32 v36, v36, v{32+k}, v{17+k} bitop3:0xf6")
        a("v_and_b32 v36, 3, v36")
        a("v_cmp_ne_u32 vcc, 0, v36")
        for k in range(4): a(f"v_cndmask_b32 v{32+k}, v{32+k}, v{acc+k}, s[98:99]")
        a("s_andn2_b64 vcc, vcc, s[98:99]")
        a(f"s_cbranch_scc0 {lab}_g")
        spend(f"{lab}_g")
        a(f"s_cmp_lg_u32 s96, {cfg.spin - cfg.fast_tries}")
        a(f"s_cbranch_scc1 {lab}_p")
        a("s_mov_b32 exec_lo, 0x00030003\ns_mov_b32 exec_hi, 0x00030003")
        a(f"buffer_store_dwordx4 v[{acc2}:{acc2+3}], v16, s[8:11], s45 offen sc1")
        a("s_mov_b64 exec, -1")
        a(f"s_add_u32 s47, s47, {WS_SLOW}")
        a(f"s_branch {lab}_p")
        a(f"{lab}_g:")
        if cfg.xts == lab and cfg.ts:
            ts(2)
            a(f"s_sub_u32 s72, {cfg.spin}, s96\ns_mul_i32 s72, s72, 100\ns_add_u32 s72, s72, s64\ns_add_u32 s72, s72, 100")
        for k in range(4): a(f"v_add_f32_dpp v{32+k}, v{32+k}, v{32+k} quad_perm:[2,3,0,1] row_mask:0xf bank_mask:0xf")
        for k in range(4): a(f"v_add_f32_dpp v{32+k}, v{32+k}, v{32+k} row_ror:4 row_mask:0xf bank_mask:0xf")
        a("s_mov_b32 exec_lo, 0x00030003\ns_mov_b32 exec_hi, 0x00030003")
        a("v_cvt_pk_bf16_f32 v32, v32, v33\nv_cvt_pk_bf16_f32 v33, v34, v35")
        a(f"ds_write_b64 v{wreg}, v[32:33] offset:{dst}")
        a("s_mov_b64 exec, -1")
    def slow_copy(acc2, area):
        a(f"s_add_u32 s45, s51, {area + WS_SLOW}")
        a("s_mov_b32 exec_lo, 0x00030003\ns_mov_b32 exec_hi, 0x00030003")
        a(f"buffer_store_dwordx4 v[{acc2}:{acc2+3}], v16, s[8:11], s45 offen sc1")
        a("s_mov_b64 exec, -1")
    exchange(64, 124, WS_H1, ".LW_h1", QV, 23, f1loads if cfg.f1_early == 2 else None)
    ts(6)
    for sq in range(4):
        if sq: a(f"v_xor_b32 v10, {64*sq}, v21")
        a(f"ds_read_b128 v[{48+4*sq}:{51+4*sq}], v{10 if sq else 21} offset:32768")
    a("s_and_b32 s45, s3, 1\ns_lshl_b32 s45, s45, 4")
    a("v_lshl_add_u32 v10, v2, 2, s45")
    a("v_lshrrev_b32 v10, v10, v27")
    for r in range(4):
        a(f"v_bfe_u32 v{72+r}, v10, {r}, 1\nv_lshlrev_b32 v{72+r}, 16, v{72+r}")
    for r in range(4): a(f"v_xor_b32 v{76+r}, 0x10000, v{72+r}")
    a("v_lshlrev_b32 v10, 8, v25\nv_lshl_add_u32 v10, v2, 3, v10\ns_lshl_b32 s45, s3, 5\nv_add_u32 v10, s45, v10")
    a(f"s_mov_b32 s47, {hex(f2u(QSCALE))}\ns_mov_b32 s53, 0xfffe0000\ns_mov_b32 s52, 0x07060302")
    a("s_waitcnt lgkmcnt(0)")
    a("s_barrier")
    for sq in range(4):
        a(f"ds_read_b128 v[{32+4*sq}:{35+4*sq}], v24 offset:{QV+64*sq}")
    a("s_waitcnt lgkmcnt(2)")
    a("v_mfma_f32_16x16x32_bf16 v[64:67], v[48:51], v[32:35], 0")
    a("v_mfma_f32_16x16x32_bf16 v[68:71], v[52:55], v[36:39], 0")
    a("s_waitcnt lgkmcnt(0)")
    a("v_mfma_f32_16x16x32_bf16 v[64:67], v[56:59], v[40:43], v[64:67]")
    a("v_mfma_f32_16x16x32_bf16 v[68:71], v[60:63], v[44:47], v[68:71]")
    a("s_mov_b32 exec_lo, 0x00030003\ns_mov_b32 exec_hi, 0x00030003")
    a("s_nop 5")
    for k in range(4): a(f"v_add_f32 v{64+k}, v{64+k}, v{68+k}")
    for k in range(4): a(f"v_mul_f32 v{64+k}, s47, v{64+k}")
    for k in range(4): a(f"v_add_u32 v{64+k}, v{64+k}, v{76+k}")
    for k in range(4): a(f"v_and_or_b32 v{64+k}, v{64+k}, s53, v{72+k}")
    a("v_perm_b32 v64, v65, v64, s52\nv_perm_b32 v65, v67, v66, s52")
    a(f"ds_write_b64 v10, v[64:65] offset:{QS}")
    a("s_mov_b64 exec, -1")
    a("s_waitcnt lgkmcnt(0)")
    a("s_barrier")
    a("s_cmp_lg_u32 s3, 4")
    a("s_cbranch_scc1 .LW_go")
    a(f"ds_read_b128 v[32:35], v8 offset:{QS}")
    a("v_lshlrev_b32 v36, 15, v2\nv_lshl_add_u32 v36, v3, 4, v36")
    a(f"s_lshl_b32 s45, s41, 10\ns_lshl_b32 s47, s42, 8\ns_add_u32 s45, s45, s47\ns_add_u32 s45, s45, {WS_Q}")
    a("s_mov_b32 exec_hi, 0")
    a("s_waitcnt lgkmcnt(0)")
    a("buffer_store_dwordx4 v[32:35], v36, s[8:11], s45 offen sc1")
    a("s_mov_b32 exec_lo, 1")
    ts(7)
    if cfg.use_go:
        if cfg.go_skip:
            a("s_lshr_b32 s45, s2, 5\ns_cmp_eq_u32 s45, 1\ns_cbranch_scc1 .LW_gog")
        a(f"s_lshl_b32 s45, s2, 7\ns_add_u32 s45, s45, {WS_GO}")
        budget()
        a(".LW_gop:")
        spend(".LW_gog")
        a(f"s_sleep {cfg.go_sleep}")
        a("buffer_load_dword v37, v9, s[8:11], s45 offen sc1")
        a("s_waitcnt vmcnt(0)")
        a("v_readfirstlane_b32 s47, v37")
        a("s_cmp_lg_u32 s47, s40")
        a("s_cbranch_scc1 .LW_gop")
        a(".LW_gog:")
    a("s_mov_b64 exec, -1")
    a(".LW_go:")
    if cfg.tlbw:
        a(f"s_cmp_lg_u32 s3, 5")
        a("s_cbranch_scc1 .LW_notlb")
        a("s_waitcnt lgkmcnt(0)")
        a(f"v_lshlrev_b32 v44, {cfg.tlbw}, v0")
        n = (1 << 20) >> cfg.tlbw
        a(f"s_mov_b64 exec, {(1 << min(n, 32)) - 1}" if n < 64 else "s_nop 0")
        a("s_lshl_b32 s45, s42, 20")
        a("buffer_load_dword v45, v44, s[24:27], s45 offen")
        a("s_mov_b32 s32, s36\ns_mov_b32 s33, s37")
        srd(32, 1409024)
        a("s_and_b32 s45, s2, 7\ns_mul_i32 s45, s45, 176128")
        a(f"s_mov_b64 exec, {(1 << max(1, min(n // 4, 32))) - 1}")
        a("buffer_load_dword v45, v44, s[32:35], s45 offen")
        a("s_mov_b32 s32, s38\ns_mov_b32 s33, s39")
        a("buffer_load_dword v45, v44, s[32:35], s45 offen")
        a("s_lshl_b32 s45, s41, 17")
        a(f"s_mov_b64 exec, {(1 << max(1, min(n // 8, 32))) - 1}")
        a("buffer_load_dword v45, v44, s[28:31], s45 offen")
        a("s_mov_b64 exec, 1")
        a(f"s_lshl_b32 s45, s41, 17\ns_add_u32 s45, s45, {WS_O}")
        a("buffer_load_dword v45, v9, s[8:11], s45 offen offset:0")
        a(f"s_mov_b32 s45, {WS_S + 0x40000}")
        a("buffer_load_dword v45, v9, s[8:11], s45 offen")
        a(f"s_mov_b32 s45, {WS_ML + 0x40000}")
        a("buffer_load_dword v45, v9, s[8:11], s45 offen")
        a("s_mov_b64 exec, -1")
        a(".LW_notlb:")
    def f1proc(skip):
        a("s_cmp_eq_u32 s62, 0")
        a(f"s_cbranch_scc1 {skip}")
        fconsts(27)
        ftags(27, 40, 44, 45)
        a("v_lshrrev_b32 v45, 1, v2\nv_lshl_add_u32 v44, v45, 9, v44")
        a(f"s_lshr_b32 s61, s97, 3\ns_lshl_b32 s61, s61, 15\ns_and_b32 s45, s3, 1\ns_lshl_b32 s45, s45, 14\ns_add_u32 s61, s61, s45\ns_lshl_b32 s45, s63, 10\ns_add_u32 s61, s61, s45\ns_add_u32 s61, s61, {WS_G}")
        a("s_waitcnt vmcnt(0)")
        transpose8(132, 164)
        a("s_nop 0")
        gemv_out(128, 164, 44, 61, 40, acc=64, out=96)
        ts(13)
        a("s_lshl_b32 s57, s3, 6\ns_add_u32 s57, s57, s49")
    if cfg.f1_early == 1: f1loads()
    if cfg.f1_early == 2:
        f1proc(".LW_nof3")
        a(".LW_nof3:")
    a("v_and_b32 v12, 1, v2\nv_lshlrev_b32 v12, 5, v12\nv_lshrrev_b32 v13, 1, v2\nv_lshl_add_u32 v12, v13, 4, v12")
    a("v_lshl_add_u32 v12, v12, 13, v4\nv_xor_b32 v13, 0x80, v12")
    a("s_and_b32 s48, s3, 3")
    a("s_lshl_b32 s44, s42, 20\ns_lshl_b32 s45, s48, 15\ns_add_u32 s44, s44, s45\ns_lshl_b32 s45, s41, 8\ns_add_u32 s44, s44, s45")
    a("v_lshl_add_u32 v14, v2, 10, v4\nv_xor_b32 v15, 0x80, v14")
    a("s_lshl_b32 s43, s41, 17\ns_lshl_b32 s45, s48, 14\ns_add_u32 s43, s43, s45\ns_lshl_b32 s45, s42, 8\ns_add_u32 s43, s43, s45")
    a("s_lshl_b32 s48, s48, 12\ns_add_u32 m0, s48, 0x10000")
    a("s_barrier")
    ts(8)
    slow_copy(124, WS_H1)
    a("s_cmp_lt_u32 s3, 4")
    a("s_cbranch_scc1 .LW_f1")
    for i in range(8):
        if i == 4: a(f"s_add_u32 m0, m0, {16384 - 3072}\ns_add_u32 s44, s44, {64*8192 - 3*8192}")
        elif i: a("s_add_u32 m0, m0, 1024\ns_add_u32 s44, s44, 8192")
        a(f"buffer_load_dwordx4 v{12 if (i & 3) < 2 else 13}, s[24:27], s44 offen {NT} lds")
    a("s_add_u32 m0, s48, 0x18000")
    for i in range(8):
        if i == 4: a(f"s_add_u32 m0, m0, {16384 - 3072}\ns_add_u32 s43, s43, {65536 - 3*4096}")
        elif i: a("s_add_u32 m0, m0, 1024\ns_add_u32 s43, s43, 4096")
        else: a("s_nop 0")
        a(f"buffer_load_dwordx4 v{14 if (i & 3) < 2 else 15}, s[28:31], s43 offen {NT} lds")
    a("s_cmp_lg_u32 s3, 6")
    a("s_cbranch_scc1 .LW_nowarm2")
    a(f"s_lshl_b32 s45, s42, 10\ns_add_u32 s45, s45, s49\ns_add_u32 s45, s45, {WS_H4}")
    a(f"buffer_load_dwordx4 v[32:35], v8, s[8:11], s45 offen sc1")
    a(".LW_nowarm2:")
    a("s_waitcnt vmcnt(0)")
    a("s_branch .LW_nof2")
    a(".LW_f1:")
    if cfg.f1_on == "W":
        if not cfg.f1_early: f1loads()
        if cfg.f1_early != 2: f1proc(".LW_nof2")
    a(".LW_nof2:")
    a("v_lshl_add_u32 v12, v2, 8, v4\nv_xor_b32 v13, 0x80, v12")
    a(f"s_lshl_b32 s44, s50, 15\ns_add_u32 s44, s44, s46\ns_add_u32 s44, s44, {WS_O}")
    a("s_add_u32 s46, s46, 0x20000")
    a("v_add_u32 v14, s46, v12\nv_xor_b32 v15, 0x80, v14")
    for k in range(4):
        a(f"v_bfe_u32 v10, v28, {2*k}, 1\nv_bfe_u32 v21, v28, {2*k+1}, 1\nv_lshl_or_b32 v{40+k}, v21, 16, v10")
    a("v_mul_u32_u24 v21, 272, v25\nv_lshl_add_u32 v21, v2, 3, v21\ns_lshl_b32 s45, s3, 5\nv_add_u32 v21, s45, v21")
    a("v_lshlrev_b32 v23, 4, v2")
    a("v_add_u32 v10, 0x10000, v11\nv_add_u32 v11, 0x20000, v11")
    a("s_mov_b32 s52, 0xaaaaaaaa\ns_mov_b32 s53, 0xaaaaaaaa")
    ts(9)
    a("s_barrier")
    for s in range(4):
        a(f"ds_read_b64_tr_b16 v[{96+4*s}:{97+4*s}], v10 offset:{(32*s)*256}")
        a(f"ds_read_b64_tr_b16 v[{98+4*s}:{99+4*s}], v10 offset:{(32*s+4)*256}")
    a("s_waitcnt lgkmcnt(4)")
    for s in range(4):
        a(f"ds_read_b64_tr_b16 v[{112+4*s}:{113+4*s}], v10 offset:{32768+(32*s)*256}")
        a(f"ds_read_b64_tr_b16 v[{114+4*s}:{115+4*s}], v10 offset:{32768+(32*s+4)*256}")
    a("s_cmp_lg_u32 s3, 0")
    a("s_cbranch_scc1 .LW_mlw")
    a("v_lshlrev_b32 v24, 11, v0")
    a(f"s_lshl_b32 s45, s42, 9\ns_lshl_b32 s47, s41, 4\ns_add_u32 s45, s45, s47\ns_add_u32 s45, s45, {WS_ML}\ns_add_u32 s47, s45, {64*2048}")
    budget()
    a("s_and_b32 s48, s2, 63")
    a("s_lshl_b64 exec, 1, s48")
    a(".LW_ml1:")
    spend(".LW_ml2")
    psleep()
    a("buffer_load_dwordx4 v[32:35], v24, s[8:11], s45 offen sc1")
    a("s_waitcnt vmcnt(0)")
    a("v_cmp_ne_u32 vcc, s40, v34")
    a("s_cbranch_vccnz .LW_ml1")
    a(".LW_ml2:")
    ts(3)
    budget()
    a("s_mov_b64 s[58:59], -1\ns_mov_b64 s[60:61], -1")
    a(".LW_mlp:")
    spend(".LW_mlx")
    a("s_mov_b64 exec, s[58:59]")
    a("s_cbranch_execz .LW_mls0")
    a("buffer_load_dwordx4 v[32:35], v24, s[8:11], s45 offen sc1")
    a(".LW_mls0:")
    a("s_mov_b64 exec, s[60:61]")
    a("s_cbranch_execz .LW_mls1")
    a("buffer_load_dwordx4 v[36:39], v24, s[8:11], s47 offen sc1")
    a(".LW_mls1:")
    a("s_mov_b64 exec, -1")
    a("s_waitcnt vmcnt(0)")
    a("v_cmp_ne_u32 s[58:59], s40, v34")
    a("v_cmp_ne_u32 s[60:61], s40, v38")
    a("s_or_b64 vcc, s[58:59], s[60:61]")
    a("s_cbranch_vccnz .LW_mlp")
    a(".LW_mlx:")
    a("s_mov_b64 exec, -1")
    a(".LW_mlw:")
    a("s_barrier")
    ts(10)
    def paydma():
        a("s_mov_b32 m0, s46")
        for i in range(4):
            if i == 0: a("s_nop 0")
            a(f"buffer_load_dwordx4 v{12 if i < 2 else 13}, s[8:11], s44 offen offset:{1024*i} sc1 lds")
    paydma()
    a("s_cmp_lg_u32 s3, 0")
    a("s_cbranch_scc1 .LW_scw")
    a("v_mov_b32 v48, v32\nv_mov_b32 v49, v36")
    allreduce2(48, 49, 50, 51, "v_max_f32")
    a("v_sub_f32 v48, v32, v48\nv_sub_f32 v49, v36, v49")
    a("v_exp_f32 v48, v48\nv_exp_f32 v49, v49")
    a("v_lshlrev_b32 v50, 1, v0")
    a("v_mul_f32 v52, v48, v33\nv_mul_f32 v53, v49, v37")
    allreduce2(52, 53, 54, 55, "v_add_f32")
    a("v_rcp_f32 v52, v52\nv_rcp_f32 v53, v53")
    a("s_nop 0")
    a("v_mul_f32 v48, v48, v52\nv_mul_f32 v49, v49, v53")
    a("v_cvt_pk_bf16_f32 v48, v48, v49")
    a(f"ds_write_b16 v50, v48 offset:{SC}")
    a(f"ds_write_b16_d16_hi v50, v48 offset:{SC+128}")
    a(".LW_scw:")
    budget()
    a(".LW_pv:")
    a("s_waitcnt vmcnt(0)")
    for i in range(4):
        a(f"ds_read_b128 v[{64+4*i}:{67+4*i}], v{14 if i < 2 else 15} offset:{1024*i}")
    for i in range(4):
        a(f"s_waitcnt lgkmcnt({3-i})")
        for k in range(4):
            a(f"v_xor_b32 v{44+i}, v{64+4*i}, v40" if k == 0 else f"v_bitop3_b32 v{44+i}, v{44+i}, v{64+4*i+k}, v{40+k} bitop3:0xf6")
    a("v_or3_b32 v48, v44, v45, v46\nv_or_b32 v48, v48, v47")
    a("v_and_b32 v48, 0x10001, v48")
    a("v_cmp_ne_u32 vcc, 0, v48")
    a("s_cbranch_vccz .LW_pk")
    spend(".LW_pk")
    for i in range(4):
        a(f"v_and_b32 v{44+i}, 0x10001, v{44+i}")
        a(f"v_cmp_ne_u32 vcc, 0, v{44+i}")
        a(f"s_cbranch_vccz .LW_pr{i}")
        a(f"buffer_load_dwordx4 v{12 if i < 2 else 13}, s[8:11], s44 offen offset:{1024*i} sc1 lds")
        a(f".LW_pr{i}:")
    a("s_branch .LW_pv")
    a(".LW_pk:")
    ts(11)
    a("s_barrier")
    for s in range(4):
        a(f"ds_read_b128 v[{48+4*s}:{51+4*s}], v23 offset:{SC+64*s}")
        a(f"ds_read_b64_tr_b16 v[{64+4*s}:{65+4*s}], v11 offset:{(32*s)*256}")
        a(f"ds_read_b64_tr_b16 v[{66+4*s}:{67+4*s}], v11 offset:{(32*s+4)*256}")
    a("s_waitcnt lgkmcnt(9)")
    a("v_mfma_f32_16x16x32_bf16 v[80:83], v[64:67], v[48:51], 0")
    a("s_waitcnt lgkmcnt(3)")
    a("v_mfma_f32_16x16x32_bf16 v[84:87], v[72:75], v[56:59], 0")
    a("v_mfma_f32_16x16x32_bf16 v[80:83], v[68:71], v[52:55], v[80:83]")
    a("s_waitcnt lgkmcnt(0)")
    a("v_mfma_f32_16x16x32_bf16 v[84:87], v[76:79], v[60:63], v[84:87]")
    a("s_mov_b32 exec_lo, 0x00030003\ns_mov_b32 exec_hi, 0x00030003")
    a("s_nop 5")
    for k in range(4): a(f"v_cndmask_b32 v{80+k}, v{80+k}, v{84+k}, s[52:53]")
    a("v_cvt_pk_bf16_f32 v80, v80, v81\nv_cvt_pk_bf16_f32 v81, v82, v83")
    a(f"ds_write_b64 v21, v[80:81] offset:{XX}")
    a("s_mov_b64 exec, -1")
    a("s_waitcnt lgkmcnt(0)")
    a("s_barrier")
    ts(14)
    for s in range(4):
        a(f"ds_read_b128 v[{48+4*s}:{51+4*s}], v26 offset:{XX+64*s}")
    a("s_waitcnt lgkmcnt(2)")
    a("v_mfma_f32_16x16x32_bf16 v[80:83], v[96:99], v[48:51], 0")
    a("v_mfma_f32_16x16x32_bf16 v[84:87], v[100:103], v[52:55], 0")
    a("s_waitcnt lgkmcnt(0)")
    a("v_mfma_f32_16x16x32_bf16 v[80:83], v[104:107], v[56:59], v[80:83]")
    a("v_mfma_f32_16x16x32_bf16 v[84:87], v[108:111], v[60:63], v[84:87]")
    exchange(80, 84, WS_H4, ".LW_h4", YY)
    a("s_waitcnt lgkmcnt(0)")
    a(f"s_add_u32 s45, s51, {WS_S}")
    a("s_barrier")
    ts(15)
    for s in range(4):
        a(f"ds_read_b128 v[{48+4*s}:{51+4*s}], v26 offset:{YY+64*s}")
    a("s_waitcnt lgkmcnt(2)")
    a("v_mfma_f32_16x16x32_bf16 v[64:67], v[112:115], v[48:51], 0")
    a("v_mfma_f32_16x16x32_bf16 v[68:71], v[116:119], v[52:55], 0")
    a("s_waitcnt lgkmcnt(0)")
    a("v_mfma_f32_16x16x32_bf16 v[64:67], v[120:123], v[56:59], v[64:67]")
    a("v_mfma_f32_16x16x32_bf16 v[68:71], v[124:127], v[60:63], v[68:71]")
    a("s_mov_b32 exec_lo, 0x00030003\ns_mov_b32 exec_hi, 0x00030003")
    a("s_nop 5")
    for k in range(4): a(f"v_add_f32 v{64+k}, v{64+k}, v{68+k}")
    for k in range(4): a(f"v_bfi_b32 v{64+k}, 3, v{17+k}, v{64+k}")
    a("buffer_store_dwordx4 v[64:67], v16, s[8:11], s45 offen sc1")
    ts(12)
    slow_copy(84, WS_H4)
    ts_flush()
    a("s_endpgm")

    QR = 131072
    MX = QR; LS = QR + 512; FLQ = QR + 1024; PX = QR + 2048
    FXN = QR + 16384; FG = FXN + 2304; FH = FG + 8192
    ZF, ZS = 0, 512
    def zprolog():
        a("v_and_b32 v3, 7, v0\nv_lshrrev_b32 v2, 3, v0")
        a("v_lshlrev_b32 v4, 12, v2\nv_lshl_add_u32 v4, v3, 4, v4")
        a("v_and_b32 v5, 3, v0\nv_lshlrev_b32 v5, 3, v5\nv_mov_b32 v6, s40\nv_lshrrev_b32 v10, v5, v6")
        a("v_lshrrev_b32 v11, 2, v10\nv_lshrrev_b32 v12, 4, v10\nv_lshrrev_b32 v13, 6, v10")
    def zreduce():
        for k in range(4):
            a(f"v_add_f32_dpp v{32+k}, v{32+k}, v{32+k} row_ror:8 row_mask:0xf bank_mask:0xf")
        for sw in ("v_permlane16_swap_b32", "v_permlane32_swap_b32"):
            for k in range(4): a(f"v_mov_b32 v{36+k}, v{32+k}")
            a("s_nop 0")
            for k in range(4): a(f"{sw} v{32+k}, v{36+k}")
            for k in range(4): a(f"v_add_f32 v{32+k}, v{32+k}, v{36+k}")
    def zgather(n, sbase, lab, masks):
        budget()
        a(f"{lab}_1:")
        spend(f"{lab}_2")
        psleep()
        a(f"s_mov_b64 exec, s[{masks[0]}:{masks[0]+1}]")
        a(f"buffer_load_dwordx4 v[32:35], v4, s[8:11], {sbase} offen sc1")
        a("s_waitcnt vmcnt(0)")
        a("v_xor_b32 v20, v32, v10")
        for k in range(1, 4): a(f"v_bitop3_b32 v20, v20, v{32+k}, v{10+k} bitop3:0xf6")
        quador(20)
        a("v_and_b32 v20, 3, v20")
        a(f"v_cmp_ne_u32 s[{masks[0]}:{masks[0]+1}], 0, v20")
        a(f"s_bcnt1_i32_b64 s48, s[{masks[0]}:{masks[0]+1}]")
        a(f"s_cmp_gt_u32 s48, {cfg.z_pre}")
        a(f"s_cbranch_scc1 {lab}_1")
        a(f"{lab}_2:")
        budget()
        a(f"{lab}_p:")
        spend(f"{lab}_ok")
        for i in range(n):
            a(f"s_mov_b64 exec, s[{masks[i]}:{masks[i]+1}]")
            a(f"s_cbranch_execz {lab}_s{i}")
            if i: a(f"s_add_u32 s48, {sbase}, {32768*i}")
            a(f"buffer_load_dwordx4 v[{32+4*i}:{35+4*i}], v4, s[8:11], {'s48' if i else sbase} offen sc1")
            a(f"{lab}_s{i}:")
        a("s_waitcnt vmcnt(0)")
        a("s_mov_b64 vcc, 0")
        a("s_mov_b64 exec, -1")
        for i in range(n):
            a(f"v_xor_b32 v{60+i}, v{32+4*i}, v10")
            for k in range(1, 4): a(f"v_bitop3_b32 v{60+i}, v{60+i}, v{32+4*i+k}, v{10+k} bitop3:0xf6")
        for qp in ("[1,0,3,2]", "[2,3,0,1]"):
            if n < 3: a("s_nop 0")
            for i in range(n): a(f"v_or_b32_dpp v{60+i}, v{60+i}, v{60+i} quad_perm:{qp} row_mask:0xf bank_mask:0xf")
        for i in range(n): a(f"v_and_b32 v{60+i}, 3, v{60+i}")
        for i in range(n):
            a(f"s_mov_b64 exec, s[{masks[i]}:{masks[i]+1}]")
            a(f"v_cmp_ne_u32 s[{masks[i]}:{masks[i]+1}], 0, v{60+i}")
            a(f"s_or_b64 vcc, vcc, s[{masks[i]}:{masks[i]+1}]")
        a(f"s_cbranch_vccnz {lab}_p")
        a(f"{lab}_ok:")
        a("s_mov_b64 exec, -1")
    a(".L_A:")
    a("s_cmp_ge_u32 s2, 256")
    a("s_cbranch_scc1 .L_end")
    a("s_load_dwordx2 s[16:17], s[0:1], 8")
    a("s_load_dwordx2 s[4:5], s[0:1], 0")
    a("s_load_dwordx4 s[36:39], s[0:1], 56")
    a("s_load_dwordx2 s[12:13], s[0:1], 88")
    a("s_load_dwordx2 s[8:9], s[0:1], 96")
    a("s_load_dwordx2 s[28:29], s[0:1], 72")
    a("s_load_dwordx2 s[32:33], s[0:1], 80")
    a("v_lshrrev_b32 v1, 6, v0")
    a("v_and_b32 v0, 63, v0")
    a("v_readfirstlane_b32 s3, v1")
    a("s_sub_u32 s43, s2, 128")
    a("s_bfe_u32 s41, s43, 0x10002")
    a("s_lshr_b32 s42, s43, 3\ns_lshl_b32 s42, s42, 2\ns_and_b32 s44, s43, 3\ns_add_u32 s42, s42, s44")
    a("s_lshl_b32 s44, s41, 6\ns_add_u32 s42, s42, s44")
    srd(16, 16777216); srd(12, 256); srd(8, WS_SIZE); srd(4, 2048); srd(28, 1409024); srd(32, 2048)
    a("v_lshlrev_b32 v8, 4, v0")
    a("v_mov_b32 v9, 0")
    a("v_lshrrev_b32 v2, 4, v0\nv_and_b32 v3, 15, v0\nv_and_b32 v25, 1, v0")
    a("s_and_b32 s47, s3, 3")
    def pv_setup():
        a("v_lshrrev_b32 v7, 5, v0")
        a("v_bfe_u32 v4, v0, 2, 2")
        a("v_lshlrev_b32 v5, 10, v7\nv_lshl_add_u32 v5, v4, 8, v5\nv_lshl_add_u32 v5, v4, 6, v5")
        a("v_bfe_u32 v6, v0, 4, 1\nv_bfe_u32 v4, v0, 1, 1\nv_lshl_add_u32 v6, v6, 1, v4\nv_xor_b32 v6, v6, v7\nv_lshl_add_u32 v5, v6, 4, v5")
        a("v_lshl_add_u32 v5, v25, 3, v5")
        a("s_lshr_b32 s45, s3, 2\ns_lshl_b32 s45, s45, 7\nv_xor_b32 v5, s45, v5")
        a("s_lshl_b32 s44, s47, 15\nv_add_u32 v32, s44, v5")
        a("v_xor_b32 v33, 32, v32\nv_xor_b32 v34, 64, v32\nv_xor_b32 v35, 96, v32")
        a(f"v_add_u32 v51, {PX}, v8")
        a("v_bfe_u32 v4, v0, 4, 1\nv_lshl_add_u32 v5, v7, 2, v4\nv_lshlrev_b32 v52, 17, v5\nv_lshl_add_u32 v52, v3, 3, v52")
        a(f"s_add_u32 s44, s44, s45\ns_lshl_b32 s45, s42, 8\ns_add_u32 s44, s44, s45\ns_add_u32 s44, s44, {WS_O}")
        for r in range(0, 16, 2):
            a(f"s_add_u32 s{48+r//2}, s44, {((r & 3) + 8 * (r >> 2)) * 131072}")
        a("v_and_b32 v5, 7, v0\nv_lshl_add_u32 v4, v5, 1, v4\nv_lshlrev_b32 v4, 1, v4\nv_lshrrev_b32 v4, v4, v11\nv_and_b32 v5, 1, v4\nv_bfe_u32 v4, v4, 1, 1\nv_lshl_or_b32 v53, v4, 16, v5")
        a("s_mov_b32 s56, 0x00010001")
    def tread(n):
        k, j = n >> 1, n & 1
        off = (8 * (k >> 1) + 4 * (k & 1)) * 1024
        r = 96 + 4 * n
        a(f"ds_read_b64_tr_b16 v[{r}:{r+1}], v{32+2*j} offset:{off}")
        a(f"ds_read_b64_tr_b16 v[{r+2}:{r+3}], v{33+2*j} offset:{off+2048}")
    a("s_cmp_lt_u32 s3, 4")
    a("s_cbranch_scc1 .LA_comp")
    if cfg.pf:
        a("s_load_dwordx2 s[20:21], s[0:1], 24")
        srd(20, 4194304)
    a("s_lshl_b32 s46, s47, 13")
    a("s_lshl_b32 s44, s42, 17\ns_lshl_b32 s45, s47, 15\ns_add_u32 s44, s44, s45")
    a("v_lshlrev_b32 v4, 2, v2\nv_xor_b32 v4, v4, v3\nv_lshlrev_b32 v4, 4, v4\nv_lshl_add_u32 v4, v2, 10, v4")
    a("v_xor_b32 v5, 16, v4\nv_xor_b32 v6, 32, v4\nv_xor_b32 v7, 48, v4")
    a("s_mov_b32 m0, s46")
    a("s_waitcnt lgkmcnt(0)")
    ts(1)
    if cfg.pf:
        a("s_and_b32 s45, s43, 7\ns_lshl_b32 s45, s45, 2\ns_lshr_b32 s48, s43, 5\ns_add_u32 s45, s45, s48\ns_lshl_b32 s45, s45, 8")
        a("s_bfe_u32 s48, s43, 0x20003\ns_lshl_b32 s48, s48, 20\ns_add_u32 s45, s45, s48\ns_lshl_b32 s48, s47, 18\ns_add_u32 s45, s45, s48")
        a("v_lshlrev_b32 v10, 13, v2\nv_lshl_add_u32 v10, v3, 4, v10")
        a(f"s_add_u32 m0, s46, {QR}")
        if cfg.pf_pre: a("buffer_load_dword v12, v9, s[4:7], 0 offen\ns_waitcnt vmcnt(0)")
        else: a("s_nop 0")
        for i in range(8):
            a(f"buffer_load_dwordx4 v10, s[20:23], s45 offen {cfg.pf_nt} lds")
            if i < 7: a("s_add_u32 s45, s45, 32768")
        a("s_mov_b32 m0, s46")
    else:
        if cfg.f1_on == "H":
            a("v_lshlrev_b32 v26, 5, v0")
            a("buffer_load_dwordx4 v[12:15], v26, s[4:7], 0 offen")
            a("buffer_load_dwordx4 v[16:19], v26, s[4:7], 0 offen offset:16")
            a("s_and_b32 s97, s43, 7\ns_lshl_b32 s97, s97, 1\ns_lshr_b32 s45, s47, 1\ns_add_u32 s97, s97, s45")
            a("v_lshlrev_b32 v26, 10, v25\nv_lshl_add_u32 v26, v2, 4, v26\ns_lshl_b32 s45, s97, 6")
            a("buffer_load_dwordx4 v[20:23], v26, s[4:7], s45 offen")
        else:
            a("buffer_load_dword v12, v9, s[4:7], 0 offen")
    def crow(i):
        if i:
            if i % 8: a("s_add_u32 m0, m0, 1024\ns_add_u32 s44, s44, 4096")
            else: a(f"s_add_u32 m0, m0, {32768 - 7*1024}\ns_sub_u32 s44, s44, {7*4096 - 256}")
        a(f"buffer_load_dwordx4 v{4 + (i & 3)}, s[16:19], s44 offen {NT} lds")
    a(f"s_add_u32 s60, s46, {QR}")
    a(f"s_lshl_b32 s63, s41, 15\ns_add_u32 s63, s63, s46\ns_add_u32 s63, s63, {WS_Q}")
    a("s_and_b32 s45, s47, 1\ns_lshl_b32 s45, s45, 5")
    a("v_xor_b32 v24, s45, v8")
    a("v_add_u32 v58, s60, v24")
    def qrows():
        a("s_mov_b32 s61, m0\ns_mov_b32 m0, s60\ns_mov_b32 s45, s63")
        for i in range(8):
            if i == 4: a("s_add_u32 m0, m0, 4096\ns_add_u32 s45, s45, 4096")
            a(f"v_xor_b32 v10, {16*(((i&3)<<2) | (i>>2))}, v24")
            a(f"buffer_load_dwordx4 v10, s[8:11], s45 offen offset:{1024*(i&3)} sc1 lds")
        a("s_mov_b32 m0, s61")
    if cfg.pf: a(f"s_waitcnt vmcnt({cfg.pf_cnt})")
    elif cfg.pf_delay: a("s_waitcnt vmcnt(0)")
    ts(2)
    issued = []
    for i in range(32):
        win = cfg.cwin1 if i < cfg.n1 else cfg.cwin
        if i == cfg.nonce_row:
            a("buffer_load_dword v11, v9, s[12:15], 0 offen sc1"); issued.append("n")
        if i == cfg.go_row:
            k = len(issued) - 1 - issued.index("n")
            a(f"s_waitcnt vmcnt({min(k, 63)})")
            budget()
            a(".LH_nchk:")
            a("v_readfirstlane_b32 s40, v11")
            a("s_cmp_lg_u32 s40, 0")
            a("s_cbranch_scc1 .LH_ngot")
            spend(".LH_ngot")
            a("buffer_load_dword v11, v9, s[12:15], 0 offen sc1")
            a("s_waitcnt vmcnt(0)")
            a("s_branch .LH_nchk")
            a(".LH_ngot:")
            if cfg.use_go:
                a(f"s_lshl_b32 s45, s43, 7\ns_add_u32 s45, s45, {WS_GO}")
                a("s_cmp_lg_u32 s3, 4")
                a("s_cbranch_scc1 .LH_nogo")
                a("s_mov_b64 exec, 1")
                a("buffer_store_dword v11, v9, s[8:11], s45 offen sc1")
                a("s_mov_b64 exec, -1")
                a(".LH_nogo:")
        if i == cfg.q_row:
            qrows(); issued += ["q"] * 8
        if win and i >= win: a(f"s_waitcnt vmcnt({win-1 + (8 if cfg.q_row <= i < cfg.q_row + cfg.q_ext else 0)})")
        crow(i); issued.append("c")
    if cfg.q_row >= 32:
        if cfg.q_wait is not None: a(f"s_waitcnt vmcnt({cfg.q_wait})")
        qrows(); issued += ["q"] * 8
    assert cfg.q_row >= 24
    ts(3)
    if cfg.f1_on == "H":
        a("s_mov_b32 s58, 0xaaaaaaaa\ns_mov_b32 s59, 0xaaaaaaaa")
        ln_stats(12, 32)
        ln_apply(20, 32)
        FS[:] = [100, 98, 22]
        fconsts(11)
        ftags(11, 28, 27, 26)
        a("v_lshrrev_b32 v26, 1, v2\nv_lshl_add_u32 v27, v26, 9, v27")
        a("s_bitcmp1_b32 s3, 0")
        a("s_cselect_b32 s24, s38, s36\ns_cselect_b32 s25, s39, s37")
        srd(24, 1409024)
        a("v_mul_u32_u24 v26, 22016, v2\nv_lshl_add_u32 v26, v3, 4, v26")
        a(f"s_mul_i32 s20, s97, {32*2752}\ns_lshr_b32 s45, s43, 3\ns_lshl_b32 s21, s45, 8\ns_add_u32 s20, s20, s21")
        a(f"s_lshl_b32 s21, s45, 15\ns_and_b32 s45, s47, 1\ns_lshl_b32 s45, s45, 14\ns_add_u32 s21, s21, s45\ns_lshl_b32 s45, s97, 10\ns_add_u32 s21, s21, s45\ns_add_u32 s21, s21, {WS_G}")
    pv_setup()
    a("v_and_b32 v10, 3, v0\nv_lshlrev_b32 v10, 3, v10\nv_lshrrev_b32 v12, v10, v11")
    for k in range(4):
        a(f"v_bfe_u32 v56, v12, {2*k}, 1\nv_bfe_u32 v57, v12, {2*k+1}, 1\nv_lshl_or_b32 v{60+k}, v57, 16, v56")
    a("v_lshlrev_b32 v5, 13, v2\nv_lshl_add_u32 v5, v3, 4, v5")
    a("s_sub_u32 s62, s43, 85\ns_lshl_b32 s46, s62, 15\ns_lshl_b32 s45, s47, 8\ns_add_u32 s46, s46, s45")
    if cfg.a_pf:
        a("s_load_dwordx2 s[24:25], s[0:1], 40")
        srd(24, 4194304)
        a("v_lshlrev_b32 v13, 10, v2\nv_lshl_add_u32 v13, v3, 4, v13")
        a("s_and_b32 s57, s43, 7\ns_lshl_b32 s57, s57, 2\ns_lshr_b32 s45, s43, 5\ns_add_u32 s57, s57, s45\ns_lshl_b32 s57, s57, 17")
        a(f"s_bfe_u32 s45, s43, 0x20003\ns_lshl_b32 s45, s45, 8\ns_add_u32 s57, s57, s45\ns_lshl_b32 s45, s47, 15\ns_add_u32 s57, s57, s45\ns_add_u32 s57, s57, {(8 - cfg.a_pf) * 4096}")
        a("s_waitcnt lgkmcnt(0)")
    NAFTERQ = len(issued) - 1 - max(j for j, t in enumerate(issued) if t == "q")
    assert cfg.q_row >= 32
    a("s_waitcnt vmcnt(8)")
    ts(4)
    a("s_barrier")
    budget()
    a(".LH_qv:")
    a("s_waitcnt vmcnt(0)")
    ts(7)
    for i in range(8):
        a(f"v_xor_b32 v10, {16*(((i&3)<<2) | (i>>2))}, v58")
        a(f"ds_read_b128 v[{64+4*i}:{67+4*i}], v10 offset:{1024*i}")
    for i in range(8):
        a(f"s_waitcnt lgkmcnt({7-i})")
        for k in range(4):
            a("v_xor_b32 v56, v64, v60" if i == 0 and k == 0 else f"v_bitop3_b32 v56, v56, v{64+4*i+k}, v{60+k} bitop3:0xf6")
    a("v_and_b32 v56, s56, v56")
    a("v_cmp_ne_u32 vcc, 0, v56")
    a("s_cbranch_vccz .LH_qk")
    spend(".LH_qk")
    qrows()
    a("s_branch .LH_qv")
    a(".LH_qk:")
    a("s_barrier")
    if cfg.f1_on == "H":
        a("s_cmp_ge_u32 s43, 88")
        a("s_cbranch_scc1 .LH_nof1")
        for i in range(8):
            a(f"buffer_load_dwordx4 v[{160+4*i}:{163+4*i}], v26, s[24:27], s20 offen {NT}")
            if i < 7: a("s_add_u32 s20, s20, 2752")
        a(".LH_nof1:")
    a("s_cmp_lt_u32 s43, 85")
    a("s_cbranch_scc1 .LH_now2")
    for i in range(8):
        if i == 4: a("s_add_u32 s46, s46, 4096")
        a(f"buffer_load_dwordx4 v[{208+4*i}:{211+4*i}], v5, s[28:31], s46 offen offset:{1024*(i&3)} {NT}")
    if cfg.a_pf:
        a("s_branch .LH_now3")
    a(".LH_now2:")
    if cfg.a_pf:
        for i in range(cfg.a_pf):
            a(f"buffer_load_dwordx4 v[{208+4*i}:{211+4*i}], v13, s[24:27], s57 offen {cfg.a_pf_nt}")
            if i < cfg.a_pf - 1: a("s_add_u32 s57, s57, 4096")
        a(".LH_now3:")
    for n in range(16):
        if n >= 7: a("s_waitcnt lgkmcnt(12)")
        tread(n)
    a("s_waitcnt lgkmcnt(0)")
    a("s_barrier\ns_barrier")
    def hf1(lab):
        a("s_cmp_ge_u32 s43, 88")
        a(f"s_cbranch_scc1 {lab}")
        a("s_waitcnt vmcnt(8)" if False else "s_waitcnt vmcnt(0)")
        transpose8(160, 64)
        a("s_nop 0")
        gemv_out(20, 64, 27, 21, 28, acc=160, out=192)
        ts(5)
        a(f"{lab}:")
        FS[:] = [52, 54, 56]
    if cfg.f1_on == "H" and cfg.hf1_pre: hf1(".LH_nof2")
    a(f"s_setprio {cfg.hprio}")
    a("s_barrier")
    for k in range(8):
        a(f"ds_read_b128 v[{64+4*k}:{67+4*k}], v51 offset:{1024*k}")
    a("s_branch .LA_pv")

    a(".LA_comp:")
    a("s_waitcnt lgkmcnt(0)")
    ts(1)
    def a_nonce(lab):
        budget()
        a(f"{lab}p:")
        spend(f"{lab}g")
        a(f"s_sleep {cfg.a_nsleep}")
        a("buffer_load_dword v11, v9, s[12:15], 0 offen sc1")
        a("s_waitcnt vmcnt(0)")
        a("v_readfirstlane_b32 s40, v11")
        a("s_cmp_eq_u32 s40, 0")
        a(f"s_cbranch_scc1 {lab}p")
        a(f"{lab}g:")
    if cfg.f1_on == "A":
        a("s_cmp_ge_u32 s43, 88")
        a("s_cbranch_scc1 .LA_nof1")
        a("v_lshlrev_b32 v4, 5, v0")
        a("buffer_load_dwordx4 v[12:15], v4, s[4:7], 0 offen")
        a("buffer_load_dwordx4 v[16:19], v4, s[4:7], 0 offen offset:16")
        a("s_and_b32 s50, s43, 7\ns_lshl_b32 s50, s50, 1\ns_lshr_b32 s51, s3, 1\ns_add_u32 s50, s50, s51")
        a("v_lshlrev_b32 v4, 10, v25\nv_lshl_add_u32 v4, v2, 4, v4\ns_lshl_b32 s45, s50, 6")
        a("buffer_load_dwordx4 v[20:23], v4, s[4:7], s45 offen")
        a("s_bitcmp1_b32 s3, 0")
        a("s_cselect_b32 s20, s38, s36\ns_cselect_b32 s21, s39, s37")
        srd(20, 1409024)
        a("v_mul_u32_u24 v4, 22016, v2\nv_lshl_add_u32 v4, v3, 4, v4")
        a(f"s_mul_i32 s45, s50, {32*2752}\ns_lshr_b32 s51, s43, 3\ns_lshl_b32 s44, s51, 8\ns_add_u32 s45, s45, s44")
        if cfg.f1_delay: a("s_waitcnt vmcnt(0)")
        for i in range(8):
            a(f"buffer_load_dwordx4 v[{96+4*i}:{99+4*i}], v4, s[20:23], s45 offen {NT}")
            if i < 7: a("s_add_u32 s45, s45, 2752")
        a(".LA_nof1:")
    if cfg.prefetch:
        a(f"s_cmp_ge_u32 s43, {cfg.pf_cus}")
        a("s_cbranch_scc1 .LA_nopf")
        a("s_getpc_b64 s[24:25]")
        a(".LA_pc:")
        a(f"s_sub_u32 s24, s24, .LA_pc-{K}\ns_subb_u32 s25, s25, 0")
        a(f"s_mov_b32 s26, .L_codeend-{K}\ns_mov_b32 s27, 0x20000")
        a("s_mul_i32 s45, s3, 5120")
        for i in range(5):
            a(f"buffer_load_dwordx4 v[28:31], v8, s[24:27], s45 offen")
            if i < 4: a("s_add_u32 s45, s45, 1024")
        a(".LA_nopf:")
    if cfg.f1_on == "A":
        a("s_cmp_ge_u32 s43, 88")
        a("s_cbranch_scc1 .LA_nof2")
        a("s_mov_b32 s58, 0xaaaaaaaa\ns_mov_b32 s59, 0xaaaaaaaa")
        a("s_waitcnt vmcnt(8)")
        ln_stats(12, 32)
        ln_apply(20, 32)
        fconsts(11)
        a(f"s_lshl_b32 s61, s51, 15\ns_and_b32 s45, s3, 1\ns_lshl_b32 s45, s45, 14\ns_add_u32 s61, s61, s45\ns_lshl_b32 s45, s50, 10\ns_add_u32 s61, s61, s45\ns_add_u32 s61, s61, {WS_G}")
        a("s_waitcnt vmcnt(0)")
        transpose8(96, 128)
        a_nonce(".LA_n1")
        ftags(11, 28, 27, 26)
        a("v_lshrrev_b32 v26, 1, v2\nv_lshl_add_u32 v27, v26, 9, v27")
        gemv_out(20, 128, 27, 61, 28, acc=160, out=192)
        ts(3)
        a("s_branch .LA_n2g")
        a(".LA_nof2:")
    a_nonce(".LA_n2")
    ts(2)
    pv_setup()
    a("v_lshrrev_b32 v2, 5, v0")
    a("v_and_b32 v3, 31, v0")
    a("v_and_b32 v4, 3, v3\nv_bfe_u32 v5, v3, 2, 2\nv_lshl_or_b32 v5, v4, 2, v5\nv_xor_b32 v5, v5, v2\nv_lshlrev_b32 v5, 4, v5")
    a("v_lshl_add_u32 v24, v3, 10, v5")
    a(f"v_add_u32 v24, {QR}, v24")
    a("v_lshl_add_u32 v5, v4, 8, v5\nv_lshrrev_b32 v4, 2, v3\nv_lshl_add_u32 v5, v4, 10, v5")
    a("s_lshl_b32 s45, s3, 13\nv_add_u32 v16, s45, v5")
    for k in range(1, 8):
        a(f"v_xor_b32 v{16+k}, {32*k}, v16\nv_xor_b32 v{24+k}, {32*k}, v24")
    a(f"s_lshl_b32 s45, s3, 7\ns_add_u32 s45, s45, {MX}")
    a("v_lshlrev_b32 v48, 2, v3")
    a(f"v_add_u32 v49, {MX}, v48")
    a("v_add_u32 v48, s45, v48")
    a(f"s_lshl_b32 s45, s3, 11\ns_add_u32 s45, s45, {PX}")
    a("v_add_u32 v50, s45, v8")
    a("v_lshlrev_b32 v54, 4, v3")
    a(f"s_lshl_b32 s46, s42, 11\ns_lshl_b32 s45, s3, 9\ns_add_u32 s46, s46, s45\ns_add_u32 s46, s46, {WS_ML}")
    a("v_mov_b32 v58, s40\nv_mov_b32 v59, 0")
    ts(4)
    a("s_barrier")
    ts(12)
    for s_ in range(32):
        if s_ >= 15: a("s_waitcnt lgkmcnt(14)")
        a(f"ds_read_b128 v[{96+4*s_}:{99+4*s_}], v{16+(s_&7)} offset:{32768*((s_>>3)&1)}")
        if 8 <= s_ < 16: a(f"v_add_u32 v{16+(s_&7)}, 0x10000, v{16+(s_&7)}")
    a("s_waitcnt lgkmcnt(0)")
    a("s_barrier")
    ts(5)
    LA = 8
    def sread(s):
        r = 224 + 4 * (s % LA)
        a(f"ds_read_b128 v[{r}:{r+3}], v{24+(s&7)} offset:{256*(s>>3)}")
    for s in range(LA): sread(s)
    for s in range(32):
        r = 224 + 4 * (s % LA)
        outstanding = min(LA, 32 - s)
        a(f"s_waitcnt lgkmcnt({outstanding-1})")
        if s == 31: a("s_barrier")
        a(f"v_mfma_f32_32x32x16_bf16 v[64:79], v[{96+4*s}:{99+4*s}], v[{r}:{r+3}], {'0' if s == 0 else 'v[64:79]'}")
        if s + LA < 32: sread(s + LA)
    ts(6)
    a("s_nop 11" if not cfg.ts else "s_nop 10")
    a("v_max3_f32 v4, v64, v65, v66\nv_max3_f32 v5, v67, v68, v69\nv_max3_f32 v6, v70, v71, v72\nv_max3_f32 v7, v73, v74, v75")
    a("v_max3_f32 v4, v4, v76, v77\nv_max3_f32 v5, v5, v78, v79\nv_max3_f32 v4, v4, v6, v7\nv_max_f32 v4, v4, v5")
    a("v_mov_b32 v5, v4\ns_nop 1\nv_permlane32_swap_b32 v4, v5\nv_max_f32 v4, v4, v5")
    a("ds_write_b32 v48, v4")
    a("s_waitcnt lgkmcnt(0)")
    a("s_barrier")
    a("ds_read2_b32 v[4:5], v49 offset0:0 offset1:32")
    a("ds_read2_b32 v[6:7], v49 offset0:64 offset1:96")
    a("s_waitcnt lgkmcnt(0)")
    a("v_max3_f32 v4, v4, v5, v6\nv_max_f32 v56, v4, v7")
    for r in range(8): a(f"v_sub_f32 v{64+r}, v{64+r}, v56")
    for r in range(8):
        a(f"v_exp_f32 v{64+r}, v{64+r}")
        a(f"v_sub_f32 v{72+r}, v{72+r}, v56")
    for e in range(4):
        a(f"v_exp_f32 v{72+2*e}, v{72+2*e}\nv_exp_f32 v{73+2*e}, v{73+2*e}")
        a(f"v_cvt_pk_bf16_f32 v{80+e}, v{64+2*e}, v{65+2*e}")
    a("ds_write_b128 v50, v[80:83]")
    for e in range(4, 8): a(f"v_cvt_pk_bf16_f32 v{80+e}, v{64+2*e}, v{65+2*e}")
    a("ds_write_b128 v50, v[84:87] offset:1024")
    for e in range(0, 8, 2): a(f"v_pk_add_f32 v[{64+e}:{65+e}], v[{64+e}:{65+e}], v[{72+e}:{73+e}]")
    for e in range(0, 4, 2): a(f"v_pk_add_f32 v[{64+e}:{65+e}], v[{64+e}:{65+e}], v[{68+e}:{69+e}]")
    a("v_pk_add_f32 v[64:65], v[64:65], v[66:67]\nv_add_f32 v64, v64, v65")
    a("v_mov_b32 v65, v64\ns_nop 1\nv_permlane32_swap_b32 v64, v65\nv_add_f32 v64, v64, v65")
    a("ds_write_b32 v48, v64 offset:512")
    for n in range(cfg.pv_pre): tread(n)
    a(f"s_waitcnt lgkmcnt({2*cfg.pv_pre})")
    a("s_barrier")
    ts(7)
    a(f"s_waitcnt lgkmcnt({min(2*cfg.pv_pre, 5)})")
    a("ds_read2_b32 v[4:5], v49 offset0:128 offset1:160")
    a("ds_read2_b32 v[6:7], v49 offset0:192 offset1:224")
    for k in range(8):
        a(f"ds_read_b128 v[{64+4*k}:{67+4*k}], v51 offset:{1024*k}")
    a("s_waitcnt lgkmcnt(8)")
    a("v_add_f32 v4, v4, v5\nv_add_f32 v6, v6, v7\nv_add_f32 v57, v4, v6")
    a("s_mov_b32 exec_hi, 0")
    a("buffer_store_dwordx4 v[56:59], v54, s[8:11], s46 offen sc1")
    a("s_mov_b64 exec, -1")
    for n in range(cfg.pv_pre, 16):
        a("s_waitcnt lgkmcnt(12)")
        tread(n)
    ts(15)
    a("s_waitcnt lgkmcnt(0)")
    a(".LA_pv:")
    ts(13)
    for n in range(16):
        k, j = n >> 1, n & 1
        if j == 0: a(f"s_waitcnt lgkmcnt({7-k})")
        acc = 160 + 16 * j
        a(f"v_mfma_f32_32x32x16_bf16 v[{acc}:{acc+15}], v[{64+4*k}:{67+4*k}], v[{96+4*n}:{99+4*n}], {'0' if k == 0 else f'v[{acc}:{acc+15}]'}")
    a("s_setprio 0")
    ts(14)
    def epiA(pr):
        t = 192 + 2 * pr; r = 2 * pr
        a(f"v_cvt_pk_bf16_f32 v{t}, v{160+r}, v{176+r}")
        a(f"v_cvt_pk_bf16_f32 v{t+1}, v{161+r}, v{177+r}")
        a(f"v_bfi_b32 v{t}, s56, v53, v{t}")
        a(f"v_bfi_b32 v{t+1}, s56, v53, v{t+1}")
    def epiB(pr):
        t = 192 + 2 * pr
        a(f"v_permlane16_swap_b32 v{t}, v{t+1}")
        if not cfg.nostore: a(f"buffer_store_dwordx2 v[{t}:{t+1}], v52, s[8:11], s{48+pr} offen {cfg.ost}")
    a("s_nop 10" if not cfg.ts else "s_nop 9")
    epiA(0)
    for pr in range(8):
        if pr < 7: epiA(pr + 1)
        else: a("s_nop 1")
        epiB(pr)
    ts(8)
    a("s_cmp_lt_u32 s3, 4")
    a("s_cbranch_scc1 .LA_zq")
    a("s_cmp_ge_u32 s43, 85")
    a("s_cbranch_scc1 .LH_F2")
    a("s_cmp_ge_u32 s43, 32")
    a("s_cbranch_scc1 .LA_exit")
    a("s_cmp_lg_u32 s3, 4")
    a("s_cbranch_scc1 .LA_exit")
    zprolog()
    a(f"s_lshl_b32 s46, s43, 7\ns_add_u32 s46, s46, {WS_F}")
    for k in range(4): a(f"v_mov_b32 v{52+k}, 0")
    for m in (50, 52, 54, 56, 58): a(f"s_mov_b64 s[{m}:{m+1}], -1")
    a("s_mov_b64 s[60:61], 0xffffff")
    zgather(6, "s46", ".LZ_f", [50, 52, 54, 56, 58, 60])
    for i in range(1, 6):
        for k in range(4): a(f"v_add_f32 v{32+k}, v{32+k}, v{32+4*i+k}")
    a("s_nop 0")
    zreduce()
    a("v_cvt_pk_bf16_f32 v32, v32, v33\nv_cvt_pk_bf16_f32 v34, v34, v35")
    a("v_lshlrev_b32 v24, 16, v32\nv_and_b32 v25, 0xffff0000, v32\nv_lshlrev_b32 v26, 16, v34\nv_and_b32 v27, 0xffff0000, v34")
    for k in range(4): a(f"v_mul_f32 v{32+k}, {hex(f2u(-LOG2E))}, v{24+k}")
    for k in range(4): a(f"v_exp_f32 v{32+k}, v{32+k}")
    a("s_nop 0")
    for k in range(4): a(f"v_add_f32 v{32+k}, 1.0, v{32+k}")
    for k in range(4): a(f"v_rcp_f32 v{32+k}, v{32+k}")
    a("s_nop 0")
    for k in range(4): a(f"v_mul_f32 v{24+k}, v{24+k}, v{32+k}")
    a("v_cvt_pk_bf16_f32 v32, v24, v25\nv_cvt_pk_bf16_f32 v34, v26, v27")
    a("v_lshlrev_b32 v24, 16, v32\nv_and_b32 v25, 0xffff0000, v32\nv_lshlrev_b32 v26, 16, v34\nv_and_b32 v27, 0xffff0000, v34")
    a(f"v_lshlrev_b32 v15, 4, v3\nv_add_u32 v15, {QR+12288}, v15")
    a("s_mov_b64 exec, 0xff")
    a("ds_write_b128 v15, v[24:27]")
    a("s_waitcnt lgkmcnt(0)")
    ts(6)
    a("s_branch .LA_exit")
    a(".LH_F2:")
    a("v_lshrrev_b32 v7, 3, v0\nv_lshlrev_b32 v7, 9, v7\nv_and_b32 v10, 7, v0\nv_lshl_add_u32 v7, v10, 4, v7")
    a(f"s_lshr_b32 s44, s62, 2\ns_lshl_b32 s44, s44, 15\ns_and_b32 s45, s62, 3\ns_lshl_b32 s45, s45, 7\ns_add_u32 s44, s44, s45\ns_add_u32 s44, s44, {WS_G}")
    def gloads():
        a("s_mov_b32 s45, s44")
        for i in range(8):
            a(f"buffer_load_dwordx4 v[{32+4*i}:{35+4*i}], v7, s[8:11], s45 offen sc1")
            if i < 7: a("s_add_u32 s45, s45, 4096")
    gloads()
    fconsts(11)
    ftags(11, 28, 27, 26)
    a("v_lshrrev_b32 v13, 2, v12\nv_lshrrev_b32 v14, 4, v12\nv_lshrrev_b32 v15, 6, v12")
    a("v_lshlrev_b32 v16, 5, v25\nv_lshl_add_u32 v16, v2, 3, v16\nv_add_u32 v17, 4, v16")
    a("v_lshrrev_b32 v26, 1, v2\nv_lshl_add_u32 v6, v26, 11, v27")
    a(f"s_lshl_b32 s61, s62, 12\ns_lshl_b32 s45, s47, 9\ns_add_u32 s61, s61, s45\ns_add_u32 s61, s61, {WS_F}")
    a("s_waitcnt vmcnt(16)")
    transpose8(208, 128)
    budget()
    a(".LF_gp:")
    a("s_waitcnt vmcnt(0)")
    for i in range(8):
        for k in range(4):
            if i == 0 and k == 0: a("v_xor_b32 v18, v32, v12")
            else: a(f"v_bitop3_b32 v18, v18, v{32+4*i+k}, v{12+k} bitop3:0xf6")
    a("v_and_b32 v18, 3, v18")
    a("v_cmp_ne_u32 vcc, 0, v18")
    a("s_cbranch_vccz .LF_g2")
    spend(".LF_g2")
    a("s_sleep 2")
    gloads()
    a("s_branch .LF_gp")
    a(".LF_g2:")
    for i in range(8):
        if i & 3:
            for k in range(4): a(f"v_add_f32 v{32+16*(i>>2)+k}, v{32+16*(i>>2)+k}, v{32+4*i+k}")
    for sw in ("v_permlane16_swap_b32", "v_permlane32_swap_b32"):
        for k in range(4): a(f"v_mov_b32 v{36+k}, v{32+k}\nv_mov_b32 v{52+k}, v{48+k}")
        a("s_nop 0")
        for k in range(4): a(f"{sw} v{32+k}, v{36+k}\n{sw} v{48+k}, v{52+k}")
        for k in range(4): a(f"v_add_f32 v{32+k}, v{32+k}, v{36+k}\nv_add_f32 v{48+k}, v{48+k}, v{52+k}")
    for k in range(4): a(f"v_cvt_pk_bf16_f32 v{32+k}, v{32+k}, v{48+k}")
    for k in range(4): a(f"v_and_b32 v{48+k}, 0xffff0000, v{32+k}\nv_lshlrev_b32 v{32+k}, 16, v{32+k}")
    for k in range(4): a(f"v_mul_f32 v{36+k}, {hex(f2u(-LOG2E))}, v{32+k}")
    for k in range(4): a(f"v_exp_f32 v{36+k}, v{36+k}")
    a("s_nop 0")
    for k in range(4): a(f"v_add_f32 v{36+k}, 1.0, v{36+k}")
    for k in range(4): a(f"v_rcp_f32 v{36+k}, v{36+k}")
    a("s_nop 0")
    for k in range(4): a(f"v_mul_f32 v{32+k}, v{32+k}, v{36+k}")
    a("v_cvt_pk_bf16_f32 v32, v32, v33\nv_cvt_pk_bf16_f32 v34, v34, v35")
    a("v_and_b32 v33, 0xffff0000, v32\nv_lshlrev_b32 v32, 16, v32\nv_and_b32 v35, 0xffff0000, v34\nv_lshlrev_b32 v34, 16, v34")
    for k in range(4): a(f"v_mul_f32 v{32+k}, v{32+k}, v{48+k}")
    a("v_cvt_pk_bf16_f32 v32, v32, v33\nv_cvt_pk_bf16_f32 v33, v34, v35")
    a("ds_bpermute_b32 v20, v16, v32\nds_bpermute_b32 v21, v16, v33\nds_bpermute_b32 v22, v17, v32\nds_bpermute_b32 v23, v17, v33")
    a("s_waitcnt lgkmcnt(0)")
    gemv_out(20, 128, 6, 61, 28)
    ts(6)
    a("s_branch .LA_exit")
    a(".LA_zq:")
    a("s_cmp_ge_u32 s43, 32")
    a("s_cbranch_scc1 .LA_exit")
    a("s_cmp_lg_u32 s3, 0")
    a("s_cbranch_scc1 .LA_exit")
    zprolog()
    a("s_lshl_b32 s45, s43, 6")
    a("v_lshlrev_b32 v14, 3, v3")
    a("buffer_load_dwordx2 v[16:17], v14, s[4:7], s45 offen")
    a(f"s_bfe_u32 s46, s43, 0x20002\ns_lshl_b32 s46, s46, 10\ns_lshr_b32 s48, s43, 4\ns_lshl_b32 s48, s48, 9\ns_add_u32 s46, s46, s48")
    a(f"s_and_b32 s48, s43, 3\ns_lshl_b32 s48, s48, 7\ns_add_u32 s46, s46, s48\ns_add_u32 s46, s46, {WS_S}")
    a(f"v_lshlrev_b32 v15, 4, v3\nv_add_u32 v15, {QR+12288}, v15")
    a("s_mov_b64 s[50:51], -1\ns_mov_b64 s[52:53], -1\ns_mov_b64 s[54:55], -1\ns_mov_b64 s[56:57], -1")
    a("s_waitcnt vmcnt(0)")
    a("v_lshlrev_b32 v28, 16, v16\nv_and_b32 v29, 0xffff0000, v16\nv_lshlrev_b32 v30, 16, v17\nv_and_b32 v31, 0xffff0000, v17")
    zgather(4, "s46", ".LZ_s", [50, 52, 54, 56])
    ts(10)
    a("s_barrier")
    a("ds_read_b128 v[24:27], v15")
    for k in range(4): a(f"v_add_f32 v{32+k}, v{32+k}, v{36+k}\nv_add_f32 v{40+k}, v{40+k}, v{44+k}")
    for k in range(4): a(f"v_add_f32 v{32+k}, v{32+k}, v{40+k}")
    zreduce()
    a("v_cvt_pk_bf16_f32 v32, v32, v33\nv_cvt_pk_bf16_f32 v34, v34, v35")
    a("v_and_b32 v33, 0xffff0000, v32\nv_lshlrev_b32 v32, 16, v32\nv_and_b32 v35, 0xffff0000, v34\nv_lshlrev_b32 v34, 16, v34")
    a("s_waitcnt lgkmcnt(0)")
    for k in range(4): a(f"v_mul_f32 v{32+k}, v{32+k}, v{24+k}")
    a("v_cvt_pk_bf16_f32 v32, v32, v33\nv_cvt_pk_bf16_f32 v34, v34, v35")
    a("v_and_b32 v33, 0xffff0000, v32\nv_lshlrev_b32 v32, 16, v32\nv_and_b32 v35, 0xffff0000, v34\nv_lshlrev_b32 v34, 16, v34")
    for k in range(4): a(f"v_add_f32 v{32+k}, v{32+k}, v{28+k}")
    a("v_cvt_pk_bf16_f32 v32, v32, v33\nv_cvt_pk_bf16_f32 v33, v34, v35")
    a("s_mov_b64 exec, 0xff")
    a("buffer_store_dwordx2 v[32:33], v14, s[32:35], s45 offen")
    if cfg.dbgt:
        a("s_memrealtime s[48:49]")
        a("s_waitcnt lgkmcnt(0)")
        a("v_mov_b32 v10, s48")
        a("s_lshl_b32 s45, s43, 2")
        a("s_mov_b64 exec, 1")
        a("buffer_store_dword v10, v9, s[12:15], s45 offen offset:8")
        if cfg.amp:
            a("buffer_load_dword v10, v9, s[12:15], 0 offen offset:4 sc1")
            a("s_waitcnt vmcnt(0)")
            a("v_readfirstlane_b32 s50, v10")
            a("s_sub_u32 s51, s48, s50")
            a("s_min_u32 s51, s51, 10000")
            a(f"s_mul_i32 s51, s51, {cfg.amp}")
            a("s_add_u32 s51, s51, s48")
            a(".LZ_amp:")
            a("s_memrealtime s[48:49]")
            a("s_waitcnt lgkmcnt(0)")
            a("s_sub_u32 s52, s48, s51")
            a("s_cmp_lt_i32 s52, 0")
            a("s_cbranch_scc1 .LZ_amp")
    ts(11)
    a(".LA_exit:")
    ts_flush()
    a(".L_end:")
    a("s_endpgm")
    a(".L_codeend:")
    body = a.text()
    return assemble([(K, 256, 512, 163840)], [(K, body, 256, 102, 256, "")]), body

if __name__ == "__main__":
    import argparse
    ap = argparse.ArgumentParser()
    ap.add_argument("-o", default="k.s")
    ap.add_argument("--set", action="append", default=[])
    args = ap.parse_args()
    for s in args.set:
        k, v = s.split("=")
        setattr(Cfg, k, eval(v))
    txt, body = gen(Cfg)
    open(args.o, "w").write(txt)
    for p in hazard.check(txt): print("HAZARD", p)
```

```python
import sys
from asmlib import *
import hazard

WS_H1 = 0x000000
WS_H4 = 0x020000
WS_SLOW = 0x040000
WS_Q  = 0x080000
WS_QF = 0x0A0000
WS_GO = 0x0B0000
WS_ML = 0x100000
WS_S  = 0x200000
WS_F  = 0x300000
WS_G  = 0x380000
WS_O  = 0x400000
WS_TS = 0x1000000
WS_SIZE = 268435456
LOG2E = 1.4426950408889634
QSCALE = LOG2E * 128 ** -0.5
import struct
def f2u(x): return struct.unpack("<I", struct.pack("<f", x))[0]

class Cfg:
    ts = False
    npre = 2
    go_cnt = 8
    cwin = 12
    nsamp = 7
    samp_sleep = 3
    prefetch = True
    poll_sleep = 1
    nt = "nt"
    nt_wo = ""
    spin = 4000000
    dbgt = False
    amp = 0
    wuk_wait = 3
    fast_tries = 30
    slow_now = True
    tlbw = 0
    ns_cnt = 6
    h4ts = False
    f1_on = 'W'
    ml_pos = 4
    use_go = True
    pf_pre = False
    q_wait = 1
    xts = None
    skip1 = 3
    w_pf = 0
    w_pf_nt = ''
    q8 = False
    qhint = False
    cpre = False
    qs_row = 16
    qc_row = 26
    q_thr = 0
    outst = ''
    corder = 'row'
    oswz = False
    olay = 'c'
    sc_first = False
    pay_sleep = 0
    drts = False
    x_sleep = 1
    late_slow = False
    go_wave = 4
    ml_at = 0
    uv_early = False
    sc_pre = True
    dbgspin = False
    ml_sleep = 2
    hf1_pre = True
    f1_early = False
    go_skip = True
    f1_rot = 64
    a_pf = 0
    a_pf_nt = ''
    f1_first = True
    fld = 'sc1'
    nowarm = False
    wld = 'sc1'
    fst = ''
    f1_gate = 0
    pf_nt = ''
    pf_cus = 16
    f1_delay = False
    nostore = False
    ost = 'sc1'
    nof1 = False
    h1ts = False
    a_nsleep = 20
    go_sleep = 4
    pre_rows = 1
    pf_wave = 1
    nt_wq = ''
    wq_wait = None
    nt_wuk = 'nt'
    pf_cnt = 6
    pf_delay = True
    wq_first = 1
    cwin1 = 4
    n1 = 8
    wo_wait = None
    nchain = 1
    q_row = 32
    q_ext = 0
    go_row = 14
    nonce_row = 4
    ml_early = 16
    pf = False
    z_pre = 32
    wo_bar = True
    go_group = True
    pv_pre = 0
    hprio = 2

def gen(cfg=Cfg):
    a = Asm()
    K = NAME + "_kernel"
    NT = cfg.nt
    tsn = [0]
    def ts(idx):
        if cfg.ts:
            a(f"s_memrealtime s[{64+2*idx}:{65+2*idx}]")
    def ts_flush(nmax=16):
        if not cfg.ts: return
        a("s_waitcnt lgkmcnt(0)")
        a("s_lshl_b32 s44, s2, 3\ns_add_u32 s44, s44, s3\ns_lshl_b32 s44, s44, 6")
        a(f"s_add_u32 s44, s44, {WS_TS}")
        a("s_mov_b64 exec, 1")
        a("v_mov_b32 v1, 0")
        for q in range(4):
            for k in range(4):
                a(f"v_mov_b32 v{4+k}, s{64+2*(4*q+k)}")
            a(f"buffer_store_dwordx4 v[4:7], v1, s[8:11], s44 offen offset:{16*q}")
            a("s_nop 1")
        a("s_waitcnt vmcnt(0)")
    def srd(base, size):
        a(f"s_mov_b32 s{base+2}, {size}\ns_mov_b32 s{base+3}, 0x20000")
    def allreduce16(v, t, op):
        for r in (8, 4, 2, 1):
            a("s_nop 1")
            a(f"{op}_dpp v{v}, v{v}, v{v} row_ror:{r} row_mask:0xf bank_mask:0xf")
        for sw in ("v_permlane16_swap_b32", "v_permlane32_swap_b32"):
            a(f"v_mov_b32 v{t}, v{v}")
            a("s_nop 1")
            a(f"{sw} v{v}, v{t}")
            a(f"{op} v{v}, v{v}, v{t}")
    def allreduce2(v, w, t, u, op):
        for r in (8, 4, 2, 1):
            a("s_nop 0")
            a(f"{op}_dpp v{v}, v{v}, v{v} row_ror:{r} row_mask:0xf bank_mask:0xf")
            a(f"{op}_dpp v{w}, v{w}, v{w} row_ror:{r} row_mask:0xf bank_mask:0xf")
        for sw in ("v_permlane16_swap_b32", "v_permlane32_swap_b32"):
            a(f"v_mov_b32 v{t}, v{v}\nv_mov_b32 v{u}, v{w}\ns_nop 0")
            a(f"{sw} v{v}, v{t}\n{sw} v{w}, v{u}")
            a(f"{op} v{v}, v{v}, v{t}\n{op} v{w}, v{w}, v{u}")
    def quador(v):
        for qp in ("[1,0,3,2]", "[2,3,0,1]"):
            a("s_nop 1")
            a(f"v_or_b32_dpp v{v}, v{v}, v{v} quad_perm:{qp} row_mask:0xf bank_mask:0xf")
    def halfreduce(v, t):
        for r in (8, 4, 2, 1):
            a("s_nop 1")
            a(f"v_add_f32_dpp v{v}, v{v}, v{v} row_ror:{r} row_mask:0xf bank_mask:0xf")
        a(f"v_mov_b32 v{t}, v{v}\ns_nop 1\nv_permlane16_swap_b32 v{v}, v{t}\nv_add_f32 v{v}, v{v}, v{t}")
    def ln_stats(vx, vt):
        m, t, q, u = vt + 16, vt + 17, vt + 18, vt + 19
        for i in range(8):
            a(f"v_lshlrev_b32 v{vt+2*i}, 16, v{vx+i}")
            a(f"v_and_b32 v{vt+1+2*i}, 0xffff0000, v{vx+i}")
        a(f"v_add_f32 v{m}, v{vt}, v{vt+1}\nv_add_f32 v{t}, v{vt+2}, v{vt+3}")
        for i in range(4, 16, 2): a(f"v_add_f32 v{m}, v{m}, v{vt+i}\nv_add_f32 v{t}, v{t}, v{vt+i+1}")
        a(f"v_add_f32 v{m}, v{m}, v{t}")
        halfreduce(m, t)
        a(f"v_mul_f32 v{m}, {hex(f2u(1/512))}, v{m}")
        a(f"v_sub_f32 v{t}, v{vt}, v{m}\nv_sub_f32 v{u}, v{vt+1}, v{m}\nv_mul_f32 v{q}, v{t}, v{t}\nv_fmac_f32 v{q}, v{u}, v{u}")
        for i in range(2, 16, 2): a(f"v_sub_f32 v{t}, v{vt+i}, v{m}\nv_sub_f32 v{u}, v{vt+i+1}, v{m}\nv_fmac_f32 v{q}, v{t}, v{t}\nv_fmac_f32 v{q}, v{u}, v{u}")
        halfreduce(q, t)
        a(f"v_mul_f32 v{q}, {hex(f2u(1/512))}, v{q}")
        a(f"v_cvt_pk_bf16_f32 v{m}, v{m}, v{q}")
        a(f"v_mov_b32 v{t}, v{m}\ns_nop 1\nv_permlane32_swap_b32 v{m}, v{t}")
        a(f"v_cndmask_b32 v{m}, v{m}, v{t}, s[58:59]")
        a(f"v_and_b32 v{q}, 0xffff0000, v{m}\nv_lshlrev_b32 v{m}, 16, v{m}")
        a(f"v_add_f32 v{q}, {hex(f2u(1e-5))}, v{q}")
        a(f"v_cvt_pk_bf16_f32 v{q}, v{q}, v{q}\nv_and_b32 v{q}, 0xffff0000, v{q}\nv_sqrt_f32 v{q}, v{q}\ns_nop 0")
        a(f"v_cvt_pk_bf16_f32 v{q}, v{q}, v{q}\nv_and_b32 v{q}, 0xffff0000, v{q}\nv_rcp_f32 v{q}, v{q}")
    def ln_apply(vf, vt):
        m, q = vt + 16, vt + 18
        for i in range(4):
            a(f"v_lshlrev_b32 v{vt+2*i}, 16, v{vf+i}")
            a(f"v_and_b32 v{vt+1+2*i}, 0xffff0000, v{vf+i}")
        for i in range(8): a(f"v_sub_f32 v{vt+i}, v{vt+i}, v{m}")
        for i in range(4): a(f"v_cvt_pk_bf16_f32 v{vf+i}, v{vt+2*i}, v{vt+1+2*i}")
        for i in range(4):
            a(f"v_lshlrev_b32 v{vt+2*i}, 16, v{vf+i}")
            a(f"v_and_b32 v{vt+1+2*i}, 0xffff0000, v{vf+i}")
        for i in range(8): a(f"v_mul_f32 v{vt+i}, v{vt+i}, v{q}")
        for i in range(4): a(f"v_cvt_pk_bf16_f32 v{vf+i}, v{vt+2*i}, v{vt+1+2*i}")
    def layernorm(vx, vo, vt):
        f = [vt + i for i in range(8)]
        s_, t, u = vt + 8, vt + 9, vt + 10
        for i in range(4):
            a(f"v_lshlrev_b32 v{f[2*i]}, 16, v{vx+i}")
            a(f"v_and_b32 v{f[2*i+1]}, 0xffff0000, v{vx+i}")
        a(f"v_add_f32 v{s_}, v{f[0]}, v{f[1]}\nv_add_f32 v{t}, v{f[2]}, v{f[3]}\nv_add_f32 v{u}, v{f[4]}, v{f[5]}")
        a(f"v_add_f32 v{s_}, v{s_}, v{f[6]}\nv_add_f32 v{t}, v{t}, v{f[7]}\nv_add_f32 v{s_}, v{s_}, v{u}\nv_add_f32 v{s_}, v{s_}, v{t}")
        allreduce16(s_, t, "v_add_f32")
        a(f"v_mul_f32 v{s_}, {hex(f2u(1/512))}, v{s_}")
        m2 = vt + 11
        a(f"v_sub_f32 v{t}, v{f[0]}, v{s_}\nv_mul_f32 v{m2}, v{t}, v{t}")
        for i in range(1, 8):
            a(f"v_sub_f32 v{t}, v{f[i]}, v{s_}\nv_fmac_f32 v{m2}, v{t}, v{t}")
        allreduce16(m2, t, "v_add_f32")
        a(f"v_mul_f32 v{m2}, {hex(f2u(1/512))}, v{m2}")
        a(f"v_cvt_pk_bf16_f32 v{t}, v{s_}, v{m2}")
        a(f"v_lshlrev_b32 v{s_}, 16, v{t}\nv_and_b32 v{m2}, 0xffff0000, v{t}")
        a(f"v_add_f32 v{m2}, {hex(f2u(1e-5))}, v{m2}")
        a(f"v_cvt_pk_bf16_f32 v{m2}, v{m2}, v{m2}\nv_and_b32 v{m2}, 0xffff0000, v{m2}\nv_sqrt_f32 v{m2}, v{m2}")
        for i in range(8): a(f"v_sub_f32 v{f[i]}, v{f[i]}, v{s_}")
        a(f"v_cvt_pk_bf16_f32 v{m2}, v{m2}, v{m2}\nv_and_b32 v{m2}, 0xffff0000, v{m2}\nv_rcp_f32 v{m2}, v{m2}")
        for i in range(4): a(f"v_cvt_pk_bf16_f32 v{vo+i}, v{f[2*i]}, v{f[2*i+1]}")
        for i in range(4):
            a(f"v_lshlrev_b32 v{f[2*i]}, 16, v{vo+i}\nv_and_b32 v{f[2*i+1]}, 0xffff0000, v{vo+i}")
        for i in range(8): a(f"v_mul_f32 v{f[i]}, v{f[i]}, v{m2}")
        for i in range(4): a(f"v_cvt_pk_bf16_f32 v{vo+i}, v{f[2*i]}, v{f[2*i+1]}")
    FS = [52, 54, 56]
    def fconsts(vN):
        a(f"s_mov_b32 s{FS[0]}, 0x05040100\ns_mov_b32 s{FS[0]+1}, 0x07060302")
        a(f"s_mov_b32 s{FS[1]}, 0xffff0000\ns_mov_b32 s{FS[1]+1}, 0xffff0000")
        a(f"s_mov_b32 s{FS[2]}, 0\ns_mov_b32 s{FS[2]+1}, -1")
    def transpose8(src, dst):
        for j in range(8):
            for e in range(4):
                a(f"v_perm_b32 v{dst+4*j+e}, v{src+4*(2*e+1)+(j>>1)}, v{src+4*(2*e)+(j>>1)}, s{FS[0]+(j&1)}")
    def gemv_out(afrag, wfrag, voff, soff, tag, acc=32, out=64):
        for j in range(8):
            a(f"v_mfma_f32_16x16x32_bf16 v[{acc+4*j}:{acc+3+4*j}], v[{afrag}:{afrag+3}], v[{wfrag+4*j}:{wfrag+3+4*j}], 0")
        a("s_nop 4")
        for k in range(4):
            a(f"v_cndmask_b32 v{out+k}, v{acc+4*k}, v{acc+4*(4+k)}, s[{FS[1]}:{FS[1]+1}]")
        for k in range(4):
            a(f"v_cndmask_b32 v{out+4+k}, v{acc+1+4*k}, v{acc+1+4*(4+k)}, s[{FS[1]}:{FS[1]+1}]")
        for k in range(4):
            a(f"v_cndmask_b32 v{out+k}, v{out+k}, v{out+4+k}, s[{FS[2]}:{FS[2]+1}]")
        for k in range(4):
            a(f"v_bfi_b32 v{out+k}, s100, v{tag+k}, v{out+k}")
        a(f"buffer_store_dwordx4 v[{out}:{out+3}], v{voff}, s[8:11], s{soff} offen sc1")
    def utags(vN, tag):
        if tag != vN: a(f"v_mov_b32 v{tag}, v{vN}")
        a(f"v_lshrrev_b32 v{tag+1}, 8, v{vN}\nv_lshrrev_b32 v{tag+2}, 16, v{vN}\nv_lshrrev_b32 v{tag+3}, 24, v{vN}")
    def ftags(vN, tag, voff, t):
        a(f"v_and_b32 v{t}, 1, v2\nv_lshlrev_b32 v{voff}, 5, v3\nv_lshl_add_u32 v{voff}, v{t}, 4, v{voff}")
        utags(vN, tag)
    def psleep():
        if cfg.poll_sleep: a(f"s_sleep {cfg.poll_sleep}")
    def budget():
        a(f"s_mov_b32 s96, {cfg.spin}")
    stubs = []
    def spend(exit_label):
        a("s_sub_u32 s96, s96, 1")
        if cfg.dbgspin:
            stubs.append(exit_label)
            a(f"s_cbranch_scc1 .Lstub{len(stubs)}")
        else:
            a(f"s_cbranch_scc1 {exit_label}")

    if cfg.ts:
        for i in range(1, 16): a(f"s_mov_b32 s{64+2*i}, 0")
    ts(0)
    a("s_cmp_ge_u32 s2, 128")
    a("s_cbranch_scc1 .L_A")
    XN = 0x20000; XNS = 1088
    QV = 0; QS = 1024; SC = 2048; XX = 2560; YY = 3200
    a("s_load_dwordx2 s[12:13], s[0:1], 88")
    a("s_memrealtime s[48:49]")
    a("s_load_dwordx2 s[16:17], s[0:1], 16")
    a("s_load_dwordx2 s[4:5], s[0:1], 0")
    a("s_load_dwordx2 s[20:21], s[0:1], 24")
    a("s_load_dwordx2 s[8:9], s[0:1], 96")
    a("v_lshrrev_b32 v1, 6, v0")
    a("v_and_b32 v0, 63, v0")
    a("v_readfirstlane_b32 s3, v1")
    a("s_and_b32 s41, s2, 7\ns_lshl_b32 s41, s41, 2\ns_lshr_b32 s43, s2, 5\ns_add_u32 s41, s41, s43")
    a("s_bfe_u32 s42, s2, 0x20003")
    srd(16, 4194304); srd(4, 2048); srd(12, 256); srd(20, 4194304); srd(8, WS_SIZE)
    a("v_lshrrev_b32 v2, 4, v0")
    a("v_and_b32 v3, 15, v0")
    a("v_lshlrev_b32 v4, 1, v2")
    a("v_xor_b32 v4, v3, v4")
    a("v_lshlrev_b32 v4, 4, v4")
    a("v_lshl_add_u32 v5, v2, 13, v4")
    a("v_xor_b32 v6, 0x80, v5")
    a("s_lshl_b32 s44, s42, 20\ns_lshl_b32 s43, s3, 17\ns_add_u32 s44, s44, s43\ns_lshl_b32 s45, s41, 8\ns_add_u32 s44, s44, s45")
    a("s_lshl_b32 s46, s3, 12")
    a("v_lshlrev_b32 v8, 4, v0")
    a("v_mov_b32 v9, 0")
    a("s_lshl_b32 s47, s3, 10")
    a("s_mov_b32 m0, s46")
    a("s_or_b32 s45, s2, s3")
    a("s_cmp_lg_u32 s45, 0")
    a("s_waitcnt lgkmcnt(0)")
    ts(1)
    a("s_cbranch_scc1 .LW_nogen")
    if cfg.dbgt:
        a("v_mov_b32 v12, s48")
        a("buffer_store_dword v12, v9, s[12:15], 0 offen offset:4 sc1")
    a("s_mul_i32 s48, s48, 0x9E3779B1")
    a("s_lshr_b32 s49, s48, 15\ns_xor_b32 s48, s48, s49")
    a("s_mul_i32 s48, s48, 0x85EBCA6B")
    a("s_lshr_b32 s49, s48, 13\ns_xor_b32 s48, s48, s49")
    a("s_max_u32 s48, s48, 1")
    a("v_mov_b32 v12, s48")
    a("v_lshlrev_b32 v13, 7, v0")
    a("s_mov_b64 exec, 3")
    a("buffer_store_dword v12, v13, s[12:15], 0 offen sc1")
    a("s_mov_b64 exec, -1")
    a(".LW_nogen:")
    a("s_lshl_b32 s49, s41, 12")
    a("s_cmp_gt_u32 s3, 1")
    a("s_cbranch_scc1 .LW_nox")
    a("buffer_load_dwordx4 v[12:15], v8, s[4:7], s47 offen")
    a(".LW_nox:")
    a("s_mov_b32 s45, s44")
    for i in range(4):
        if i: a("s_add_u32 m0, m0, 1024\ns_add_u32 s45, s45, 32768")
        a(f"buffer_load_dwordx4 v{5 if i < 2 else 6}, s[16:19], s45 offen {NT} lds")
    a("s_cmp_lg_u32 s3, 2")
    a("s_cbranch_scc1 .LW_nowarm")
    a(f"s_lshl_b32 s45, s42, 10\ns_add_u32 s45, s45, s49")
    if WS_H1: a(f"s_add_u32 s45, s45, {WS_H1}")
    a("buffer_load_dwordx4 v[12:15], v8, s[8:11], s45 offen sc1")
    a(".LW_nowarm:")
    a("v_xor_b32 v7, v3, v2\nv_lshlrev_b32 v7, 4, v7\nv_lshl_add_u32 v7, v2, 13, v7")
    a("s_add_u32 m0, s46, 0x8000")
    a("s_mov_b32 s45, s44")
    for i in range(4):
        if i: a(f"v_xor_b32 v10, {64*i}, v7\ns_add_u32 m0, m0, 1024\ns_add_u32 s45, s45, 32768")
        a(f"buffer_load_dwordx4 v{10 if i else 7}, s[20:23], s45 offen {NT} lds")
    ts(2)
    a("s_load_dwordx2 s[24:25], s[0:1], 32")
    a("s_load_dwordx2 s[28:29], s[0:1], 40")
    a("s_load_dwordx4 s[36:39], s[0:1], 56")
    if cfg.w_pf:
        a("s_load_dwordx2 s[16:17], s[0:1], 8")
        a("s_mov_b32 s18, 16777216")
    srd(24, 4194304); srd(28, 4194304)
    a("v_and_b32 v25, 1, v0")
    a("s_cmp_gt_u32 s3, 1")
    a("s_cbranch_scc1 .LW_noln")
    a("s_waitcnt vmcnt(8)")
    layernorm(12, 16, 40)
    a(f"s_mul_i32 s45, s3, {XNS}\ns_add_u32 s45, s45, {XN}")
    a("v_add_u32 v10, s45, v8")
    a("ds_write_b128 v10, v[16:19]")
    a(".LW_noln:")
    a(f"s_sub_u32 s97, s2, {cfg.f1_rot}\ns_and_b32 s97, s97, 127")
    a("s_cmp_lt_u32 s97, 88\ns_cselect_b32 s62, s3, 4\ns_lshr_b32 s62, s62, 2\ns_xor_b32 s62, s62, 1")
    if cfg.nof1 or cfg.f1_on != "W": a("s_mov_b32 s62, 0")
    a("s_and_b32 s63, s2, 7\ns_lshl_b32 s63, s63, 1\ns_bfe_u32 s45, s3, 0x10001\ns_add_u32 s63, s63, s45")
    a(f"v_mul_u32_u24 v26, {XNS}, v25\nv_lshl_add_u32 v26, v2, 4, v26")
    a(f"s_lshl_b32 s45, s63, 6\ns_add_u32 s45, s45, {XN}\nv_add_u32 v23, s45, v26")
    a(f"s_lshl_b32 s45, s42, 8\ns_add_u32 s45, s45, {XN}\nv_add_u32 v24, s45, v26")
    a("v_lshrrev_b32 v20, 2, v3\nv_and_b32 v21, 1, v2\nv_lshlrev_b32 v21, 3, v21\nv_lshl_add_u32 v21, v20, 1, v21")
    a("v_bfe_u32 v22, v0, 1, 1\ns_lshl_b32 s45, s3, 1\nv_add_u32 v22, s45, v22\nv_xor_b32 v22, v22, v21\nv_lshlrev_b32 v22, 4, v22")
    a("v_lshl_add_u32 v20, v2, 3, v20\nv_lshl_add_u32 v22, v20, 8, v22\nv_lshl_add_u32 v11, v25, 3, v22")
    a("v_lshlrev_b32 v16, 9, v25\nv_lshl_add_u32 v16, v2, 4, v16")
    a("s_lshl_b32 s51, s42, 10\ns_lshl_b32 s45, s3, 6\ns_add_u32 s51, s51, s45\ns_add_u32 s51, s51, s49")
    a("s_lshl_b32 s50, s41, 2\ns_add_u32 s50, s50, s42")
    a("v_mul_u32_u24 v26, 272, v25\nv_lshl_add_u32 v26, v2, 4, v26")
    a("v_lshrrev_b32 v21, 3, v0\nv_lshlrev_b32 v1, 10, v21\nv_cmp_ne_u32 s[98:99], s42, v21\nv_bfe_u32 v21, v0, 2, 1\nv_lshl_add_u32 v1, v21, 9, v1\nv_and_b32 v22, 3, v0\nv_lshl_add_u32 v1, v22, 4, v1")
    a("s_mov_b32 s99, 0")
    a("v_lshl_add_u32 v29, v22, 4, v21\nv_lshlrev_b32 v29, 2, v29")
    a("v_mul_u32_u24 v21, 272, v21\nv_lshl_add_u32 v22, v22, 3, v21\ns_lshl_b32 s45, s3, 5\nv_add_u32 v22, s45, v22")
    a("s_lshl_b32 s57, s3, 6\ns_add_u32 s57, s57, s49")
    a("v_xor_b32 v21, v2, v3\nv_lshlrev_b32 v21, 4, v21\nv_lshl_add_u32 v21, v3, 8, v21\nv_add_u32 v21, s46, v21")
    a(f"s_waitcnt vmcnt({cfg.ns_cnt})")
    a("s_load_dword s40, s[12:13], 0")
    a("s_waitcnt vmcnt(4) lgkmcnt(0)")
    budget()
    a(".LW_nchk:")
    a("s_cmp_lg_u32 s40, 0")
    a("s_cbranch_scc1 .LW_ngot")
    spend(".LW_ngot")
    a("buffer_load_dword v27, v9, s[12:15], 0 offen offset:128 sc1")
    a("s_waitcnt vmcnt(0)")
    a("v_readfirstlane_b32 s40, v27")
    a("s_branch .LW_nchk")
    a(".LW_ngot:")
    a("v_mov_b32 v27, s40")
    ts(4)
    a("s_barrier")
    ts(5)
    for s in range(4):
        a(f"ds_read_b128 v[{32+4*s}:{35+4*s}], v24 offset:{64*s}")
        a(f"ds_read_b64_tr_b16 v[{48+4*s}:{49+4*s}], v11 offset:{(32*s)*256}")
        a(f"ds_read_b64_tr_b16 v[{50+4*s}:{51+4*s}], v11 offset:{(32*s+4)*256}")
    a("ds_read_b128 v[128:131], v23")
    a("v_add_u32 v23, 0x10000, v22\nv_add_u32 v24, 0x10000, v26")
    utags(27, 17)
    a("s_getreg_b32 s101, hwreg(HW_REG_XCC_ID, 0, 4)\ns_add_u32 s101, s101, 1")
    for k in range(4): a(f"v_xor_b32 v{200+k}, s101, v{17+k}")
    a("s_movk_i32 s100, 0xff")
    a("v_and_b32 v28, 3, v0\nv_lshlrev_b32 v28, 3, v28\nv_lshrrev_b32 v28, v28, v27")
    a("s_waitcnt lgkmcnt(10)")
    a("v_mfma_f32_16x16x32_bf16 v[192:195], v[48:51], v[32:35], 0")
    a("s_waitcnt lgkmcnt(7)")
    a("v_mfma_f32_16x16x32_bf16 v[196:199], v[52:55], v[36:39], 0")
    a("s_waitcnt lgkmcnt(4)")
    a("v_mfma_f32_16x16x32_bf16 v[192:195], v[56:59], v[40:43], v[192:195]")
    a("s_waitcnt lgkmcnt(1)")
    a("v_mfma_f32_16x16x32_bf16 v[196:199], v[60:63], v[44:47], v[196:199]")
    def f1loads():
        a("s_cmp_eq_u32 s62, 0")
        a("s_cbranch_scc1 .LW_nof1")
        a("s_bitcmp1_b32 s3, 0")
        a("s_cselect_b32 s32, s38, s36\ns_cselect_b32 s33, s39, s37")
        srd(32, 1409024)
        a("v_mul_u32_u24 v46, 22016, v2\nv_lshl_add_u32 v46, v3, 4, v46")
        a(f"s_mul_i32 s48, s63, {32*2752}\ns_lshr_b32 s44, s97, 3\ns_lshl_b32 s44, s44, 8\ns_add_u32 s48, s48, s44")
        for i in range(8):
            a(f"buffer_load_dwordx4 v[{132+4*i}:{135+4*i}], v46, s[32:35], s48 offen {NT}")
            if i < 7: a("s_add_u32 s48, s48, 2752")
        a(".LW_nof1:")
    def exchange(acc, acc2, area, lab, dst, wreg=22, hook=None):
        a(f"s_add_u32 s45, s51, {area}" if area else "s_mov_b32 s45, s51")
        a(f"s_add_u32 s47, s57, {area}" if area else "s_mov_b32 s47, s57")
        budget()
        for k in range(4): a(f"v_mov_b32 v{204+k}, v{200+k}")
        a("s_nop 0")
        for k in range(4): a(f"v_add_f32 v{acc+k}, v{acc+k}, v{acc2+k}")
        a("s_mov_b32 exec_lo, 0x00030003\ns_mov_b32 exec_hi, 0x00030003")
        for k in range(4): a(f"v_bfi_b32 v{acc2+k}, s100, v{200+k}, v{acc+k}")
        a(f"buffer_store_dwordx4 v[{acc2}:{acc2+3}], v16, s[8:11], s45 offen {cfg.fst}")
        a("s_mov_b64 exec, -1")
        if cfg.xts == lab: ts(1)
        if hook: hook()
        for k in range(4): a(f"ds_bpermute_b32 v{40+k}, v29, v{acc+k}")
        a("s_mov_b64 exec, s[98:99]")
        a(f"{lab}_p:")
        a(f"buffer_load_dwordx4 v[32:35], v1, s[8:11], s47 offen {cfg.fld}")
        a("s_waitcnt vmcnt(0)")
        a("v_xor_b32 v36, v32, v204")
        for k in range(1, 4): a(f"v_bitop3_b32 v36, v36, v{32+k}, v{204+k} bitop3:0xf6")
        a("v_and_b32 v36, 0xff, v36")
        a("v_cmp_ne_u32 vcc, 0, v36")
        a(f"s_cbranch_vccz {lab}_g")
        spend(f"{lab}_g")
        if cfg.x_sleep: a(f"s_sleep {cfg.x_sleep}")
        a(f"s_cmp_gt_u32 s96, {cfg.spin - cfg.fast_tries}")
        a(f"s_cbranch_scc1 {lab}_p")
        a(f"s_xor_b32 s47, s47, {WS_SLOW}")
        for k in range(4): a(f"v_xor_b32 v{204+k}, s101, v{204+k}")
        a(f"s_cmp_lg_u32 s96, {cfg.spin - cfg.fast_tries}")
        a(f"s_cbranch_scc1 {lab}_p")
        slow_copy(acc, acc2, area)
        a("s_mov_b64 exec, s[98:99]")
        a(f"s_branch {lab}_p")
        a(f"{lab}_g:")
        a("s_mov_b64 exec, -1")
        if cfg.xts == lab and cfg.ts:
            ts(2)
            a(f"s_sub_u32 s72, {cfg.spin}, s96\ns_mul_i32 s72, s72, 100\ns_add_u32 s72, s72, s64\ns_add_u32 s72, s72, 100")
        a("s_waitcnt lgkmcnt(0)")
        for k in range(4): a(f"v_cndmask_b32 v{32+k}, v{40+k}, v{32+k}, s[98:99]")
        for k in range(4): a(f"v_add_f32_dpp v{32+k}, v{32+k}, v{32+k} row_ror:8 row_mask:0xf bank_mask:0xf")
        for k in range(4): a(f"v_mov_b32 v{36+k}, v{32+k}")
        for k in range(4): a(f"v_permlane16_swap_b32 v{32+k}, v{36+k}")
        for k in range(4): a(f"v_add_f32 v{32+k}, v{32+k}, v{36+k}")
        a("s_mov_b64 exec, 0xff")
        a("v_cvt_pk_bf16_f32 v32, v32, v33\nv_cvt_pk_bf16_f32 v33, v34, v35")
        a(f"ds_write_b64 v{wreg}, v[32:33] offset:{dst}")
        a("s_mov_b64 exec, -1")
    def slow_copy(acc, acc2, area):
        a(f"s_add_u32 s45, s51, {area + WS_SLOW}")
        a("s_mov_b32 exec_lo, 0x00030003\ns_mov_b32 exec_hi, 0x00030003")
        for k in range(4): a(f"v_bfi_b32 v{acc2+k}, s100, v{17+k}, v{acc+k}")
        a(f"buffer_store_dwordx4 v[{acc2}:{acc2+3}], v16, s[8:11], s45 offen sc1")
        a("s_mov_b64 exec, -1")
    exchange(192, 196, WS_H1, ".LW_h1", QV, 23, f1loads if cfg.f1_early == 2 else None)
    ts(6)
    for sq in range(4):
        if sq: a(f"v_xor_b32 v10, {64*sq}, v21")
        a(f"ds_read_b128 v[{48+4*sq}:{51+4*sq}], v{10 if sq else 21} offset:32768")
    a("s_and_b32 s45, s3, 1\ns_lshl_b32 s45, s45, 4")
    a("v_lshl_add_u32 v10, v2, 2, s45")
    a("v_lshrrev_b32 v10, v10, v27")
    for r in range(4):
        a(f"v_bfe_u32 v{72+r}, v10, {r}, 1\nv_lshlrev_b32 v{72+r}, 16, v{72+r}")
    for r in range(4): a(f"v_xor_b32 v{76+r}, 0x10000, v{72+r}")
    a("v_lshlrev_b32 v10, 8, v25\nv_lshl_add_u32 v10, v2, 3, v10\ns_lshl_b32 s45, s3, 5\nv_add_u32 v10, s45, v10")
    a(f"s_mov_b32 s47, {hex(f2u(QSCALE))}\ns_mov_b32 s53, 0xfffe0000\ns_mov_b32 s52, 0x07060302")
    a("s_waitcnt lgkmcnt(0)")
    a("s_barrier")
    for sq in range(4):
        a(f"ds_read_b128 v[{32+4*sq}:{35+4*sq}], v24 offset:{QV+64*sq}")
    a("s_waitcnt lgkmcnt(2)")
    a("v_mfma_f32_16x16x32_bf16 v[64:67], v[48:51], v[32:35], 0")
    a("v_mfma_f32_16x16x32_bf16 v[68:71], v[52:55], v[36:39], 0")
    a("s_waitcnt lgkmcnt(0)")
    a("v_mfma_f32_16x16x32_bf16 v[64:67], v[56:59], v[40:43], v[64:67]")
    a("v_mfma_f32_16x16x32_bf16 v[68:71], v[60:63], v[44:47], v[68:71]")
    a("s_mov_b32 exec_lo, 0x00030003\ns_mov_b32 exec_hi, 0x00030003")
    a("s_nop 5")
    for k in range(4): a(f"v_add_f32 v{64+k}, v{64+k}, v{68+k}")
    for k in range(4): a(f"v_mul_f32 v{64+k}, s47, v{64+k}")
    for k in range(4): a(f"v_add_u32 v{64+k}, v{64+k}, v{76+k}")
    for k in range(4): a(f"v_and_or_b32 v{64+k}, v{64+k}, s53, v{72+k}")
    a("v_perm_b32 v64, v65, v64, s52\nv_perm_b32 v65, v67, v66, s52")
    a(f"ds_write_b64 v10, v[64:65] offset:{QS}")
    a("s_mov_b64 exec, -1")
    a("s_waitcnt lgkmcnt(0)")
    def uvprep():
        a("v_and_b32 v12, 1, v2\nv_lshlrev_b32 v12, 5, v12\nv_lshrrev_b32 v13, 1, v2\nv_lshl_add_u32 v12, v13, 4, v12")
        a("v_lshl_add_u32 v12, v12, 13, v4\nv_xor_b32 v13, 0x80, v12")
        a("s_and_b32 s48, s3, 3")
        a("s_lshl_b32 s44, s42, 20\ns_lshl_b32 s45, s48, 15\ns_add_u32 s44, s44, s45\ns_lshl_b32 s45, s41, 8\ns_add_u32 s44, s44, s45")
    def uvload():
        for i in range(8):
            if i == 4: a(f"s_add_u32 m0, m0, {16384 - 3072}\ns_add_u32 s44, s44, {64*8192 - 3*8192}")
            elif i: a("s_add_u32 m0, m0, 1024\ns_add_u32 s44, s44, 8192")
            a(f"buffer_load_dwordx4 v{12 if (i & 3) < 2 else 13}, s[24:27], s44 offen {NT} lds")
    if cfg.uv_early: uvprep()
    a("s_barrier")
    a("s_cmp_lg_u32 s3, 4")
    a("s_cbranch_scc1 .LW_noq")
    a(f"ds_read_b128 v[32:35], v8 offset:{QS}")
    a("v_lshlrev_b32 v36, 15, v2\nv_lshl_add_u32 v36, v3, 4, v36")
    a(f"s_lshl_b32 s45, s41, 10\ns_lshl_b32 s47, s42, 8\ns_add_u32 s45, s45, s47\ns_add_u32 s45, s45, {WS_Q}")
    a("s_mov_b32 exec_hi, 0")
    a("s_waitcnt lgkmcnt(0)")
    a("buffer_store_dwordx4 v[32:35], v36, s[8:11], s45 offen sc1")
    if cfg.qhint:
        a(f"s_lshl_b32 s45, s50, 7\ns_add_u32 s45, s45, {WS_QF}\ns_mov_b64 exec, 1")
        a("buffer_store_dword v27, v9, s[8:11], s45 offen sc1")
    a("s_mov_b64 exec, -1")
    ts(7)
    a(".LW_noq:")
    if cfg.w_pf:
        a("s_cmp_gt_u32 s3, 3")
        a("s_cbranch_scc1 .LW_nocpf")
        a("s_bfe_u32 s45, s2, 0x10002\ns_lshl_b32 s45, s45, 6\ns_lshr_b32 s47, s2, 3\ns_lshl_b32 s47, s47, 2\ns_add_u32 s45, s45, s47\ns_and_b32 s47, s2, 3\ns_add_u32 s45, s45, s47")
        a(f"s_lshl_b32 s45, s45, 17\ns_lshl_b32 s47, s3, 15\ns_add_u32 s45, s45, s47\ns_add_u32 s45, s45, {31 * 1024}")
        for i in range(cfg.w_pf):
            a(f"buffer_load_dwordx4 v[{208+4*(i&7)}:{211+4*(i&7)}], v8, s[16:19], s45 offen {cfg.w_pf_nt}")
            if i < cfg.w_pf - 1: a("s_sub_u32 s45, s45, 1024")
        a(".LW_nocpf:")
    if cfg.uv_early:
        a("s_cmp_lt_u32 s3, 4")
        a("s_cbranch_scc1 .LW_nouv")
        a("s_lshl_b32 s45, s48, 12\ns_add_u32 m0, s45, 0x10000\ns_nop 0")
        uvload()
        a(".LW_nouv:")
    if cfg.use_go:
        a(f"s_cmp_lg_u32 s3, {cfg.go_wave}")
        a("s_cbranch_scc1 .LW_go")
        if cfg.go_skip:
            a("s_lshr_b32 s45, s2, 5\ns_cmp_eq_u32 s45, 1\ns_cbranch_scc1 .LW_go")
        a(f"s_lshl_b32 s45, s2, 7\ns_add_u32 s45, s45, {WS_GO}")
        a("s_mov_b64 exec, 1")
        budget()
        a(".LW_gop:")
        spend(".LW_gog")
        a("buffer_load_dword v37, v9, s[8:11], s45 offen sc1")
        a("s_waitcnt vmcnt(0)")
        a("v_readfirstlane_b32 s47, v37")
        a("s_cmp_eq_u32 s47, s40")
        a("s_cbranch_scc1 .LW_gog")
        a(f"s_sleep {cfg.go_sleep}")
        a("s_branch .LW_gop")
        a(".LW_gog:")
        a("s_mov_b64 exec, -1")
    a(".LW_go:")
    if cfg.tlbw:
        a(f"s_cmp_lg_u32 s3, 5")
        a("s_cbranch_scc1 .LW_notlb")
        a("s_waitcnt lgkmcnt(0)")
        a(f"v_lshlrev_b32 v44, {cfg.tlbw}, v0")
        n = (1 << 20) >> cfg.tlbw
        a(f"s_mov_b64 exec, {(1 << min(n, 32)) - 1}" if n < 64 else "s_nop 0")
        a("s_lshl_b32 s45, s42, 20")
        a("buffer_load_dword v45, v44, s[24:27], s45 offen")
        a("s_mov_b32 s32, s36\ns_mov_b32 s33, s37")
        srd(32, 1409024)
        a("s_and_b32 s45, s2, 7\ns_mul_i32 s45, s45, 176128")
        a(f"s_mov_b64 exec, {(1 << max(1, min(n // 4, 32))) - 1}")
        a("buffer_load_dword v45, v44, s[32:35], s45 offen")
        a("s_mov_b32 s32, s38\ns_mov_b32 s33, s39")
        a("buffer_load_dword v45, v44, s[32:35], s45 offen")
        a("s_lshl_b32 s45, s41, 17")
        a(f"s_mov_b64 exec, {(1 << max(1, min(n // 8, 32))) - 1}")
        a("buffer_load_dword v45, v44, s[28:31], s45 offen")
        a("s_mov_b64 exec, 1")
        a(f"s_lshl_b32 s45, s41, 17\ns_add_u32 s45, s45, {WS_O}")
        a("buffer_load_dword v45, v9, s[8:11], s45 offen offset:0")
        a(f"s_mov_b32 s45, {WS_S + 0x40000}")
        a("buffer_load_dword v45, v9, s[8:11], s45 offen")
        a(f"s_mov_b32 s45, {WS_ML + 0x40000}")
        a("buffer_load_dword v45, v9, s[8:11], s45 offen")
        a("s_mov_b64 exec, -1")
        a(".LW_notlb:")
    def f1proc(skip):
        a("s_cmp_eq_u32 s62, 0")
        a(f"s_cbranch_scc1 {skip}")
        fconsts(27)
        ftags(27, 40, 44, 45)
        a("v_lshrrev_b32 v45, 1, v2\nv_lshl_add_u32 v44, v45, 9, v44")
        a(f"s_lshr_b32 s61, s97, 3\ns_lshl_b32 s61, s61, 15\ns_and_b32 s45, s3, 1\ns_lshl_b32 s45, s45, 14\ns_add_u32 s61, s61, s45\ns_lshl_b32 s45, s63, 10\ns_add_u32 s61, s61, s45\ns_add_u32 s61, s61, {WS_G}")
        a("s_waitcnt vmcnt(0)")
        transpose8(132, 164)
        a("s_nop 0")
        gemv_out(128, 164, 44, 61, 40, acc=64, out=96)
        ts(13)
        a("s_lshl_b32 s57, s3, 6\ns_add_u32 s57, s57, s49")
    if cfg.f1_early == 1: f1loads()
    if cfg.f1_early == 2:
        f1proc(".LW_nof3")
        a(".LW_nof3:")
    if not cfg.uv_early: uvprep()
    a("v_lshl_add_u32 v14, v2, 10, v4\nv_xor_b32 v15, 0x80, v14")
    a("s_lshl_b32 s43, s41, 17\ns_lshl_b32 s45, s48, 14\ns_add_u32 s43, s43, s45\ns_lshl_b32 s45, s42, 8\ns_add_u32 s43, s43, s45")
    a("s_lshl_b32 s48, s48, 12\ns_add_u32 m0, s48, 0x10000")
    a("s_barrier")
    ts(8)
    if cfg.late_slow: slow_copy(192, 196, WS_H1)
    a("s_cmp_lt_u32 s3, 4")
    a("s_cbranch_scc1 .LW_f1")
    if not cfg.uv_early: uvload()
    a("s_add_u32 m0, s48, 0x18000")
    for i in range(8):
        if i == 4: a(f"s_add_u32 m0, m0, {16384 - 3072}\ns_add_u32 s43, s43, {65536 - 3*4096}")
        elif i: a("s_add_u32 m0, m0, 1024\ns_add_u32 s43, s43, 4096")
        else: a("s_nop 0")
        a(f"buffer_load_dwordx4 v{14 if (i & 3) < 2 else 15}, s[28:31], s43 offen {NT} lds")
    a("s_cmp_lg_u32 s3, 6")
    a("s_cbranch_scc1 .LW_nowarm2")
    a(f"s_lshl_b32 s45, s42, 10\ns_add_u32 s45, s45, s49\ns_add_u32 s45, s45, {WS_H4}")
    a(f"buffer_load_dwordx4 v[32:35], v8, s[8:11], s45 offen sc1")
    a(".LW_nowarm2:")
    a("s_waitcnt vmcnt(0)")
    a("s_branch .LW_nof2")
    a(".LW_f1:")
    if cfg.f1_on == "W":
        if not cfg.f1_early: f1loads()
        if cfg.f1_early != 2: f1proc(".LW_nof2")
    a(".LW_nof2:")
    a("v_lshl_add_u32 v12, v2, 8, v4")
    a("s_add_u32 s45, s46, 0x20000\nv_add_u32 v14, s45, v12\nv_xor_b32 v15, 0x80, v14")
    if cfg.olay == "c":
        a(f"s_lshl_b32 s44, s50, 15\ns_add_u32 s44, s44, s46\ns_add_u32 s44, s44, {WS_O}")
        a("s_mov_b32 s32, s44\ns_mov_b32 s33, s44\ns_mov_b32 s34, s44")
    else:
        a("v_lshl_add_u32 v12, v2, 15, v4")
        a(f"s_lshl_b32 s44, s50, 8\ns_lshl_b32 s32, s3, 19\ns_add_u32 s44, s44, s32\ns_add_u32 s44, s44, {WS_O}")
        a(f"s_add_u32 s32, s44, {131072 - 1024}\ns_add_u32 s33, s44, {2*(131072 - 1024)}\ns_add_u32 s34, s44, {3*(131072 - 1024)}")
    a("v_xor_b32 v13, 0x80, v12")
    a("s_mov_b32 s46, s45")
    for k in range(4):
        a(f"v_bfe_u32 v10, v28, {2*k}, 1\nv_bfe_u32 v21, v28, {2*k+1}, 1\nv_lshl_or_b32 v{40+k}, v21, 16, v10")
    a("v_mul_u32_u24 v21, 272, v25\nv_lshl_add_u32 v21, v2, 3, v21\ns_lshl_b32 s45, s3, 5\nv_add_u32 v21, s45, v21")
    a("v_lshlrev_b32 v23, 4, v2")
    a("v_add_u32 v10, 0x10000, v11\nv_add_u32 v11, 0x20000, v11")
    a("s_mov_b32 s52, 0xaaaaaaaa\ns_mov_b32 s53, 0xaaaaaaaa")
    ts(9)
    a("s_barrier")
    for s in range(4):
        a(f"ds_read_b64_tr_b16 v[{96+4*s}:{97+4*s}], v10 offset:{(32*s)*256}")
        a(f"ds_read_b64_tr_b16 v[{98+4*s}:{99+4*s}], v10 offset:{(32*s+4)*256}")
    a("s_waitcnt lgkmcnt(4)")
    for s in range(4):
        a(f"ds_read_b64_tr_b16 v[{112+4*s}:{113+4*s}], v10 offset:{32768+(32*s)*256}")
        a(f"ds_read_b64_tr_b16 v[{114+4*s}:{115+4*s}], v10 offset:{32768+(32*s+4)*256}")
    a("s_cmp_lg_u32 s3, 0")
    a("s_cbranch_scc1 .LW_mlw")
    a("v_lshlrev_b32 v24, 11, v0")
    a(f"s_lshl_b32 s45, s42, 9\ns_lshl_b32 s47, s41, 4\ns_add_u32 s45, s45, s47\ns_add_u32 s45, s45, {WS_ML}\ns_add_u32 s47, s45, {64*2048}")
    budget()
    a("s_and_b32 s48, s2, 63")
    a("s_lshl_b64 exec, 1, s48")
    a(".LW_ml1:")
    spend(".LW_ml2")
    psleep()
    a("buffer_load_dwordx4 v[32:35], v24, s[8:11], s45 offen sc1")
    a("s_waitcnt vmcnt(0)")
    a("v_cmp_ne_u32 vcc, s40, v34")
    a("s_cbranch_vccnz .LW_ml1")
    a(".LW_ml2:")
    ts(3)
    budget()
    a("s_mov_b64 s[58:59], -1\ns_mov_b64 s[60:61], -1")
    a(".LW_mlp:")
    spend(".LW_mlx")
    a("s_mov_b64 exec, s[58:59]")
    a("s_cbranch_execz .LW_mls0")
    a("buffer_load_dwordx4 v[32:35], v24, s[8:11], s45 offen sc1")
    a(".LW_mls0:")
    a("s_mov_b64 exec, s[60:61]")
    a("s_cbranch_execz .LW_mls1")
    a("buffer_load_dwordx4 v[36:39], v24, s[8:11], s47 offen sc1")
    a(".LW_mls1:")
    a("s_mov_b64 exec, -1")
    a("s_waitcnt vmcnt(0)")
    a("v_cmp_ne_u32 s[58:59], s40, v34")
    a("v_cmp_ne_u32 s[60:61], s40, v38")
    a("s_or_b64 vcc, s[58:59], s[60:61]")
    a("s_cbranch_vccnz .LW_mlp")
    a(".LW_mlx:")
    a("s_mov_b64 exec, -1")
    def scales():
        a("v_mov_b32 v48, v32\nv_mov_b32 v49, v36")
        allreduce2(48, 49, 50, 51, "v_max_f32")
        a("v_sub_f32 v48, v32, v48\nv_sub_f32 v49, v36, v49")
        a("v_exp_f32 v48, v48\nv_exp_f32 v49, v49")
        if cfg.oswz: a("s_and_b32 s45, s50, 63\nv_xor_b32 v50, s45, v0\nv_lshlrev_b32 v50, 1, v50")
        else: a("v_lshlrev_b32 v50, 1, v0")
        a("v_mul_f32 v52, v48, v33\nv_mul_f32 v53, v49, v37")
        allreduce2(52, 53, 54, 55, "v_add_f32")
        a("v_rcp_f32 v52, v52\nv_rcp_f32 v53, v53")
        a("s_nop 0")
        a("v_mul_f32 v48, v48, v52\nv_mul_f32 v49, v49, v53")
        a("v_cvt_pk_bf16_f32 v48, v48, v49")
        a(f"ds_write_b16 v50, v48 offset:{SC}")
        a(f"ds_write_b16_d16_hi v50, v48 offset:{SC+128}")
    def paydma():
        a("s_mov_b32 m0, s46")
        for i in range(4):
            if i == 0: a("s_nop 0")
            a(f"buffer_load_dwordx4 v{12 if i < 2 else 13}, s[8:11], s{(44, 32, 33, 34)[i]} offen offset:{1024*i} sc1 lds")
    if cfg.sc_first:
        scales()
        a("s_waitcnt lgkmcnt(0)")
        a(".LW_mlw:")
        a("s_barrier")
        ts(10)
        paydma()
        for s_ in range(4): a(f"ds_read_b128 v[{48+4*s_}:{51+4*s_}], v23 offset:{SC+64*s_}")
    else:
        a(".LW_mlw:")
        a("s_barrier")
        ts(10)
        paydma()
        a("s_cmp_lg_u32 s3, 0")
        a("s_cbranch_scc1 .LW_scw")
        scales()
        a(".LW_scw:")
        if cfg.sc_pre:
            a("s_waitcnt lgkmcnt(0)")
            a("s_barrier")
            for s_ in range(4): a(f"ds_read_b128 v[{48+4*s_}:{51+4*s_}], v23 offset:{SC+64*s_}")
    budget()
    a(".LW_pv:")
    a("s_waitcnt vmcnt(0)")
    for i in range(4):
        a(f"ds_read_b128 v[{64+4*i}:{67+4*i}], v{14 if i < 2 else 15} offset:{1024*i}")
    for i in range(4):
        a(f"s_waitcnt lgkmcnt({3-i})")
        for k in range(4):
            a(f"v_xor_b32 v{44+i}, v{64+4*i}, v40" if k == 0 else f"v_bitop3_b32 v{44+i}, v{44+i}, v{64+4*i+k}, v{40+k} bitop3:0xf6")
    a("v_or3_b32 v39, v44, v45, v46\nv_or_b32 v39, v39, v47")
    a("v_and_b32 v39, 0x10001, v39")
    a("v_cmp_ne_u32 vcc, 0, v39")
    a("s_cbranch_vccz .LW_pk")
    spend(".LW_pk")
    if cfg.pay_sleep: a(f"s_sleep {cfg.pay_sleep}")
    for i in range(4):
        a(f"v_and_b32 v{44+i}, 0x10001, v{44+i}")
        a(f"v_cmp_ne_u32 vcc, 0, v{44+i}")
        a(f"s_cbranch_vccz .LW_pr{i}")
        a(f"buffer_load_dwordx4 v{12 if i < 2 else 13}, s[8:11], s{(44, 32, 33, 34)[i]} offen offset:{1024*i} sc1 lds")
        a(f".LW_pr{i}:")
    a("s_branch .LW_pv")
    a(".LW_pk:")
    ts(11)
    a("s_barrier")
    pre = cfg.sc_pre or cfg.sc_first
    for s in range(4):
        if not pre: a(f"ds_read_b128 v[{48+4*s}:{51+4*s}], v23 offset:{SC+64*s}")
        a(f"ds_read_b64_tr_b16 v[{64+4*s}:{65+4*s}], v11 offset:{(32*s)*256}")
        a(f"ds_read_b64_tr_b16 v[{66+4*s}:{67+4*s}], v11 offset:{(32*s+4)*256}")
    a(f"s_waitcnt lgkmcnt({6 if pre else 9})")
    a("v_mfma_f32_16x16x32_bf16 v[80:83], v[64:67], v[48:51], 0")
    a(f"s_waitcnt lgkmcnt({2 if pre else 3})")
    a("v_mfma_f32_16x16x32_bf16 v[84:87], v[72:75], v[56:59], 0")
    a("v_mfma_f32_16x16x32_bf16 v[80:83], v[68:71], v[52:55], v[80:83]")
    a("s_waitcnt lgkmcnt(0)")
    a("v_mfma_f32_16x16x32_bf16 v[84:87], v[76:79], v[60:63], v[84:87]")
    a("s_mov_b32 exec_lo, 0x00030003\ns_mov_b32 exec_hi, 0x00030003")
    a("s_nop 5")
    for k in range(4): a(f"v_cndmask_b32 v{80+k}, v{80+k}, v{84+k}, s[52:53]")
    a("v_cvt_pk_bf16_f32 v80, v80, v81\nv_cvt_pk_bf16_f32 v81, v82, v83")
    a(f"ds_write_b64 v21, v[80:81] offset:{XX}")
    a("s_mov_b64 exec, -1")
    a("s_waitcnt lgkmcnt(0)")
    a("s_barrier")
    ts(14)
    for s in range(4):
        a(f"ds_read_b128 v[{48+4*s}:{51+4*s}], v26 offset:{XX+64*s}")
    a("s_waitcnt lgkmcnt(2)")
    a("v_mfma_f32_16x16x32_bf16 v[80:83], v[96:99], v[48:51], 0")
    a("v_mfma_f32_16x16x32_bf16 v[84:87], v[100:103], v[52:55], 0")
    a("s_waitcnt lgkmcnt(0)")
    a("v_mfma_f32_16x16x32_bf16 v[80:83], v[104:107], v[56:59], v[80:83]")
    a("v_mfma_f32_16x16x32_bf16 v[84:87], v[108:111], v[60:63], v[84:87]")
    exchange(80, 84, WS_H4, ".LW_h4", YY)
    a("s_waitcnt lgkmcnt(0)")
    a(f"s_add_u32 s45, s51, {WS_S}")
    a("s_barrier")
    ts(15)
    for s in range(4):
        a(f"ds_read_b128 v[{48+4*s}:{51+4*s}], v26 offset:{YY+64*s}")
    a("s_waitcnt lgkmcnt(2)")
    a("v_mfma_f32_16x16x32_bf16 v[64:67], v[112:115], v[48:51], 0")
    a("v_mfma_f32_16x16x32_bf16 v[68:71], v[116:119], v[52:55], 0")
    a("s_waitcnt lgkmcnt(0)")
    a("v_mfma_f32_16x16x32_bf16 v[64:67], v[120:123], v[56:59], v[64:67]")
    a("v_mfma_f32_16x16x32_bf16 v[68:71], v[124:127], v[60:63], v[68:71]")
    a("s_mov_b32 exec_lo, 0x00030003\ns_mov_b32 exec_hi, 0x00030003")
    a("s_nop 5")
    for k in range(4): a(f"v_add_f32 v{64+k}, v{64+k}, v{68+k}")
    for k in range(4): a(f"v_bfi_b32 v{64+k}, s100, v{17+k}, v{64+k}")
    a("buffer_store_dwordx4 v[64:67], v16, s[8:11], s45 offen sc1")
    ts(12)
    if cfg.late_slow: slow_copy(80, 84, WS_H4)

    ts_flush()
    a("s_endpgm")

    QR = 131072
    MX = QR; LS = QR + 512; FLQ = QR + 1024; PX = QR + 2048
    FXN = QR + 16384; FG = FXN + 2304; FH = FG + 8192
    ZF, ZS = 0, 512
    def zprolog():
        a("v_and_b32 v3, 7, v0\nv_lshrrev_b32 v2, 3, v0")
        a("v_lshlrev_b32 v4, 12, v2\nv_lshl_add_u32 v4, v3, 4, v4")
        a("v_mov_b32 v10, s40")
        utags(10, 10)
    def zreduce():
        for k in range(4):
            a(f"v_add_f32_dpp v{32+k}, v{32+k}, v{32+k} row_ror:8 row_mask:0xf bank_mask:0xf")
        for sw in ("v_permlane16_swap_b32", "v_permlane32_swap_b32"):
            for k in range(4): a(f"v_mov_b32 v{36+k}, v{32+k}")
            a("s_nop 0")
            for k in range(4): a(f"{sw} v{32+k}, v{36+k}")
            for k in range(4): a(f"v_add_f32 v{32+k}, v{32+k}, v{36+k}")
    def zgather(n, sbase, lab, masks):
        budget()
        a(f"{lab}_1:")
        spend(f"{lab}_2")
        psleep()
        a(f"s_mov_b64 exec, s[{masks[0]}:{masks[0]+1}]")
        a(f"buffer_load_dwordx4 v[32:35], v4, s[8:11], {sbase} offen sc1")
        a("s_waitcnt vmcnt(0)")
        a("v_xor_b32 v20, v32, v10")
        for k in range(1, 4): a(f"v_bitop3_b32 v20, v20, v{32+k}, v{10+k} bitop3:0xf6")
        a("v_and_b32 v20, 0xff, v20")
        a(f"v_cmp_ne_u32 s[{masks[0]}:{masks[0]+1}], 0, v20")
        a(f"s_bcnt1_i32_b64 s48, s[{masks[0]}:{masks[0]+1}]")
        a(f"s_cmp_gt_u32 s48, {cfg.z_pre}")
        a(f"s_cbranch_scc1 {lab}_1")
        a(f"{lab}_2:")
        budget()
        a(f"{lab}_p:")
        spend(f"{lab}_ok")
        for i in range(n):
            a(f"s_mov_b64 exec, s[{masks[i]}:{masks[i]+1}]")
            a(f"s_cbranch_execz {lab}_s{i}")
            if i: a(f"s_add_u32 s48, {sbase}, {32768*i}")
            a(f"buffer_load_dwordx4 v[{32+4*i}:{35+4*i}], v4, s[8:11], {'s48' if i else sbase} offen sc1")
            a(f"{lab}_s{i}:")
        a("s_waitcnt vmcnt(0)")
        a("s_mov_b64 vcc, 0")
        a("s_mov_b64 exec, -1")
        for i in range(n):
            a(f"v_xor_b32 v{60+i}, v{32+4*i}, v10")
            for k in range(1, 4): a(f"v_bitop3_b32 v{60+i}, v{60+i}, v{32+4*i+k}, v{10+k} bitop3:0xf6")
        for i in range(n): a(f"v_and_b32 v{60+i}, 0xff, v{60+i}")
        for i in range(n):
            a(f"s_mov_b64 exec, s[{masks[i]}:{masks[i]+1}]")
            a(f"v_cmp_ne_u32 s[{masks[i]}:{masks[i]+1}], 0, v{60+i}")
            a(f"s_or_b64 vcc, vcc, s[{masks[i]}:{masks[i]+1}]")
        a(f"s_cbranch_vccnz {lab}_p")
        a(f"{lab}_ok:")
        a("s_mov_b64 exec, -1")
    a(".L_A:")
    a("s_cmp_ge_u32 s2, 256")
    a("s_cbranch_scc1 .L_end")
    a("s_load_dwordx2 s[16:17], s[0:1], 8")
    a("s_load_dwordx2 s[4:5], s[0:1], 0")
    a("s_load_dwordx4 s[36:39], s[0:1], 56")
    a("s_load_dwordx2 s[12:13], s[0:1], 88")
    a("s_load_dwordx2 s[8:9], s[0:1], 96")
    a("s_load_dwordx2 s[28:29], s[0:1], 72")
    a("s_load_dwordx2 s[32:33], s[0:1], 80")
    a("v_lshrrev_b32 v1, 6, v0")
    a("v_and_b32 v0, 63, v0")
    a("v_readfirstlane_b32 s3, v1")
    a("s_sub_u32 s43, s2, 128")
    a("s_bfe_u32 s41, s43, 0x10002")
    a("s_lshr_b32 s42, s43, 3\ns_lshl_b32 s42, s42, 2\ns_and_b32 s44, s43, 3\ns_add_u32 s42, s42, s44")
    a("s_lshl_b32 s44, s41, 6\ns_add_u32 s42, s42, s44")
    srd(16, 16777216); srd(12, 256); srd(8, WS_SIZE); srd(4, 2048); srd(28, 1409024); srd(32, 2048)
    a("v_lshlrev_b32 v8, 4, v0")
    a("v_mov_b32 v9, 0")
    a("v_lshrrev_b32 v2, 4, v0\nv_and_b32 v3, 15, v0\nv_and_b32 v25, 1, v0")
    a("s_and_b32 s47, s3, 3")
    def pv_setup():
        a("v_lshrrev_b32 v7, 5, v0")
        a("v_bfe_u32 v4, v0, 2, 2")
        a("v_lshlrev_b32 v5, 10, v7\nv_lshl_add_u32 v5, v4, 8, v5\nv_lshl_add_u32 v5, v4, 6, v5")
        a("v_bfe_u32 v6, v0, 4, 1\nv_bfe_u32 v4, v0, 1, 1\nv_lshl_add_u32 v6, v6, 1, v4\nv_xor_b32 v6, v6, v7\nv_lshl_add_u32 v5, v6, 4, v5")
        a("v_lshl_add_u32 v5, v25, 3, v5")
        a("s_lshr_b32 s45, s3, 2\ns_lshl_b32 s45, s45, 7\nv_xor_b32 v5, s45, v5")
        a("s_lshl_b32 s44, s47, 15\nv_add_u32 v32, s44, v5")
        a("v_mov_b32 v54, 0")
        a("v_xor_b32 v33, 32, v32\nv_xor_b32 v34, 64, v32\nv_xor_b32 v35, 96, v32")
        a(f"v_add_u32 v51, {PX}, v8")
        hs = 17 if cfg.olay == "c" else 10
        a(f"v_bfe_u32 v4, v0, 4, 1\nv_lshl_add_u32 v5, v7, 2, v4\nv_lshlrev_b32 v36, {hs}, v5\nv_lshl_add_u32 v36, v3, 3, v36")
        if cfg.olay == "p":
            a("v_mov_b32 v37, v36\nv_mov_b32 v38, v36\nv_mov_b32 v39, v36")
            a(f"s_lshl_b32 s44, s47, 8\ns_add_u32 s44, s44, s45\ns_lshl_b32 s45, s42, 15\ns_add_u32 s44, s44, s45\ns_add_u32 s44, s44, {WS_O}")
        elif cfg.oswz:
            a("s_xor_b32 s57, s42, s47\nv_lshlrev_b32 v5, 2, v5\nv_xor_b32 v5, s57, v5\nv_lshl_add_u32 v36, v5, 8, v36")
            a("v_xor_b32 v37, 0x800, v36\nv_xor_b32 v38, 0x2000, v36\nv_xor_b32 v39, 0x2800, v36")
            a(f"s_add_u32 s44, s44, s45\ns_add_u32 s44, s44, {WS_O}")
        else:
            a("v_mov_b32 v37, v36\nv_mov_b32 v38, v36\nv_mov_b32 v39, v36")
            a(f"s_add_u32 s44, s44, s45\ns_lshl_b32 s45, s42, 8\ns_add_u32 s44, s44, s45\ns_add_u32 s44, s44, {WS_O}")
        for r in range(0, 16, 2):
            a(f"s_add_u32 s{48+r//2}, s44, {((r & 3) + 8 * (r >> 2)) << hs}")
        a("v_and_b32 v5, 7, v0\nv_lshl_add_u32 v4, v5, 1, v4\nv_lshlrev_b32 v4, 1, v4\nv_lshrrev_b32 v4, v4, v11\nv_and_b32 v5, 1, v4\nv_bfe_u32 v4, v4, 1, 1\nv_lshl_or_b32 v53, v4, 16, v5")
        a("s_mov_b32 s56, 0x00010001")
        if cfg.q8:
            a(f"s_lshl_b32 s60, s3, 12\ns_lshl_b32 s63, s41, 15\ns_add_u32 s63, s63, s60\ns_add_u32 s63, s63, {WS_Q}\ns_add_u32 s60, s60, {QR}")
            a("s_lshl_b32 s45, s47, 4\nv_xor_b32 v40, s45, v8\nv_add_u32 v41, s60, v40")
            a("v_and_b32 v4, 3, v0\nv_lshlrev_b32 v4, 3, v4\nv_lshrrev_b32 v4, v4, v11")
            for k in range(4):
                a(f"v_bfe_u32 v5, v4, {2*k}, 1\nv_bfe_u32 v6, v4, {2*k+1}, 1\nv_lshl_or_b32 v{42+k}, v6, 16, v5")
    def q8block(lab):
        a("s_mov_b32 m0, s60")
        budget()
        a("s_barrier")
        a(f"{lab}_l:")
        for i in range(4):
            if i: a(f"v_xor_b32 v10, {64*i}, v40")
            a(f"buffer_load_dwordx4 v{10 if i else 40}, s[8:11], s63 offen offset:{1024*i} sc1 lds")
        a("s_waitcnt vmcnt(0)")
        for i in range(4):
            if i: a(f"v_xor_b32 v10, {64*i}, v41")
            a(f"ds_read_b128 v[{64+4*i}:{67+4*i}], v{10 if i else 41} offset:{1024*i}")
        for i in range(4):
            a(f"s_waitcnt lgkmcnt({3-i})")
            for k in range(4):
                a("v_xor_b32 v46, v64, v42" if i == 0 and k == 0 else f"v_bitop3_b32 v46, v46, v{64+4*i+k}, v{42+k} bitop3:0xf6")
        a("v_and_b32 v46, s56, v46")
        a("v_cmp_ne_u32 vcc, 0, v46")
        a(f"s_cbranch_vccz {lab}_k")
        spend(f"{lab}_k")
        a(f"s_branch {lab}_l")
        a(f"{lab}_k:")
    def tread(n):
        k, j = n >> 1, n & 1
        off = (8 * (k >> 1) + 4 * (k & 1)) * 1024
        r = 96 + 4 * n
        a(f"ds_read_b64_tr_b16 v[{r}:{r+1}], v{32+2*j} offset:{off}")
        a(f"ds_read_b64_tr_b16 v[{r+2}:{r+3}], v{33+2*j} offset:{off+2048}")
    a("s_cmp_lt_u32 s3, 4")
    a("s_cbranch_scc1 .LA_comp")
    if cfg.pf:
        a("s_load_dwordx2 s[20:21], s[0:1], 24")
        srd(20, 4194304)
    a("s_lshl_b32 s46, s47, 13")
    a("s_lshl_b32 s44, s42, 17\ns_lshl_b32 s45, s47, 15\ns_add_u32 s44, s44, s45")
    a("v_lshlrev_b32 v4, 2, v2\nv_xor_b32 v4, v4, v3\nv_lshlrev_b32 v4, 4, v4\nv_lshl_add_u32 v4, v2, 10, v4")
    a("v_xor_b32 v5, 16, v4\nv_xor_b32 v6, 32, v4\nv_xor_b32 v7, 48, v4")
    a("s_mov_b32 m0, s46")
    a("s_waitcnt lgkmcnt(0)")
    ts(1)
    if cfg.pf:
        a("s_and_b32 s45, s43, 7\ns_lshl_b32 s45, s45, 2\ns_lshr_b32 s48, s43, 5\ns_add_u32 s45, s45, s48\ns_lshl_b32 s45, s45, 8")
        a("s_bfe_u32 s48, s43, 0x20003\ns_lshl_b32 s48, s48, 20\ns_add_u32 s45, s45, s48\ns_lshl_b32 s48, s47, 18\ns_add_u32 s45, s45, s48")
        a("v_lshlrev_b32 v10, 13, v2\nv_lshl_add_u32 v10, v3, 4, v10")
        a(f"s_add_u32 m0, s46, {QR}")
        if cfg.pf_pre: a("buffer_load_dword v12, v9, s[4:7], 0 offen\ns_waitcnt vmcnt(0)")
        else: a("s_nop 0")
        for i in range(8):
            a(f"buffer_load_dwordx4 v10, s[20:23], s45 offen {cfg.pf_nt} lds")
            if i < 7: a("s_add_u32 s45, s45, 32768")
        a("s_mov_b32 m0, s46")
    else:
        if cfg.f1_on == "H":
            a("v_lshlrev_b32 v26, 5, v0")
            a("buffer_load_dwordx4 v[12:15], v26, s[4:7], 0 offen")
            a("buffer_load_dwordx4 v[16:19], v26, s[4:7], 0 offen offset:16")
            a("s_and_b32 s97, s43, 7\ns_lshl_b32 s97, s97, 1\ns_lshr_b32 s45, s47, 1\ns_add_u32 s97, s97, s45")
            a("v_lshlrev_b32 v26, 10, v25\nv_lshl_add_u32 v26, v2, 4, v26\ns_lshl_b32 s45, s97, 6")
            a("buffer_load_dwordx4 v[20:23], v26, s[4:7], s45 offen")
        else:
            a("buffer_load_dword v12, v9, s[4:7], 0 offen")
    if cfg.corder == "col": pieces = [(rg, cq) for cq in range(4) for rg in range(8)]
    elif cfg.corder == "row": pieces = [(rg, cq) for rg in range(8) for cq in range(4)]
    else:
        k = cfg.skip1
        first = [(rg, cq) for rg in range(k) for cq in (0, 2, 3)]
        rest = [(rg, cq) for rg in range(k, 8) for cq in range(4)]
        late1 = [(rg, 1) for rg in range(k)]
        pieces = list(first)
        step = max(1, len(rest) // max(1, len(late1)))
        j = 0
        for n_, p_ in enumerate(rest):
            if n_ % step == 0 and j < len(late1): pieces.append(late1[j]); j += 1
            pieces.append(p_)
        pieces += late1[j:]
    assert sorted(pieces) == sorted((rg, cq) for rg in range(8) for cq in range(4))
    def crow(i):
        rg, cq = pieces[i]
        if i:
            prg, pcq = pieces[i - 1]
            dl = (cq - pcq) * 32768 + (rg - prg) * 1024; dg = (cq - pcq) * 256 + (rg - prg) * 4096
            a((f"s_add_u32 m0, m0, {dl}" if dl >= 0 else f"s_sub_u32 m0, m0, {-dl}") + "\n" + (f"s_add_u32 s44, s44, {dg}" if dg >= 0 else f"s_sub_u32 s44, s44, {-dg}"))
        a(f"buffer_load_dwordx4 v{4 + (rg & 3)}, s[16:19], s44 offen {NT} lds")
    a(f"s_add_u32 s60, s46, {QR}")
    a(f"s_lshl_b32 s63, s41, 15\ns_add_u32 s63, s63, s46\ns_add_u32 s63, s63, {WS_Q}")
    a("s_and_b32 s45, s47, 1\ns_lshl_b32 s45, s45, 5")
    a("v_xor_b32 v24, s45, v8")
    a("v_add_u32 v58, s60, v24")
    def qrows():
        a("s_mov_b32 s61, m0\ns_mov_b32 m0, s60\ns_mov_b32 s45, s63")
        for i in range(8):
            if i == 4: a("s_add_u32 m0, m0, 4096\ns_add_u32 s45, s45, 4096")
            a(f"v_xor_b32 v10, {16*(((i&3)<<2) | (i>>2))}, v24")
            a(f"buffer_load_dwordx4 v10, s[8:11], s45 offen offset:{1024*(i&3)} sc1 lds")
        a("s_mov_b32 m0, s61")
    if cfg.pf: a(f"s_waitcnt vmcnt({cfg.pf_cnt})")
    elif cfg.pf_delay: a("s_waitcnt vmcnt(0)")
    ts(2)
    issued = []
    def qdecide():
        a(f"s_waitcnt vmcnt({len(issued) - 1 - issued.index('f')})")
        a("s_mov_b32 s59, 0")
        a("v_cmp_ne_u32 vcc, s40, v13")
        a("s_bcnt1_i32_b32 s45, vcc_lo")
        a(f"s_cmp_gt_u32 s45, {cfg.q_thr}")
        a("s_cbranch_scc1 .LH_noearly")
        qrows()
        a("s_mov_b32 s59, 1")
        a(".LH_noearly:")
    for i in range(32):
        win = cfg.cwin1 if i < cfg.n1 else cfg.cwin
        if i == cfg.nonce_row:
            a("buffer_load_dword v11, v9, s[12:15], 0 offen offset:128 sc1"); issued.append("n")
        if i == cfg.go_row:
            k = len(issued) - 1 - issued.index("n")
            a(f"s_waitcnt vmcnt({min(k, 63)})")
            budget()
            a(".LH_nchk:")
            a("v_readfirstlane_b32 s40, v11")
            a("s_cmp_lg_u32 s40, 0")
            a("s_cbranch_scc1 .LH_ngot")
            spend(".LH_ngot")
            a("buffer_load_dword v11, v9, s[12:15], 0 offen offset:128 sc1")
            a("s_waitcnt vmcnt(0)")
            a("s_branch .LH_nchk")
            a(".LH_ngot:")
            if cfg.use_go:
                a(f"s_lshl_b32 s45, s43, 7\ns_add_u32 s45, s45, {WS_GO}")
                a("s_cmp_lg_u32 s3, 4")
                a("s_cbranch_scc1 .LH_nogo")
                a("s_mov_b64 exec, 1")
                a("buffer_store_dword v11, v9, s[8:11], s45 offen sc1")
                a("s_mov_b64 exec, -1")
                a(".LH_nogo:")
        if cfg.qhint and i == cfg.qs_row:
            a(f"v_and_b32 v13, 31, v0\nv_lshlrev_b32 v13, 7, v13\ns_lshl_b32 s45, s47, 12\ns_add_u32 s45, s45, {WS_QF}")
            a("buffer_load_dword v13, v13, s[8:11], s45 offen sc1"); issued.append("f")
        if cfg.qhint and i == cfg.qc_row: qdecide()
        if i == cfg.q_row:
            qrows(); issued += ["q"] * 8
        if win and i >= win: a(f"s_waitcnt vmcnt({win-1 + (8 if cfg.q_row <= i < cfg.q_row + cfg.q_ext else 0)})")
        crow(i); issued.append("c")
    if cfg.qhint and cfg.qc_row == 32: qdecide()
    if cfg.q_row >= 32 and not cfg.qhint and not cfg.q8:
        if cfg.q_wait is not None: a(f"s_waitcnt vmcnt({cfg.q_wait})")
        qrows(); issued += ["q"] * 8
    assert cfg.q_row >= 24
    ts(3)
    if cfg.f1_on == "H":
        a("s_mov_b32 s58, 0xaaaaaaaa\ns_mov_b32 s59, 0xaaaaaaaa")
        ln_stats(12, 32)
        ln_apply(20, 32)
        FS[:] = [100, 98, 22]
        fconsts(11)
        ftags(11, 28, 27, 26)
        a("v_lshrrev_b32 v26, 1, v2\nv_lshl_add_u32 v27, v26, 9, v27")
        a("s_bitcmp1_b32 s3, 0")
        a("s_cselect_b32 s24, s38, s36\ns_cselect_b32 s25, s39, s37")
        srd(24, 1409024)
        a("v_mul_u32_u24 v26, 22016, v2\nv_lshl_add_u32 v26, v3, 4, v26")
        a(f"s_mul_i32 s20, s97, {32*2752}\ns_lshr_b32 s45, s43, 3\ns_lshl_b32 s21, s45, 8\ns_add_u32 s20, s20, s21")
        a(f"s_lshl_b32 s21, s45, 15\ns_and_b32 s45, s47, 1\ns_lshl_b32 s45, s45, 14\ns_add_u32 s21, s21, s45\ns_lshl_b32 s45, s97, 10\ns_add_u32 s21, s21, s45\ns_add_u32 s21, s21, {WS_G}")
    pv_setup()
    a("v_and_b32 v10, 3, v0\nv_lshlrev_b32 v10, 3, v10\nv_lshrrev_b32 v12, v10, v11")
    for k in range(4):
        a(f"v_bfe_u32 v56, v12, {2*k}, 1\nv_bfe_u32 v57, v12, {2*k+1}, 1\nv_lshl_or_b32 v{60+k}, v57, 16, v56")
    a("v_lshlrev_b32 v5, 13, v2\nv_lshl_add_u32 v5, v3, 4, v5")
    a("s_sub_u32 s62, s43, 85\ns_lshl_b32 s46, s62, 15\ns_lshl_b32 s45, s47, 8\ns_add_u32 s46, s46, s45")
    if cfg.a_pf:
        a("s_load_dwordx2 s[24:25], s[0:1], 40")
        srd(24, 4194304)
        a("v_lshlrev_b32 v13, 10, v2\nv_lshl_add_u32 v13, v3, 4, v13")
        a("s_and_b32 s57, s43, 7\ns_lshl_b32 s57, s57, 2\ns_lshr_b32 s45, s43, 5\ns_add_u32 s57, s57, s45\ns_lshl_b32 s57, s57, 17")
        a(f"s_bfe_u32 s45, s43, 0x20003\ns_lshl_b32 s45, s45, 8\ns_add_u32 s57, s57, s45\ns_lshl_b32 s45, s47, 15\ns_add_u32 s57, s57, s45\ns_add_u32 s57, s57, {(8 - cfg.a_pf) * 4096}")
        a("s_waitcnt lgkmcnt(0)")
    def qcheck():
        for i in range(8):
            a(f"v_xor_b32 v10, {16*(((i&3)<<2) | (i>>2))}, v58")
            a(f"ds_read_b128 v[{64+4*i}:{67+4*i}], v10 offset:{1024*i}")
        for i in range(8):
            a(f"s_waitcnt lgkmcnt({7-i})")
            for k in range(4):
                a("v_xor_b32 v56, v64, v60" if i == 0 and k == 0 else f"v_bitop3_b32 v56, v56, v{64+4*i+k}, v{60+k} bitop3:0xf6")
        a("v_and_b32 v56, s56, v56")
        a("v_cmp_ne_u32 vcc, 0, v56")
    if cfg.q8:
        a(f"s_waitcnt vmcnt({cfg.q_wait})")
        ts(4)
        q8block(".LH_q")
        ts(7)
    elif cfg.qhint:
        budget()
        a("s_cmp_eq_u32 s59, 0")
        a("s_cbranch_scc1 .LH_qlate")
        a(f"s_waitcnt vmcnt({32 - cfg.qc_row})")
        a("s_branch .LH_qv")
        a(".LH_qlate:")
        a(f"s_waitcnt vmcnt({cfg.q_wait})")
        a(".LH_qre:")
        qrows()
        a("s_waitcnt vmcnt(0)")
        a(".LH_qv:")
        ts(7)
        qcheck()
        a("s_cbranch_vccz .LH_qk")
        spend(".LH_qk")
        a("s_branch .LH_qre")
        a(".LH_qk:")
        a("s_waitcnt vmcnt(0)")
        ts(4)
    else:
        a("s_waitcnt vmcnt(8)")
        ts(4)
        if cfg.cpre: a("s_barrier")
        budget()
        a(".LH_qv:")
        a("s_waitcnt vmcnt(0)")
        ts(7)
        qcheck()
        a("s_cbranch_vccz .LH_qk")
        spend(".LH_qk")
        qrows()
        a("s_branch .LH_qv")
        a(".LH_qk:")
    a("s_barrier")
    if cfg.f1_on == "H":
        a("s_cmp_ge_u32 s43, 88")
        a("s_cbranch_scc1 .LH_nof1")
        for i in range(8):
            a(f"buffer_load_dwordx4 v[{160+4*i}:{163+4*i}], v26, s[24:27], s20 offen {NT}")
            if i < 7: a("s_add_u32 s20, s20, 2752")
        a(".LH_nof1:")
    a("s_cmp_lt_u32 s43, 85")
    a("s_cbranch_scc1 .LH_now2")
    for i in range(8):
        if i == 4: a("s_add_u32 s46, s46, 4096")
        a(f"buffer_load_dwordx4 v[{208+4*i}:{211+4*i}], v5, s[28:31], s46 offen offset:{1024*(i&3)} {NT}")
    if cfg.a_pf:
        a("s_branch .LH_now3")
    a(".LH_now2:")
    if cfg.a_pf:
        for i in range(cfg.a_pf):
            a(f"buffer_load_dwordx4 v[{208+4*i}:{211+4*i}], v13, s[24:27], s57 offen {cfg.a_pf_nt}")
            if i < cfg.a_pf - 1: a("s_add_u32 s57, s57, 4096")
        a(".LH_now3:")
    if not cfg.cpre: a("s_barrier")
    for n in range(16):
        if n >= 7: a("s_waitcnt lgkmcnt(12)")
        tread(n)
        if n == 7 and not cfg.cpre: a("s_barrier")
    a("s_waitcnt lgkmcnt(0)")
    if cfg.cpre: a("s_barrier\ns_barrier")
    def hf1(lab):
        a("s_cmp_ge_u32 s43, 88")
        a(f"s_cbranch_scc1 {lab}")
        a("s_waitcnt vmcnt(8)" if False else "s_waitcnt vmcnt(0)")
        transpose8(160, 64)
        a("s_nop 0")
        gemv_out(20, 64, 27, 21, 28, acc=160, out=192)
        ts(5)
        a(f"{lab}:")
        FS[:] = [52, 54, 56]
    if cfg.f1_on == "H" and cfg.hf1_pre: hf1(".LH_nof2")
    a(f"s_setprio {cfg.hprio}")
    a("s_barrier")
    for k in range(8):
        a(f"ds_read_b128 v[{64+4*k}:{67+4*k}], v51 offset:{1024*k}")
    a("s_branch .LA_pv")

    a(".LA_comp:")
    a("s_waitcnt lgkmcnt(0)")
    ts(1)
    def a_nonce(lab):
        budget()
        a(f"{lab}p:")
        spend(f"{lab}g")
        a(f"s_sleep {cfg.a_nsleep}")
        a("buffer_load_dword v11, v9, s[12:15], 0 offen offset:128 sc1")
        a("s_waitcnt vmcnt(0)")
        a("v_readfirstlane_b32 s40, v11")
        a("s_cmp_eq_u32 s40, 0")
        a(f"s_cbranch_scc1 {lab}p")
        a(f"{lab}g:")
    if cfg.f1_on == "A":
        a("s_cmp_ge_u32 s43, 88")
        a("s_cbranch_scc1 .LA_nof1")
        a("v_lshlrev_b32 v4, 5, v0")
        a("buffer_load_dwordx4 v[12:15], v4, s[4:7], 0 offen")
        a("buffer_load_dwordx4 v[16:19], v4, s[4:7], 0 offen offset:16")
        a("s_and_b32 s50, s43, 7\ns_lshl_b32 s50, s50, 1\ns_lshr_b32 s51, s3, 1\ns_add_u32 s50, s50, s51")
        a("v_lshlrev_b32 v4, 10, v25\nv_lshl_add_u32 v4, v2, 4, v4\ns_lshl_b32 s45, s50, 6")
        a("buffer_load_dwordx4 v[20:23], v4, s[4:7], s45 offen")
        a("s_bitcmp1_b32 s3, 0")
        a("s_cselect_b32 s20, s38, s36\ns_cselect_b32 s21, s39, s37")
        srd(20, 1409024)
        a("v_mul_u32_u24 v4, 22016, v2\nv_lshl_add_u32 v4, v3, 4, v4")
        a(f"s_mul_i32 s45, s50, {32*2752}\ns_lshr_b32 s51, s43, 3\ns_lshl_b32 s44, s51, 8\ns_add_u32 s45, s45, s44")
        if cfg.f1_delay: a("s_waitcnt vmcnt(0)")
        for i in range(8):
            a(f"buffer_load_dwordx4 v[{96+4*i}:{99+4*i}], v4, s[20:23], s45 offen {NT}")
            if i < 7: a("s_add_u32 s45, s45, 2752")
        a(".LA_nof1:")
    if cfg.prefetch:
        a(f"s_cmp_ge_u32 s43, {cfg.pf_cus}")
        a("s_cbranch_scc1 .LA_nopf")
        a("s_getpc_b64 s[24:25]")
        a(".LA_pc:")
        a(f"s_sub_u32 s24, s24, .LA_pc-{K}\ns_subb_u32 s25, s25, 0")
        a(f"s_mov_b32 s26, .L_codeend-{K}\ns_mov_b32 s27, 0x20000")
        a("s_mul_i32 s45, s3, 5120")
        for i in range(5):
            a(f"buffer_load_dwordx4 v[28:31], v8, s[24:27], s45 offen")
            if i < 4: a("s_add_u32 s45, s45, 1024")
        a(".LA_nopf:")
    if cfg.f1_on == "A":
        a("s_cmp_ge_u32 s43, 88")
        a("s_cbranch_scc1 .LA_nof2")
        a("s_mov_b32 s58, 0xaaaaaaaa\ns_mov_b32 s59, 0xaaaaaaaa")
        a("s_waitcnt vmcnt(8)")
        ln_stats(12, 32)
        ln_apply(20, 32)
        fconsts(11)
        a(f"s_lshl_b32 s61, s51, 15\ns_and_b32 s45, s3, 1\ns_lshl_b32 s45, s45, 14\ns_add_u32 s61, s61, s45\ns_lshl_b32 s45, s50, 10\ns_add_u32 s61, s61, s45\ns_add_u32 s61, s61, {WS_G}")
        a("s_waitcnt vmcnt(0)")
        transpose8(96, 128)
        a_nonce(".LA_n1")
        ftags(11, 28, 27, 26)
        a("v_lshrrev_b32 v26, 1, v2\nv_lshl_add_u32 v27, v26, 9, v27")
        gemv_out(20, 128, 27, 61, 28, acc=160, out=192)
        ts(3)
        a("s_branch .LA_n2g")
        a(".LA_nof2:")
    a_nonce(".LA_n2")
    ts(2)
    pv_setup()
    a("v_lshrrev_b32 v2, 5, v0")
    a("v_and_b32 v3, 31, v0")
    a("v_and_b32 v4, 3, v3\nv_bfe_u32 v5, v3, 2, 2\nv_lshl_or_b32 v5, v4, 2, v5\nv_xor_b32 v5, v5, v2\nv_lshlrev_b32 v5, 4, v5")
    a("v_lshl_add_u32 v24, v3, 10, v5")
    a(f"v_add_u32 v24, {QR}, v24")
    a("v_lshl_add_u32 v5, v4, 8, v5\nv_lshrrev_b32 v4, 2, v3\nv_lshl_add_u32 v5, v4, 10, v5")
    a("s_lshl_b32 s45, s3, 13\nv_add_u32 v16, s45, v5")
    for k in range(1, 8):
        a(f"v_xor_b32 v{16+k}, {32*k}, v16\nv_xor_b32 v{24+k}, {32*k}, v24")
    a(f"s_lshl_b32 s45, s3, 7\ns_add_u32 s45, s45, {MX}")
    a("v_lshlrev_b32 v48, 2, v3")
    a(f"v_add_u32 v49, {MX}, v48")
    a("v_add_u32 v48, s45, v48")
    a(f"s_lshl_b32 s45, s3, 11\ns_add_u32 s45, s45, {PX}")
    a("v_add_u32 v50, s45, v8")
    a("v_lshlrev_b32 v54, 4, v3")
    a(f"s_lshl_b32 s46, s42, 11\ns_lshl_b32 s45, s3, 9\ns_add_u32 s46, s46, s45\ns_add_u32 s46, s46, {WS_ML}")
    a("v_mov_b32 v58, s40\nv_mov_b32 v59, 0")
    if cfg.cpre:
        ts(4)
        a("s_barrier")
        ts(12)
        for s_ in range(32):
            if s_ >= 15: a("s_waitcnt lgkmcnt(14)")
            a(f"ds_read_b128 v[{96+4*s_}:{99+4*s_}], v{16+(s_&7)} offset:{32768*((s_>>3)&1)}")
            if 8 <= s_ < 16: a(f"v_add_u32 v{16+(s_&7)}, 0x10000, v{16+(s_&7)}")
        a("s_waitcnt lgkmcnt(0)")
        a("s_barrier")
        ts(5)
        LA = 8
        def sread(s):
            r = 224 + 4 * (s % LA)
            a(f"ds_read_b128 v[{r}:{r+3}], v{24+(s&7)} offset:{256*(s>>3)}")
        for s in range(LA): sread(s)
        for s in range(32):
            r = 224 + 4 * (s % LA)
            outstanding = min(LA, 32 - s)
            a(f"s_waitcnt lgkmcnt({outstanding-1})")
            if s == 31: a("s_barrier")
            a(f"v_mfma_f32_32x32x16_bf16 v[64:79], v[{96+4*s}:{99+4*s}], v[{r}:{r+3}], {'0' if s == 0 else 'v[64:79]'}")
            if s + LA < 32: sread(s + LA)
    else:
        ts(4)
        if cfg.q8: q8block(".LA_q")
        a("s_barrier")
        ts(5)
        LA = 4
        def sread(s):
            r = 208 + 8 * (s % LA)
            a(f"ds_read_b128 v[{r}:{r+3}], v{16+(s&7)} offset:{32768*((s>>3)&1)}")
            a(f"ds_read_b128 v[{r+4}:{r+7}], v{24+(s&7)} offset:{256*(s>>3)}")
            if 8 <= s < 16: a(f"v_add_u32 v{16+(s&7)}, 0x10000, v{16+(s&7)}")
        for s in range(LA): sread(s)
        for s in range(32):
            r = 208 + 8 * (s % LA)
            outstanding = min(LA, 32 - s)
            a(f"s_waitcnt lgkmcnt({2*(outstanding-1)})")
            if s == 31: a("s_barrier")
            a(f"v_mfma_f32_32x32x16_bf16 v[64:79], v[{r}:{r+3}], v[{r+4}:{r+7}], {'0' if s == 0 else 'v[64:79]'}")
            if s + LA < 32: sread(s + LA)
    ts(6)
    a("s_nop 11" if not cfg.ts else "s_nop 10")
    a("v_max3_f32 v4, v64, v65, v66\nv_max3_f32 v5, v67, v68, v69\nv_max3_f32 v6, v70, v71, v72\nv_max3_f32 v7, v73, v74, v75")
    a("v_max3_f32 v4, v4, v76, v77\nv_max3_f32 v5, v5, v78, v79\nv_max3_f32 v4, v4, v6, v7\nv_max_f32 v4, v4, v5")
    a("v_mov_b32 v5, v4\ns_nop 1\nv_permlane32_swap_b32 v4, v5\nv_max_f32 v4, v4, v5")
    a("ds_write_b32 v48, v4")
    a("s_waitcnt lgkmcnt(0)")
    a("s_barrier")
    a("ds_read2_b32 v[4:5], v49 offset0:0 offset1:32")
    a("ds_read2_b32 v[6:7], v49 offset0:64 offset1:96")
    a("s_waitcnt lgkmcnt(0)")
    a("v_max3_f32 v4, v4, v5, v6\nv_max_f32 v56, v4, v7")
    for r in range(8): a(f"v_sub_f32 v{64+r}, v{64+r}, v56")
    for r in range(8):
        a(f"v_exp_f32 v{64+r}, v{64+r}")
        a(f"v_sub_f32 v{72+r}, v{72+r}, v56")
    for e in range(4):
        a(f"v_exp_f32 v{72+2*e}, v{72+2*e}\nv_exp_f32 v{73+2*e}, v{73+2*e}")
        a(f"v_cvt_pk_bf16_f32 v{80+e}, v{64+2*e}, v{65+2*e}")
    a("ds_write_b128 v50, v[80:83]")
    for e in range(4, 8): a(f"v_cvt_pk_bf16_f32 v{80+e}, v{64+2*e}, v{65+2*e}")
    a("ds_write_b128 v50, v[84:87] offset:1024")
    for e in range(0, 8, 2): a(f"v_pk_add_f32 v[{64+e}:{65+e}], v[{64+e}:{65+e}], v[{72+e}:{73+e}]")
    for e in range(0, 4, 2): a(f"v_pk_add_f32 v[{64+e}:{65+e}], v[{64+e}:{65+e}], v[{68+e}:{69+e}]")
    a("v_pk_add_f32 v[64:65], v[64:65], v[66:67]\nv_add_f32 v64, v64, v65")
    a("v_mov_b32 v65, v64\ns_nop 1\nv_permlane32_swap_b32 v64, v65\nv_add_f32 v64, v64, v65")
    a("ds_write_b32 v48, v64 offset:512")
    for n in range(cfg.pv_pre): tread(n)
    a(f"s_waitcnt lgkmcnt({2*cfg.pv_pre})")
    a("s_barrier")
    ts(7)
    a(f"s_waitcnt lgkmcnt({min(2*cfg.pv_pre, 5)})")
    a("ds_read2_b32 v[4:5], v49 offset0:128 offset1:160")
    a("ds_read2_b32 v[6:7], v49 offset0:192 offset1:224")
    for k in range(8):
        a(f"ds_read_b128 v[{64+4*k}:{67+4*k}], v51 offset:{1024*k}")
    a("s_waitcnt lgkmcnt(8)")
    a("v_add_f32 v4, v4, v5\nv_add_f32 v6, v6, v7\nv_add_f32 v57, v4, v6")
    def mlstore():
        a("s_mov_b32 exec_hi, 0")
        a("buffer_store_dwordx4 v[56:59], v54, s[8:11], s46 offen sc1")
        a("s_mov_b64 exec, -1")
    if cfg.ml_at == 0: mlstore()
    for n in range(cfg.pv_pre, 16):
        a("s_waitcnt lgkmcnt(12)")
        tread(n)
    if cfg.ml_at == 1: mlstore()
    ts(15)
    a("s_waitcnt lgkmcnt(0)")
    a(".LA_pv:")
    ts(13)
    for n in range(16):
        k, j = n >> 1, n & 1
        if j == 0: a(f"s_waitcnt lgkmcnt({7-k})")
        acc = 160 + 16 * j
        a(f"v_mfma_f32_32x32x16_bf16 v[{acc}:{acc+15}], v[{64+4*k}:{67+4*k}], v[{96+4*n}:{99+4*n}], {'0' if k == 0 else f'v[{acc}:{acc+15}]'}")
    a("s_setprio 0")
    if cfg.ml_at == 2:
        a("s_cmp_gt_u32 s3, 3")
        a("s_cbranch_scc1 .LA_noml")
        mlstore()
        a(".LA_noml:")
    ts(14)
    def epiA(pr):
        t = 192 + 2 * pr; r = 2 * pr
        a(f"v_cvt_pk_bf16_f32 v{t}, v{160+r}, v{176+r}")
        a(f"v_cvt_pk_bf16_f32 v{t+1}, v{161+r}, v{177+r}")
        a(f"v_bfi_b32 v{t}, s56, v53, v{t}")
        a(f"v_bfi_b32 v{t+1}, s56, v53, v{t+1}")
    def epiB(pr):
        t = 192 + 2 * pr
        a(f"v_permlane16_swap_b32 v{t}, v{t+1}")
        if not cfg.nostore: a(f"buffer_store_dwordx2 v[{t}:{t+1}], v{36 + (pr & 3)}, s[8:11], s{48+pr} offen {cfg.ost}")
    a("s_nop 10" if not cfg.ts else "s_nop 9")
    epiA(0)
    for pr in range(8):
        if pr < 7: epiA(pr + 1)
        else: a("s_nop 1")
        epiB(pr)
    ts(8)
    if cfg.ml_at >= 3:
        a("s_cmp_gt_u32 s3, 3")
        a("s_cbranch_scc1 .LA_noml")
        if cfg.ml_at == 4: a("s_waitcnt vmcnt(0)")
        mlstore()
        a(".LA_noml:")
    if cfg.ts and cfg.drts:
        a("s_waitcnt vmcnt(0)")
        ts(9)
    a("s_cmp_lt_u32 s3, 4")
    a("s_cbranch_scc1 .LA_zq")
    a("s_cmp_ge_u32 s43, 85")
    a("s_cbranch_scc1 .LH_F2")
    a("s_cmp_ge_u32 s43, 32")
    a("s_cbranch_scc1 .LA_exit")
    a("s_cmp_lg_u32 s3, 4")
    a("s_cbranch_scc1 .LA_exit")
    zprolog()
    a(f"s_lshl_b32 s46, s43, 7\ns_add_u32 s46, s46, {WS_F}")
    for k in range(4): a(f"v_mov_b32 v{52+k}, 0")
    for m in (50, 52, 54, 56, 58): a(f"s_mov_b64 s[{m}:{m+1}], -1")
    a("s_mov_b64 s[60:61], 0xffffff")
    zgather(6, "s46", ".LZ_f", [50, 52, 54, 56, 58, 60])
    for i in range(1, 6):
        for k in range(4): a(f"v_add_f32 v{32+k}, v{32+k}, v{32+4*i+k}")
    a("s_nop 0")
    zreduce()
    a("v_cvt_pk_bf16_f32 v32, v32, v33\nv_cvt_pk_bf16_f32 v34, v34, v35")
    a("v_lshlrev_b32 v24, 16, v32\nv_and_b32 v25, 0xffff0000, v32\nv_lshlrev_b32 v26, 16, v34\nv_and_b32 v27, 0xffff0000, v34")
    for k in range(4): a(f"v_mul_f32 v{32+k}, {hex(f2u(-LOG2E))}, v{24+k}")
    for k in range(4): a(f"v_exp_f32 v{32+k}, v{32+k}")
    a("s_nop 0")
    for k in range(4): a(f"v_add_f32 v{32+k}, 1.0, v{32+k}")
    for k in range(4): a(f"v_rcp_f32 v{32+k}, v{32+k}")
    a("s_nop 0")
    for k in range(4): a(f"v_mul_f32 v{24+k}, v{24+k}, v{32+k}")
    a("v_cvt_pk_bf16_f32 v32, v24, v25\nv_cvt_pk_bf16_f32 v34, v26, v27")
    a("v_lshlrev_b32 v24, 16, v32\nv_and_b32 v25, 0xffff0000, v32\nv_lshlrev_b32 v26, 16, v34\nv_and_b32 v27, 0xffff0000, v34")
    a(f"v_lshlrev_b32 v15, 4, v3\nv_add_u32 v15, {QR+12288}, v15")
    a("s_mov_b64 exec, 0xff")
    a("ds_write_b128 v15, v[24:27]")
    a("s_waitcnt lgkmcnt(0)")
    ts(6)
    a("s_branch .LA_exit")
    a(".LH_F2:")
    a("v_lshrrev_b32 v7, 3, v0\nv_lshlrev_b32 v7, 9, v7\nv_and_b32 v10, 7, v0\nv_lshl_add_u32 v7, v10, 4, v7")
    a(f"s_lshr_b32 s44, s62, 2\ns_lshl_b32 s44, s44, 15\ns_and_b32 s45, s62, 3\ns_lshl_b32 s45, s45, 7\ns_add_u32 s44, s44, s45\ns_add_u32 s44, s44, {WS_G}")
    def gloads():
        a("s_mov_b32 s45, s44")
        for i in range(8):
            a(f"buffer_load_dwordx4 v[{32+4*i}:{35+4*i}], v7, s[8:11], s45 offen sc1")
            if i < 7: a("s_add_u32 s45, s45, 4096")
    gloads()
    fconsts(11)
    ftags(11, 28, 27, 26)
    utags(11, 12)
    a("s_movk_i32 s100, 0xff")
    a("v_lshlrev_b32 v16, 5, v25\nv_lshl_add_u32 v16, v2, 3, v16\nv_add_u32 v17, 4, v16")
    a("v_lshrrev_b32 v26, 1, v2\nv_lshl_add_u32 v6, v26, 11, v27")
    a(f"s_lshl_b32 s61, s62, 12\ns_lshl_b32 s45, s47, 9\ns_add_u32 s61, s61, s45\ns_add_u32 s61, s61, {WS_F}")
    a("s_waitcnt vmcnt(16)")
    transpose8(208, 128)
    budget()
    a(".LF_gp:")
    a("s_waitcnt vmcnt(0)")
    for i in range(8):
        for k in range(4):
            if i == 0 and k == 0: a("v_xor_b32 v18, v32, v12")
            else: a(f"v_bitop3_b32 v18, v18, v{32+4*i+k}, v{12+k} bitop3:0xf6")
    a("v_and_b32 v18, 0xff, v18")
    a("v_cmp_ne_u32 vcc, 0, v18")
    a("s_cbranch_vccz .LF_g2")
    spend(".LF_g2")
    a("s_sleep 2")
    gloads()
    a("s_branch .LF_gp")
    a(".LF_g2:")
    for i in range(8):
        if i & 3:
            for k in range(4): a(f"v_add_f32 v{32+16*(i>>2)+k}, v{32+16*(i>>2)+k}, v{32+4*i+k}")
    for sw in ("v_permlane16_swap_b32", "v_permlane32_swap_b32"):
        for k in range(4): a(f"v_mov_b32 v{36+k}, v{32+k}\nv_mov_b32 v{52+k}, v{48+k}")
        a("s_nop 0")
        for k in range(4): a(f"{sw} v{32+k}, v{36+k}\n{sw} v{48+k}, v{52+k}")
        for k in range(4): a(f"v_add_f32 v{32+k}, v{32+k}, v{36+k}\nv_add_f32 v{48+k}, v{48+k}, v{52+k}")
    for k in range(4): a(f"v_cvt_pk_bf16_f32 v{32+k}, v{32+k}, v{48+k}")
    for k in range(4): a(f"v_and_b32 v{48+k}, 0xffff0000, v{32+k}\nv_lshlrev_b32 v{32+k}, 16, v{32+k}")
    for k in range(4): a(f"v_mul_f32 v{36+k}, {hex(f2u(-LOG2E))}, v{32+k}")
    for k in range(4): a(f"v_exp_f32 v{36+k}, v{36+k}")
    a("s_nop 0")
    for k in range(4): a(f"v_add_f32 v{36+k}, 1.0, v{36+k}")
    for k in range(4): a(f"v_rcp_f32 v{36+k}, v{36+k}")
    a("s_nop 0")
    for k in range(4): a(f"v_mul_f32 v{32+k}, v{32+k}, v{36+k}")
    a("v_cvt_pk_bf16_f32 v32, v32, v33\nv_cvt_pk_bf16_f32 v34, v34, v35")
    a("v_and_b32 v33, 0xffff0000, v32\nv_lshlrev_b32 v32, 16, v32\nv_and_b32 v35, 0xffff0000, v34\nv_lshlrev_b32 v34, 16, v34")
    for k in range(4): a(f"v_mul_f32 v{32+k}, v{32+k}, v{48+k}")
    a("v_cvt_pk_bf16_f32 v32, v32, v33\nv_cvt_pk_bf16_f32 v33, v34, v35")
    a("ds_bpermute_b32 v20, v16, v32\nds_bpermute_b32 v21, v16, v33\nds_bpermute_b32 v22, v17, v32\nds_bpermute_b32 v23, v17, v33")
    a("s_waitcnt lgkmcnt(0)")
    gemv_out(20, 128, 6, 61, 28)
    ts(6)
    a("s_branch .LA_exit")
    a(".LA_zq:")
    a("s_cmp_ge_u32 s43, 32")
    a("s_cbranch_scc1 .LA_exit")
    a("s_cmp_lg_u32 s3, 0")
    a("s_cbranch_scc1 .LA_exit")
    zprolog()
    a("s_lshl_b32 s45, s43, 6")
    a("v_lshlrev_b32 v14, 3, v3")
    a("buffer_load_dwordx2 v[16:17], v14, s[4:7], s45 offen")
    a(f"s_bfe_u32 s46, s43, 0x20002\ns_lshl_b32 s46, s46, 10\ns_lshr_b32 s48, s43, 4\ns_lshl_b32 s48, s48, 9\ns_add_u32 s46, s46, s48")
    a(f"s_and_b32 s48, s43, 3\ns_lshl_b32 s48, s48, 7\ns_add_u32 s46, s46, s48\ns_add_u32 s46, s46, {WS_S}")
    a(f"v_lshlrev_b32 v15, 4, v3\nv_add_u32 v15, {QR+12288}, v15")
    a("s_mov_b64 s[50:51], -1\ns_mov_b64 s[52:53], -1\ns_mov_b64 s[54:55], -1\ns_mov_b64 s[56:57], -1")
    a("s_waitcnt vmcnt(0)")
    a("v_lshlrev_b32 v28, 16, v16\nv_and_b32 v29, 0xffff0000, v16\nv_lshlrev_b32 v30, 16, v17\nv_and_b32 v31, 0xffff0000, v17")
    zgather(4, "s46", ".LZ_s", [50, 52, 54, 56])
    ts(10)
    a("s_barrier")
    a("ds_read_b128 v[24:27], v15")
    for k in range(4): a(f"v_add_f32 v{32+k}, v{32+k}, v{36+k}\nv_add_f32 v{40+k}, v{40+k}, v{44+k}")
    for k in range(4): a(f"v_add_f32 v{32+k}, v{32+k}, v{40+k}")
    zreduce()
    a("v_cvt_pk_bf16_f32 v32, v32, v33\nv_cvt_pk_bf16_f32 v34, v34, v35")
    a("v_and_b32 v33, 0xffff0000, v32\nv_lshlrev_b32 v32, 16, v32\nv_and_b32 v35, 0xffff0000, v34\nv_lshlrev_b32 v34, 16, v34")
    a("s_waitcnt lgkmcnt(0)")
    for k in range(4): a(f"v_mul_f32 v{32+k}, v{32+k}, v{24+k}")
    a("v_cvt_pk_bf16_f32 v32, v32, v33\nv_cvt_pk_bf16_f32 v34, v34, v35")
    a("v_and_b32 v33, 0xffff0000, v32\nv_lshlrev_b32 v32, 16, v32\nv_and_b32 v35, 0xffff0000, v34\nv_lshlrev_b32 v34, 16, v34")
    for k in range(4): a(f"v_add_f32 v{32+k}, v{32+k}, v{28+k}")
    a("v_cvt_pk_bf16_f32 v32, v32, v33\nv_cvt_pk_bf16_f32 v33, v34, v35")
    a("s_mov_b64 exec, 0xff")
    a(f"buffer_store_dwordx2 v[32:33], v14, s[32:35], s45 offen {cfg.outst}")
    if cfg.dbgt:
        a("s_memrealtime s[48:49]")
        a("s_waitcnt lgkmcnt(0)")
        a("v_mov_b32 v10, s48")
        a("s_lshl_b32 s45, s43, 2")
        a("s_mov_b64 exec, 1")
        a("buffer_store_dword v10, v9, s[12:15], s45 offen offset:8")
        if cfg.amp:
            a("buffer_load_dword v10, v9, s[12:15], 0 offen offset:4 sc1")
            a("s_waitcnt vmcnt(0)")
            a("v_readfirstlane_b32 s50, v10")
            a("s_sub_u32 s51, s48, s50")
            a("s_min_u32 s51, s51, 10000")
            a(f"s_mul_i32 s51, s51, {cfg.amp}")
            a("s_add_u32 s51, s51, s48")
            a(".LZ_amp:")
            a("s_memrealtime s[48:49]")
            a("s_waitcnt lgkmcnt(0)")
            a("s_sub_u32 s52, s48, s51")
            a("s_cmp_lt_i32 s52, 0")
            a("s_cbranch_scc1 .LZ_amp")
    ts(11)
    a(".LA_exit:")
    ts_flush()
    a(".L_end:")
    a("s_endpgm")
    for i, lab in enumerate(stubs, 1):
        a(f".Lstub{i}:")
        a("s_mov_b64 s[94:95], exec\ns_mov_b64 exec, 1")
        a(f"s_lshl_b32 s93, s2, 8\ns_or_b32 s93, s93, s3\ns_or_b32 s93, s93, 0x10000\nv_mov_b32 v255, s93\nv_mov_b32 v254, {160 + 4*i}")
        a("buffer_store_dword v255, v254, s[12:15], 0 offen sc1")
        a("s_mov_b64 exec, s[94:95]")
        a(f"s_branch {lab}")
    if cfg.dbgspin: print("stubs", list(enumerate(stubs, 1)))
    a(".L_codeend:")
    body = a.text()
    return assemble([(K, 256, 512, 163840)], [(K, body, 256, 102, 256, "")]), body

if __name__ == "__main__":
    import argparse
    ap = argparse.ArgumentParser()
    ap.add_argument("-o", default="k.s")
    ap.add_argument("--set", action="append", default=[])
    args = ap.parse_args()
    for s in args.set:
        k, v = s.split("=")
        setattr(Cfg, k, eval(v))
    txt, body = gen(Cfg)
    open(args.o, "w").write(txt)
    for p in hazard.check(txt): print("HAZARD", p)
```

```python
import sys
from asmlib import *
import hazard

WS_H1 = 0x000000
WS_H4 = 0x020000
WS_SLOW = 0x040000
WS_Q  = 0x080000
WS_QF = 0x0A0000
WS_GO = 0x0B0000
WS_ML = 0x100000
WS_S  = 0x200000
WS_F  = 0x300000
WS_G  = 0x380000
WS_O  = 0x400000
WS_TS = 0x1000000
WS_SIZE = 268435456
LOG2E = 1.4426950408889634
QSCALE = LOG2E * 128 ** -0.5
import struct
def f2u(x): return struct.unpack("<I", struct.pack("<f", x))[0]

class Cfg:
    ts = False
    npre = 2
    go_cnt = 8
    cwin = 12
    nsamp = 7
    samp_sleep = 3
    prefetch = True
    poll_sleep = 1
    nt = "nt"
    nt_wo = ""
    spin = 4000000
    dbgt = False
    amp = 0
    wuk_wait = 3
    fast_tries = 30
    slow_now = True
    tlbw = 0
    ns_cnt = 6
    h4ts = False
    f1_on = 'W'
    ml_pos = 4
    use_go = True
    pf_pre = False
    q_wait = 1
    xts = None
    probe = None
    skip1 = 3
    w_pf = 0
    w_pf_nt = ''
    q8 = False
    qhint = False
    cpre = False
    qs_row = 16
    qc_row = 26
    q_thr = 0
    outst = ''
    corder = 'row'
    oswz = False
    olay = 'c'
    sc_first = False
    pay_sleep = 0
    drts = False
    x_sleep = 1
    late_slow = False
    go_wave = 4
    ml_at = 0
    uv_early = False
    sc_pre = True
    dbgspin = False
    ml_sleep = 2
    hf1_pre = True
    f1_early = False
    go_skip = True
    f1_rot = 64
    a_pf = 0
    a_pf_nt = ''
    f1_first = True
    fld = 'sc1'
    nowarm = False
    wld = 'sc1'
    fst = ''
    f1_gate = 0
    pf_nt = ''
    pf_cus = 16
    f1_delay = False
    nostore = False
    ost = 'sc1'
    nof1 = False
    h1ts = False
    a_nsleep = 20
    go_sleep = 4
    pre_rows = 1
    pf_wave = 1
    nt_wq = ''
    wq_wait = None
    nt_wuk = 'nt'
    pf_cnt = 6
    pf_delay = True
    wq_first = 1
    cwin1 = 4
    n1 = 8
    wo_wait = None
    nchain = 1
    q_row = 32
    q_ext = 0
    go_row = 14
    nonce_row = 4
    ml_early = 16
    pf = False
    z_pre = 32
    wo_bar = True
    go_group = True
    pv_pre = 0
    hprio = 2

def gen(cfg=Cfg):
    a = Asm()
    K = NAME + "_kernel"
    NT = cfg.nt
    tsn = [0]
    cur = ["W"]
    def ts(idx):
        if cfg.ts:
            a(f"s_memrealtime s[{64+2*idx}:{65+2*idx}]")
        elif cfg.probe and cfg.probe[1] == idx and (cfg.probe[0] == "W") == (cur[0] == "W"):
            a("s_memrealtime s[64:65]")
    def ts_flush(nmax=16):
        if cfg.probe and (cfg.probe[0] == "W") == (cur[0] == "W"):
            lab = f".Lprobe{cur[0]}"
            if cfg.probe[0] == "C": a(f"s_cmp_gt_u32 s3, 3\ns_cbranch_scc1 {lab}_e")
            if cfg.probe[0] == "H": a(f"s_cmp_lt_u32 s3, 4\ns_cbranch_scc1 {lab}_e")
            a("s_waitcnt lgkmcnt(0)")
            a(f"s_cmp_eq_u32 s64, 0\ns_cbranch_scc1 {lab}_e")
            a("s_mov_b64 exec, 1\nv_mov_b32 v9, 0")
            a("buffer_load_dword v10, v9, s[12:15], 0 offen offset:132 sc1")
            a("s_waitcnt vmcnt(0)")
            a("v_readfirstlane_b32 s66, v10")
            a("s_sub_u32 s67, s64, s66\ns_min_i32 s67, s67, 3000")
            a(f"s_mul_i32 s67, s67, {cfg.probe[2]}\ns_add_u32 s67, s67, s66\ns_add_u32 s67, s67, 2500")
            a(f"{lab}_l:\ns_sleep 2\ns_memrealtime s[68:69]\ns_waitcnt lgkmcnt(0)\ns_sub_u32 s70, s68, s67\ns_cmp_lt_i32 s70, 0\ns_cbranch_scc1 {lab}_l")
            a(f"{lab}_e:")
        if not cfg.ts: return
        a("s_waitcnt lgkmcnt(0)")
        a("s_lshl_b32 s44, s2, 3\ns_add_u32 s44, s44, s3\ns_lshl_b32 s44, s44, 6")
        a(f"s_add_u32 s44, s44, {WS_TS}")
        a("s_mov_b64 exec, 1")
        a("v_mov_b32 v1, 0")
        for q in range(4):
            for k in range(4):
                a(f"v_mov_b32 v{4+k}, s{64+2*(4*q+k)}")
            a(f"buffer_store_dwordx4 v[4:7], v1, s[8:11], s44 offen offset:{16*q}")
            a("s_nop 1")
        a("s_waitcnt vmcnt(0)")
    def srd(base, size):
        a(f"s_mov_b32 s{base+2}, {size}\ns_mov_b32 s{base+3}, 0x20000")
    def allreduce16(v, t, op):
        for r in (8, 4, 2, 1):
            a("s_nop 1")
            a(f"{op}_dpp v{v}, v{v}, v{v} row_ror:{r} row_mask:0xf bank_mask:0xf")
        for sw in ("v_permlane16_swap_b32", "v_permlane32_swap_b32"):
            a(f"v_mov_b32 v{t}, v{v}")
            a("s_nop 1")
            a(f"{sw} v{v}, v{t}")
            a(f"{op} v{v}, v{v}, v{t}")
    def allreduce2(v, w, t, u, op):
        for r in (8, 4, 2, 1):
            a("s_nop 0")
            a(f"{op}_dpp v{v}, v{v}, v{v} row_ror:{r} row_mask:0xf bank_mask:0xf")
            a(f"{op}_dpp v{w}, v{w}, v{w} row_ror:{r} row_mask:0xf bank_mask:0xf")
        for sw in ("v_permlane16_swap_b32", "v_permlane32_swap_b32"):
            a(f"v_mov_b32 v{t}, v{v}\nv_mov_b32 v{u}, v{w}\ns_nop 0")
            a(f"{sw} v{v}, v{t}\n{sw} v{w}, v{u}")
            a(f"{op} v{v}, v{v}, v{t}\n{op} v{w}, v{w}, v{u}")
    def quador(v):
        for qp in ("[1,0,3,2]", "[2,3,0,1]"):
            a("s_nop 1")
            a(f"v_or_b32_dpp v{v}, v{v}, v{v} quad_perm:{qp} row_mask:0xf bank_mask:0xf")
    def halfreduce(v, t):
        for r in (8, 4, 2, 1):
            a("s_nop 1")
            a(f"v_add_f32_dpp v{v}, v{v}, v{v} row_ror:{r} row_mask:0xf bank_mask:0xf")
        a(f"v_mov_b32 v{t}, v{v}\ns_nop 1\nv_permlane16_swap_b32 v{v}, v{t}\nv_add_f32 v{v}, v{v}, v{t}")
    def ln_stats(vx, vt):
        m, t, q, u = vt + 16, vt + 17, vt + 18, vt + 19
        for i in range(8):
            a(f"v_lshlrev_b32 v{vt+2*i}, 16, v{vx+i}")
            a(f"v_and_b32 v{vt+1+2*i}, 0xffff0000, v{vx+i}")
        a(f"v_add_f32 v{m}, v{vt}, v{vt+1}\nv_add_f32 v{t}, v{vt+2}, v{vt+3}")
        for i in range(4, 16, 2): a(f"v_add_f32 v{m}, v{m}, v{vt+i}\nv_add_f32 v{t}, v{t}, v{vt+i+1}")
        a(f"v_add_f32 v{m}, v{m}, v{t}")
        halfreduce(m, t)
        a(f"v_mul_f32 v{m}, {hex(f2u(1/512))}, v{m}")
        a(f"v_sub_f32 v{t}, v{vt}, v{m}\nv_sub_f32 v{u}, v{vt+1}, v{m}\nv_mul_f32 v{q}, v{t}, v{t}\nv_fmac_f32 v{q}, v{u}, v{u}")
        for i in range(2, 16, 2): a(f"v_sub_f32 v{t}, v{vt+i}, v{m}\nv_sub_f32 v{u}, v{vt+i+1}, v{m}\nv_fmac_f32 v{q}, v{t}, v{t}\nv_fmac_f32 v{q}, v{u}, v{u}")
        halfreduce(q, t)
        a(f"v_mul_f32 v{q}, {hex(f2u(1/512))}, v{q}")
        a(f"v_cvt_pk_bf16_f32 v{m}, v{m}, v{q}")
        a(f"v_mov_b32 v{t}, v{m}\ns_nop 1\nv_permlane32_swap_b32 v{m}, v{t}")
        a(f"v_cndmask_b32 v{m}, v{m}, v{t}, s[58:59]")
        a(f"v_and_b32 v{q}, 0xffff0000, v{m}\nv_lshlrev_b32 v{m}, 16, v{m}")
        a(f"v_add_f32 v{q}, {hex(f2u(1e-5))}, v{q}")
        a(f"v_cvt_pk_bf16_f32 v{q}, v{q}, v{q}\nv_and_b32 v{q}, 0xffff0000, v{q}\nv_sqrt_f32 v{q}, v{q}\ns_nop 0")
        a(f"v_cvt_pk_bf16_f32 v{q}, v{q}, v{q}\nv_and_b32 v{q}, 0xffff0000, v{q}\nv_rcp_f32 v{q}, v{q}")
    def ln_apply(vf, vt):
        m, q = vt + 16, vt + 18
        for i in range(4):
            a(f"v_lshlrev_b32 v{vt+2*i}, 16, v{vf+i}")
            a(f"v_and_b32 v{vt+1+2*i}, 0xffff0000, v{vf+i}")
        for i in range(8): a(f"v_sub_f32 v{vt+i}, v{vt+i}, v{m}")
        for i in range(4): a(f"v_cvt_pk_bf16_f32 v{vf+i}, v{vt+2*i}, v{vt+1+2*i}")
        for i in range(4):
            a(f"v_lshlrev_b32 v{vt+2*i}, 16, v{vf+i}")
            a(f"v_and_b32 v{vt+1+2*i}, 0xffff0000, v{vf+i}")
        for i in range(8): a(f"v_mul_f32 v{vt+i}, v{vt+i}, v{q}")
        for i in range(4): a(f"v_cvt_pk_bf16_f32 v{vf+i}, v{vt+2*i}, v{vt+1+2*i}")
    def layernorm(vx, vo, vt):
        f = [vt + i for i in range(8)]
        s_, t, u = vt + 8, vt + 9, vt + 10
        for i in range(4):
            a(f"v_lshlrev_b32 v{f[2*i]}, 16, v{vx+i}")
            a(f"v_and_b32 v{f[2*i+1]}, 0xffff0000, v{vx+i}")
        a(f"v_add_f32 v{s_}, v{f[0]}, v{f[1]}\nv_add_f32 v{t}, v{f[2]}, v{f[3]}\nv_add_f32 v{u}, v{f[4]}, v{f[5]}")
        a(f"v_add_f32 v{s_}, v{s_}, v{f[6]}\nv_add_f32 v{t}, v{t}, v{f[7]}\nv_add_f32 v{s_}, v{s_}, v{u}\nv_add_f32 v{s_}, v{s_}, v{t}")
        allreduce16(s_, t, "v_add_f32")
        a(f"v_mul_f32 v{s_}, {hex(f2u(1/512))}, v{s_}")
        m2 = vt + 11
        a(f"v_sub_f32 v{t}, v{f[0]}, v{s_}\nv_mul_f32 v{m2}, v{t}, v{t}")
        for i in range(1, 8):
            a(f"v_sub_f32 v{t}, v{f[i]}, v{s_}\nv_fmac_f32 v{m2}, v{t}, v{t}")
        allreduce16(m2, t, "v_add_f32")
        a(f"v_mul_f32 v{m2}, {hex(f2u(1/512))}, v{m2}")
        a(f"v_cvt_pk_bf16_f32 v{t}, v{s_}, v{m2}")
        a(f"v_lshlrev_b32 v{s_}, 16, v{t}\nv_and_b32 v{m2}, 0xffff0000, v{t}")
        a(f"v_add_f32 v{m2}, {hex(f2u(1e-5))}, v{m2}")
        a(f"v_cvt_pk_bf16_f32 v{m2}, v{m2}, v{m2}\nv_and_b32 v{m2}, 0xffff0000, v{m2}\nv_sqrt_f32 v{m2}, v{m2}")
        for i in range(8): a(f"v_sub_f32 v{f[i]}, v{f[i]}, v{s_}")
        a(f"v_cvt_pk_bf16_f32 v{m2}, v{m2}, v{m2}\nv_and_b32 v{m2}, 0xffff0000, v{m2}\nv_rcp_f32 v{m2}, v{m2}")
        for i in range(4): a(f"v_cvt_pk_bf16_f32 v{vo+i}, v{f[2*i]}, v{f[2*i+1]}")
        for i in range(4):
            a(f"v_lshlrev_b32 v{f[2*i]}, 16, v{vo+i}\nv_and_b32 v{f[2*i+1]}, 0xffff0000, v{vo+i}")
        for i in range(8): a(f"v_mul_f32 v{f[i]}, v{f[i]}, v{m2}")
        for i in range(4): a(f"v_cvt_pk_bf16_f32 v{vo+i}, v{f[2*i]}, v{f[2*i+1]}")
    FS = [52, 54, 56]
    def fconsts(vN):
        a(f"s_mov_b32 s{FS[0]}, 0x05040100\ns_mov_b32 s{FS[0]+1}, 0x07060302")
        a(f"s_mov_b32 s{FS[1]}, 0xffff0000\ns_mov_b32 s{FS[1]+1}, 0xffff0000")
        a(f"s_mov_b32 s{FS[2]}, 0\ns_mov_b32 s{FS[2]+1}, -1")
    def transpose8(src, dst):
        for j in range(8):
            for e in range(4):
                a(f"v_perm_b32 v{dst+4*j+e}, v{src+4*(2*e+1)+(j>>1)}, v{src+4*(2*e)+(j>>1)}, s{FS[0]+(j&1)}")
    def gemv_out(afrag, wfrag, voff, soff, tag, acc=32, out=64):
        for j in range(8):
            a(f"v_mfma_f32_16x16x32_bf16 v[{acc+4*j}:{acc+3+4*j}], v[{afrag}:{afrag+3}], v[{wfrag+4*j}:{wfrag+3+4*j}], 0")
        a("s_nop 4")
        for k in range(4):
            a(f"v_cndmask_b32 v{out+k}, v{acc+4*k}, v{acc+4*(4+k)}, s[{FS[1]}:{FS[1]+1}]")
        for k in range(4):
            a(f"v_cndmask_b32 v{out+4+k}, v{acc+1+4*k}, v{acc+1+4*(4+k)}, s[{FS[1]}:{FS[1]+1}]")
        for k in range(4):
            a(f"v_cndmask_b32 v{out+k}, v{out+k}, v{out+4+k}, s[{FS[2]}:{FS[2]+1}]")
        for k in range(4):
            a(f"v_bfi_b32 v{out+k}, s100, v{tag+k}, v{out+k}")
        a(f"buffer_store_dwordx4 v[{out}:{out+3}], v{voff}, s[8:11], s{soff} offen sc1")
    def utags(vN, tag):
        if tag != vN: a(f"v_mov_b32 v{tag}, v{vN}")
        a(f"v_lshrrev_b32 v{tag+1}, 8, v{vN}\nv_lshrrev_b32 v{tag+2}, 16, v{vN}\nv_lshrrev_b32 v{tag+3}, 24, v{vN}")
    def ftags(vN, tag, voff, t):
        a(f"v_and_b32 v{t}, 1, v2\nv_lshlrev_b32 v{voff}, 5, v3\nv_lshl_add_u32 v{voff}, v{t}, 4, v{voff}")
        utags(vN, tag)
    def psleep():
        if cfg.poll_sleep: a(f"s_sleep {cfg.poll_sleep}")
    def budget():
        a(f"s_mov_b32 s96, {cfg.spin}")
    stubs = []
    def spend(exit_label):
        a("s_sub_u32 s96, s96, 1")
        if cfg.dbgspin:
            stubs.append(exit_label)
            a(f"s_cbranch_scc1 .Lstub{len(stubs)}")
        else:
            a(f"s_cbranch_scc1 {exit_label}")

    if cfg.ts:
        for i in range(1, 16): a(f"s_mov_b32 s{64+2*i}, 0")
    ts(0)
    if cfg.probe: a("s_mov_b32 s64, 0")
    a("s_cmp_ge_u32 s2, 128")
    a("s_cbranch_scc1 .L_A")
    XN = 0x20000; XNS = 1088
    QV = 0; QS = 1024; SC = 2048; XX = 2560; YY = 3200
    a("s_load_dwordx2 s[12:13], s[0:1], 88")
    a("s_memrealtime s[48:49]")
    a("s_load_dwordx2 s[16:17], s[0:1], 16")
    a("s_load_dwordx2 s[4:5], s[0:1], 0")
    a("s_load_dwordx2 s[20:21], s[0:1], 24")
    a("s_load_dwordx2 s[8:9], s[0:1], 96")
    a("v_lshrrev_b32 v1, 6, v0")
    a("v_and_b32 v0, 63, v0")
    a("v_readfirstlane_b32 s3, v1")
    a("s_and_b32 s41, s2, 7\ns_lshl_b32 s41, s41, 2\ns_lshr_b32 s43, s2, 5\ns_add_u32 s41, s41, s43")
    a("s_bfe_u32 s42, s2, 0x20003")
    srd(16, 4194304); srd(4, 2048); srd(12, 256); srd(20, 4194304); srd(8, WS_SIZE)
    a("v_lshrrev_b32 v2, 4, v0")
    a("v_and_b32 v3, 15, v0")
    a("v_lshlrev_b32 v4, 1, v2")
    a("v_xor_b32 v4, v3, v4")
    a("v_lshlrev_b32 v4, 4, v4")
    a("v_lshl_add_u32 v5, v2, 13, v4")
    a("v_xor_b32 v6, 0x80, v5")
    a("s_lshl_b32 s44, s42, 20\ns_lshl_b32 s43, s3, 17\ns_add_u32 s44, s44, s43\ns_lshl_b32 s45, s41, 8\ns_add_u32 s44, s44, s45")
    a("s_lshl_b32 s46, s3, 12")
    a("v_lshlrev_b32 v8, 4, v0")
    a("v_mov_b32 v9, 0")
    a("s_lshl_b32 s47, s3, 10")
    a("s_mov_b32 m0, s46")
    a("s_or_b32 s45, s2, s3")
    a("s_cmp_lg_u32 s45, 0")
    a("s_waitcnt lgkmcnt(0)")
    ts(1)
    a("s_cbranch_scc1 .LW_nogen")
    if cfg.dbgt or cfg.probe:
        a("v_mov_b32 v12, s48")
        a(f"buffer_store_dword v12, v9, s[12:15], 0 offen offset:{132 if cfg.probe else 4} sc1")
    a("s_mul_i32 s48, s48, 0x9E3779B1")
    a("s_lshr_b32 s49, s48, 15\ns_xor_b32 s48, s48, s49")
    a("s_mul_i32 s48, s48, 0x85EBCA6B")
    a("s_lshr_b32 s49, s48, 13\ns_xor_b32 s48, s48, s49")
    a("s_max_u32 s48, s48, 1")
    a("v_mov_b32 v12, s48")
    a("v_lshlrev_b32 v13, 7, v0")
    a("s_mov_b64 exec, 3")
    a("buffer_store_dword v12, v13, s[12:15], 0 offen sc1")
    a("s_mov_b64 exec, -1")
    a(".LW_nogen:")
    a("s_lshl_b32 s49, s41, 12")
    a("s_cmp_gt_u32 s3, 1")
    a("s_cbranch_scc1 .LW_nox")
    a("buffer_load_dwordx4 v[12:15], v8, s[4:7], s47 offen")
    a(".LW_nox:")
    a("s_mov_b32 s45, s44")
    for i in range(4):
        if i: a("s_add_u32 m0, m0, 1024\ns_add_u32 s45, s45, 32768")
        a(f"buffer_load_dwordx4 v{5 if i < 2 else 6}, s[16:19], s45 offen {NT} lds")
    a("s_cmp_lg_u32 s3, 2")
    a("s_cbranch_scc1 .LW_nowarm")
    a(f"s_lshl_b32 s45, s42, 10\ns_add_u32 s45, s45, s49")
    if WS_H1: a(f"s_add_u32 s45, s45, {WS_H1}")
    a("buffer_load_dwordx4 v[12:15], v8, s[8:11], s45 offen sc1")
    a(".LW_nowarm:")
    a("v_xor_b32 v7, v3, v2\nv_lshlrev_b32 v7, 4, v7\nv_lshl_add_u32 v7, v2, 13, v7")
    a("s_add_u32 m0, s46, 0x8000")
    a("s_mov_b32 s45, s44")
    for i in range(4):
        if i: a(f"v_xor_b32 v10, {64*i}, v7\ns_add_u32 m0, m0, 1024\ns_add_u32 s45, s45, 32768")
        a(f"buffer_load_dwordx4 v{10 if i else 7}, s[20:23], s45 offen {NT} lds")
    ts(2)
    a("s_load_dwordx2 s[24:25], s[0:1], 32")
    a("s_load_dwordx2 s[28:29], s[0:1], 40")
    a("s_load_dwordx4 s[36:39], s[0:1], 56")
    if cfg.w_pf:
        a("s_load_dwordx2 s[16:17], s[0:1], 8")
        a("s_mov_b32 s18, 16777216")
    srd(24, 4194304); srd(28, 4194304)
    a("v_and_b32 v25, 1, v0")
    a("s_cmp_gt_u32 s3, 1")
    a("s_cbranch_scc1 .LW_noln")
    a("s_waitcnt vmcnt(8)")
    layernorm(12, 16, 40)
    a(f"s_mul_i32 s45, s3, {XNS}\ns_add_u32 s45, s45, {XN}")
    a("v_add_u32 v10, s45, v8")
    a("ds_write_b128 v10, v[16:19]")
    a(".LW_noln:")
    a(f"s_sub_u32 s97, s2, {cfg.f1_rot}\ns_and_b32 s97, s97, 127")
    a("s_cmp_lt_u32 s97, 88\ns_cselect_b32 s62, s3, 4\ns_lshr_b32 s62, s62, 2\ns_xor_b32 s62, s62, 1")
    if cfg.nof1 or cfg.f1_on != "W": a("s_mov_b32 s62, 0")
    a("s_and_b32 s63, s2, 7\ns_lshl_b32 s63, s63, 1\ns_bfe_u32 s45, s3, 0x10001\ns_add_u32 s63, s63, s45")
    a(f"v_mul_u32_u24 v26, {XNS}, v25\nv_lshl_add_u32 v26, v2, 4, v26")
    a(f"s_lshl_b32 s45, s63, 6\ns_add_u32 s45, s45, {XN}\nv_add_u32 v23, s45, v26")
    a(f"s_lshl_b32 s45, s42, 8\ns_add_u32 s45, s45, {XN}\nv_add_u32 v24, s45, v26")
    a("v_lshrrev_b32 v20, 2, v3\nv_and_b32 v21, 1, v2\nv_lshlrev_b32 v21, 3, v21\nv_lshl_add_u32 v21, v20, 1, v21")
    a("v_bfe_u32 v22, v0, 1, 1\ns_lshl_b32 s45, s3, 1\nv_add_u32 v22, s45, v22\nv_xor_b32 v22, v22, v21\nv_lshlrev_b32 v22, 4, v22")
    a("v_lshl_add_u32 v20, v2, 3, v20\nv_lshl_add_u32 v22, v20, 8, v22\nv_lshl_add_u32 v11, v25, 3, v22")
    a("v_lshlrev_b32 v16, 9, v25\nv_lshl_add_u32 v16, v2, 4, v16")
    a("s_lshl_b32 s51, s42, 10\ns_lshl_b32 s45, s3, 6\ns_add_u32 s51, s51, s45\ns_add_u32 s51, s51, s49")
    a("s_lshl_b32 s50, s41, 2\ns_add_u32 s50, s50, s42")
    a("v_mul_u32_u24 v26, 272, v25\nv_lshl_add_u32 v26, v2, 4, v26")
    a("v_lshrrev_b32 v21, 3, v0\nv_lshlrev_b32 v1, 10, v21\nv_cmp_ne_u32 s[98:99], s42, v21\nv_bfe_u32 v21, v0, 2, 1\nv_lshl_add_u32 v1, v21, 9, v1\nv_and_b32 v22, 3, v0\nv_lshl_add_u32 v1, v22, 4, v1")
    a("s_mov_b32 s99, 0")
    a("v_lshl_add_u32 v29, v22, 4, v21\nv_lshlrev_b32 v29, 2, v29")
    a("v_mul_u32_u24 v21, 272, v21\nv_lshl_add_u32 v22, v22, 3, v21\ns_lshl_b32 s45, s3, 5\nv_add_u32 v22, s45, v22")
    a("s_lshl_b32 s57, s3, 6\ns_add_u32 s57, s57, s49")
    a("v_xor_b32 v21, v2, v3\nv_lshlrev_b32 v21, 4, v21\nv_lshl_add_u32 v21, v3, 8, v21\nv_add_u32 v21, s46, v21")
    a(f"s_waitcnt vmcnt({cfg.ns_cnt})")
    a("s_load_dword s40, s[12:13], 0")
    a("s_waitcnt vmcnt(4) lgkmcnt(0)")
    budget()
    a(".LW_nchk:")
    a("s_cmp_lg_u32 s40, 0")
    a("s_cbranch_scc1 .LW_ngot")
    spend(".LW_ngot")
    a("buffer_load_dword v27, v9, s[12:15], 0 offen offset:128 sc1")
    a("s_waitcnt vmcnt(0)")
    a("v_readfirstlane_b32 s40, v27")
    a("s_branch .LW_nchk")
    a(".LW_ngot:")
    a("v_mov_b32 v27, s40")
    ts(4)
    a("s_barrier")
    ts(5)
    for s in range(4):
        a(f"ds_read_b128 v[{32+4*s}:{35+4*s}], v24 offset:{64*s}")
        a(f"ds_read_b64_tr_b16 v[{48+4*s}:{49+4*s}], v11 offset:{(32*s)*256}")
        a(f"ds_read_b64_tr_b16 v[{50+4*s}:{51+4*s}], v11 offset:{(32*s+4)*256}")
    a("ds_read_b128 v[128:131], v23")
    a("v_add_u32 v23, 0x10000, v22\nv_add_u32 v24, 0x10000, v26")
    utags(27, 17)
    a("s_getreg_b32 s101, hwreg(HW_REG_XCC_ID, 0, 4)\ns_add_u32 s101, s101, 1")
    for k in range(4): a(f"v_xor_b32 v{200+k}, s101, v{17+k}")
    a("s_movk_i32 s100, 0xff")
    a("v_and_b32 v28, 3, v0\nv_lshlrev_b32 v28, 3, v28\nv_lshrrev_b32 v28, v28, v27")
    a("s_waitcnt lgkmcnt(10)")
    a("v_mfma_f32_16x16x32_bf16 v[192:195], v[48:51], v[32:35], 0")
    a("s_waitcnt lgkmcnt(7)")
    a("v_mfma_f32_16x16x32_bf16 v[196:199], v[52:55], v[36:39], 0")
    a("s_waitcnt lgkmcnt(4)")
    a("v_mfma_f32_16x16x32_bf16 v[192:195], v[56:59], v[40:43], v[192:195]")
    a("s_waitcnt lgkmcnt(1)")
    a("v_mfma_f32_16x16x32_bf16 v[196:199], v[60:63], v[44:47], v[196:199]")
    def f1loads():
        a("s_cmp_eq_u32 s62, 0")
        a("s_cbranch_scc1 .LW_nof1")
        a("s_bitcmp1_b32 s3, 0")
        a("s_cselect_b32 s32, s38, s36\ns_cselect_b32 s33, s39, s37")
        srd(32, 1409024)
        a("v_mul_u32_u24 v46, 22016, v2\nv_lshl_add_u32 v46, v3, 4, v46")
        a(f"s_mul_i32 s48, s63, {32*2752}\ns_lshr_b32 s44, s97, 3\ns_lshl_b32 s44, s44, 8\ns_add_u32 s48, s48, s44")
        for i in range(8):
            a(f"buffer_load_dwordx4 v[{132+4*i}:{135+4*i}], v46, s[32:35], s48 offen {NT}")
            if i < 7: a("s_add_u32 s48, s48, 2752")
        a(".LW_nof1:")
    def exchange(acc, acc2, area, lab, dst, wreg=22, hook=None):
        a(f"s_add_u32 s45, s51, {area}" if area else "s_mov_b32 s45, s51")
        a(f"s_add_u32 s47, s57, {area}" if area else "s_mov_b32 s47, s57")
        budget()
        for k in range(4): a(f"v_mov_b32 v{204+k}, v{200+k}")
        a("s_nop 0")
        for k in range(4): a(f"v_add_f32 v{acc+k}, v{acc+k}, v{acc2+k}")
        a("s_mov_b32 exec_lo, 0x00030003\ns_mov_b32 exec_hi, 0x00030003")
        for k in range(4): a(f"v_bfi_b32 v{acc2+k}, s100, v{200+k}, v{acc+k}")
        a(f"buffer_store_dwordx4 v[{acc2}:{acc2+3}], v16, s[8:11], s45 offen {cfg.fst}")
        a("s_mov_b64 exec, -1")
        if cfg.xts == lab: ts(1)
        if hook: hook()
        for k in range(4): a(f"ds_bpermute_b32 v{40+k}, v29, v{acc+k}")
        a("s_mov_b64 exec, s[98:99]")
        a(f"{lab}_p:")
        a(f"buffer_load_dwordx4 v[32:35], v1, s[8:11], s47 offen {cfg.fld}")
        a("s_waitcnt vmcnt(0)")
        a("v_xor_b32 v36, v32, v204")
        for k in range(1, 4): a(f"v_bitop3_b32 v36, v36, v{32+k}, v{204+k} bitop3:0xf6")
        a("v_and_b32 v36, 0xff, v36")
        a("v_cmp_ne_u32 vcc, 0, v36")
        a(f"s_cbranch_vccz {lab}_g")
        spend(f"{lab}_g")
        if cfg.x_sleep: a(f"s_sleep {cfg.x_sleep}")
        a(f"s_cmp_gt_u32 s96, {cfg.spin - cfg.fast_tries}")
        a(f"s_cbranch_scc1 {lab}_p")
        a(f"s_xor_b32 s47, s47, {WS_SLOW}")
        for k in range(4): a(f"v_xor_b32 v{204+k}, s101, v{204+k}")
        a(f"s_cmp_lg_u32 s96, {cfg.spin - cfg.fast_tries}")
        a(f"s_cbranch_scc1 {lab}_p")
        slow_copy(acc, acc2, area)
        a("s_mov_b64 exec, s[98:99]")
        a(f"s_branch {lab}_p")
        a(f"{lab}_g:")
        a("s_mov_b64 exec, -1")
        if cfg.xts == lab and cfg.ts:
            ts(2)
            a(f"s_sub_u32 s72, {cfg.spin}, s96\ns_mul_i32 s72, s72, 100\ns_add_u32 s72, s72, s64\ns_add_u32 s72, s72, 100")
        a("s_waitcnt lgkmcnt(0)")
        for k in range(4): a(f"v_cndmask_b32 v{32+k}, v{40+k}, v{32+k}, s[98:99]")
        for k in range(4): a(f"v_add_f32_dpp v{32+k}, v{32+k}, v{32+k} row_ror:8 row_mask:0xf bank_mask:0xf")
        for k in range(4): a(f"v_mov_b32 v{36+k}, v{32+k}")
        for k in range(4): a(f"v_permlane16_swap_b32 v{32+k}, v{36+k}")
        for k in range(4): a(f"v_add_f32 v{32+k}, v{32+k}, v{36+k}")
        a("s_mov_b64 exec, 0xff")
        a("v_cvt_pk_bf16_f32 v32, v32, v33\nv_cvt_pk_bf16_f32 v33, v34, v35")
        a(f"ds_write_b64 v{wreg}, v[32:33] offset:{dst}")
        a("s_mov_b64 exec, -1")
    def slow_copy(acc, acc2, area):
        a(f"s_add_u32 s45, s51, {area + WS_SLOW}")
        a("s_mov_b32 exec_lo, 0x00030003\ns_mov_b32 exec_hi, 0x00030003")
        for k in range(4): a(f"v_bfi_b32 v{acc2+k}, s100, v{17+k}, v{acc+k}")
        a(f"buffer_store_dwordx4 v[{acc2}:{acc2+3}], v16, s[8:11], s45 offen sc1")
        a("s_mov_b64 exec, -1")
    exchange(192, 196, WS_H1, ".LW_h1", QV, 23, f1loads if cfg.f1_early == 2 else None)
    ts(6)
    for sq in range(4):
        if sq: a(f"v_xor_b32 v10, {64*sq}, v21")
        a(f"ds_read_b128 v[{48+4*sq}:{51+4*sq}], v{10 if sq else 21} offset:32768")
    a("s_and_b32 s45, s3, 1\ns_lshl_b32 s45, s45, 4")
    a("v_lshl_add_u32 v10, v2, 2, s45")
    a("v_lshrrev_b32 v10, v10, v27")
    for r in range(4):
        a(f"v_bfe_u32 v{72+r}, v10, {r}, 1\nv_lshlrev_b32 v{72+r}, 16, v{72+r}")
    for r in range(4): a(f"v_xor_b32 v{76+r}, 0x10000, v{72+r}")
    a("v_lshlrev_b32 v10, 8, v25\nv_lshl_add_u32 v10, v2, 3, v10\ns_lshl_b32 s45, s3, 5\nv_add_u32 v10, s45, v10")
    a(f"s_mov_b32 s47, {hex(f2u(QSCALE))}\ns_mov_b32 s53, 0xfffe0000\ns_mov_b32 s52, 0x07060302")
    a("s_waitcnt lgkmcnt(0)")
    a("s_barrier")
    for sq in range(4):
        a(f"ds_read_b128 v[{32+4*sq}:{35+4*sq}], v24 offset:{QV+64*sq}")
    a("s_waitcnt lgkmcnt(2)")
    a("v_mfma_f32_16x16x32_bf16 v[64:67], v[48:51], v[32:35], 0")
    a("v_mfma_f32_16x16x32_bf16 v[68:71], v[52:55], v[36:39], 0")
    a("s_waitcnt lgkmcnt(0)")
    a("v_mfma_f32_16x16x32_bf16 v[64:67], v[56:59], v[40:43], v[64:67]")
    a("v_mfma_f32_16x16x32_bf16 v[68:71], v[60:63], v[44:47], v[68:71]")
    a("s_mov_b32 exec_lo, 0x00030003\ns_mov_b32 exec_hi, 0x00030003")
    a("s_nop 5")
    for k in range(4): a(f"v_add_f32 v{64+k}, v{64+k}, v{68+k}")
    for k in range(4): a(f"v_mul_f32 v{64+k}, s47, v{64+k}")
    for k in range(4): a(f"v_add_u32 v{64+k}, v{64+k}, v{76+k}")
    for k in range(4): a(f"v_and_or_b32 v{64+k}, v{64+k}, s53, v{72+k}")
    a("v_perm_b32 v64, v65, v64, s52\nv_perm_b32 v65, v67, v66, s52")
    a(f"ds_write_b64 v10, v[64:65] offset:{QS}")
    a("s_mov_b64 exec, -1")
    a("s_waitcnt lgkmcnt(0)")
    def uvprep():
        a("v_and_b32 v12, 1, v2\nv_lshlrev_b32 v12, 5, v12\nv_lshrrev_b32 v13, 1, v2\nv_lshl_add_u32 v12, v13, 4, v12")
        a("v_lshl_add_u32 v12, v12, 13, v4\nv_xor_b32 v13, 0x80, v12")
        a("s_and_b32 s48, s3, 3")
        a("s_lshl_b32 s44, s42, 20\ns_lshl_b32 s45, s48, 15\ns_add_u32 s44, s44, s45\ns_lshl_b32 s45, s41, 8\ns_add_u32 s44, s44, s45")
    def uvload():
        for i in range(8):
            if i == 4: a(f"s_add_u32 m0, m0, {16384 - 3072}\ns_add_u32 s44, s44, {64*8192 - 3*8192}")
            elif i: a("s_add_u32 m0, m0, 1024\ns_add_u32 s44, s44, 8192")
            a(f"buffer_load_dwordx4 v{12 if (i & 3) < 2 else 13}, s[24:27], s44 offen {NT} lds")
    if cfg.uv_early: uvprep()
    a("s_barrier")
    a("s_cmp_lg_u32 s3, 4")
    a("s_cbranch_scc1 .LW_noq")
    a(f"ds_read_b128 v[32:35], v8 offset:{QS}")
    a("v_lshlrev_b32 v36, 15, v2\nv_lshl_add_u32 v36, v3, 4, v36")
    a(f"s_lshl_b32 s45, s41, 10\ns_lshl_b32 s47, s42, 8\ns_add_u32 s45, s45, s47\ns_add_u32 s45, s45, {WS_Q}")
    a("s_mov_b32 exec_hi, 0")
    a("s_waitcnt lgkmcnt(0)")
    a("buffer_store_dwordx4 v[32:35], v36, s[8:11], s45 offen sc1")
    if cfg.qhint:
        a(f"s_lshl_b32 s45, s50, 7\ns_add_u32 s45, s45, {WS_QF}\ns_mov_b64 exec, 1")
        a("buffer_store_dword v27, v9, s[8:11], s45 offen sc1")
    a("s_mov_b64 exec, -1")
    ts(7)
    a(".LW_noq:")
    if cfg.w_pf:
        a("s_cmp_gt_u32 s3, 3")
        a("s_cbranch_scc1 .LW_nocpf")
        a("s_bfe_u32 s45, s2, 0x10002\ns_lshl_b32 s45, s45, 6\ns_lshr_b32 s47, s2, 3\ns_lshl_b32 s47, s47, 2\ns_add_u32 s45, s45, s47\ns_and_b32 s47, s2, 3\ns_add_u32 s45, s45, s47")
        a(f"s_lshl_b32 s45, s45, 17\ns_lshl_b32 s47, s3, 15\ns_add_u32 s45, s45, s47\ns_add_u32 s45, s45, {31 * 1024}")
        for i in range(cfg.w_pf):
            a(f"buffer_load_dwordx4 v[{208+4*(i&7)}:{211+4*(i&7)}], v8, s[16:19], s45 offen {cfg.w_pf_nt}")
            if i < cfg.w_pf - 1: a("s_sub_u32 s45, s45, 1024")
        a(".LW_nocpf:")
    if cfg.uv_early:
        a("s_cmp_lt_u32 s3, 4")
        a("s_cbranch_scc1 .LW_nouv")
        a("s_lshl_b32 s45, s48, 12\ns_add_u32 m0, s45, 0x10000\ns_nop 0")
        uvload()
        a(".LW_nouv:")
    if cfg.use_go:
        a(f"s_cmp_lg_u32 s3, {cfg.go_wave}")
        a("s_cbranch_scc1 .LW_go")
        if cfg.go_skip:
            a("s_lshr_b32 s45, s2, 5\ns_cmp_eq_u32 s45, 1\ns_cbranch_scc1 .LW_go")
        a(f"s_lshl_b32 s45, s2, 7\ns_add_u32 s45, s45, {WS_GO}")
        a("s_mov_b64 exec, 1")
        budget()
        a(".LW_gop:")
        spend(".LW_gog")
        a("buffer_load_dword v37, v9, s[8:11], s45 offen sc1")
        a("s_waitcnt vmcnt(0)")
        a("v_readfirstlane_b32 s47, v37")
        a("s_cmp_eq_u32 s47, s40")
        a("s_cbranch_scc1 .LW_gog")
        a(f"s_sleep {cfg.go_sleep}")
        a("s_branch .LW_gop")
        a(".LW_gog:")
        a("s_mov_b64 exec, -1")
    a(".LW_go:")
    if cfg.tlbw:
        a(f"s_cmp_lg_u32 s3, 5")
        a("s_cbranch_scc1 .LW_notlb")
        a("s_waitcnt lgkmcnt(0)")
        a(f"v_lshlrev_b32 v44, {cfg.tlbw}, v0")
        n = (1 << 20) >> cfg.tlbw
        a(f"s_mov_b64 exec, {(1 << min(n, 32)) - 1}" if n < 64 else "s_nop 0")
        a("s_lshl_b32 s45, s42, 20")
        a("buffer_load_dword v45, v44, s[24:27], s45 offen")
        a("s_mov_b32 s32, s36\ns_mov_b32 s33, s37")
        srd(32, 1409024)
        a("s_and_b32 s45, s2, 7\ns_mul_i32 s45, s45, 176128")
        a(f"s_mov_b64 exec, {(1 << max(1, min(n // 4, 32))) - 1}")
        a("buffer_load_dword v45, v44, s[32:35], s45 offen")
        a("s_mov_b32 s32, s38\ns_mov_b32 s33, s39")
        a("buffer_load_dword v45, v44, s[32:35], s45 offen")
        a("s_lshl_b32 s45, s41, 17")
        a(f"s_mov_b64 exec, {(1 << max(1, min(n // 8, 32))) - 1}")
        a("buffer_load_dword v45, v44, s[28:31], s45 offen")
        a("s_mov_b64 exec, 1")
        a(f"s_lshl_b32 s45, s41, 17\ns_add_u32 s45, s45, {WS_O}")
        a("buffer_load_dword v45, v9, s[8:11], s45 offen offset:0")
        a(f"s_mov_b32 s45, {WS_S + 0x40000}")
        a("buffer_load_dword v45, v9, s[8:11], s45 offen")
        a(f"s_mov_b32 s45, {WS_ML + 0x40000}")
        a("buffer_load_dword v45, v9, s[8:11], s45 offen")
        a("s_mov_b64 exec, -1")
        a(".LW_notlb:")
    def f1proc(skip):
        a("s_cmp_eq_u32 s62, 0")
        a(f"s_cbranch_scc1 {skip}")
        fconsts(27)
        ftags(27, 40, 44, 45)
        a("v_lshrrev_b32 v45, 1, v2\nv_lshl_add_u32 v44, v45, 9, v44")
        a(f"s_lshr_b32 s61, s97, 3\ns_lshl_b32 s61, s61, 15\ns_and_b32 s45, s3, 1\ns_lshl_b32 s45, s45, 14\ns_add_u32 s61, s61, s45\ns_lshl_b32 s45, s63, 10\ns_add_u32 s61, s61, s45\ns_add_u32 s61, s61, {WS_G}")
        a("s_waitcnt vmcnt(0)")
        transpose8(132, 164)
        a("s_nop 0")
        gemv_out(128, 164, 44, 61, 40, acc=64, out=96)
        ts(13)
        a("s_lshl_b32 s57, s3, 6\ns_add_u32 s57, s57, s49")
    if cfg.f1_early == 1: f1loads()
    if cfg.f1_early == 2:
        f1proc(".LW_nof3")
        a(".LW_nof3:")
    if not cfg.uv_early: uvprep()
    a("v_lshl_add_u32 v14, v2, 10, v4\nv_xor_b32 v15, 0x80, v14")
    a("s_lshl_b32 s43, s41, 17\ns_lshl_b32 s45, s48, 14\ns_add_u32 s43, s43, s45\ns_lshl_b32 s45, s42, 8\ns_add_u32 s43, s43, s45")
    a("s_lshl_b32 s48, s48, 12\ns_add_u32 m0, s48, 0x10000")
    a("s_barrier")
    ts(8)
    if cfg.late_slow: slow_copy(192, 196, WS_H1)
    a("s_cmp_lt_u32 s3, 4")
    a("s_cbranch_scc1 .LW_f1")
    if not cfg.uv_early: uvload()
    a("s_add_u32 m0, s48, 0x18000")
    for i in range(8):
        if i == 4: a(f"s_add_u32 m0, m0, {16384 - 3072}\ns_add_u32 s43, s43, {65536 - 3*4096}")
        elif i: a("s_add_u32 m0, m0, 1024\ns_add_u32 s43, s43, 4096")
        else: a("s_nop 0")
        a(f"buffer_load_dwordx4 v{14 if (i & 3) < 2 else 15}, s[28:31], s43 offen {NT} lds")
    a("s_cmp_lg_u32 s3, 6")
    a("s_cbranch_scc1 .LW_nowarm2")
    a(f"s_lshl_b32 s45, s42, 10\ns_add_u32 s45, s45, s49\ns_add_u32 s45, s45, {WS_H4}")
    a(f"buffer_load_dwordx4 v[32:35], v8, s[8:11], s45 offen sc1")
    a(".LW_nowarm2:")
    a("s_waitcnt vmcnt(0)")
    a("s_branch .LW_nof2")
    a(".LW_f1:")
    if cfg.f1_on == "W":
        if not cfg.f1_early: f1loads()
        if cfg.f1_early != 2: f1proc(".LW_nof2")
    a(".LW_nof2:")
    a("v_lshl_add_u32 v12, v2, 8, v4")
    a("s_add_u32 s45, s46, 0x20000\nv_add_u32 v14, s45, v12\nv_xor_b32 v15, 0x80, v14")
    if cfg.olay == "c":
        a(f"s_lshl_b32 s44, s50, 15\ns_add_u32 s44, s44, s46\ns_add_u32 s44, s44, {WS_O}")
        a("s_mov_b32 s32, s44\ns_mov_b32 s33, s44\ns_mov_b32 s34, s44")
    else:
        a("v_lshl_add_u32 v12, v2, 15, v4")
        a(f"s_lshl_b32 s44, s50, 8\ns_lshl_b32 s32, s3, 19\ns_add_u32 s44, s44, s32\ns_add_u32 s44, s44, {WS_O}")
        a(f"s_add_u32 s32, s44, {131072 - 1024}\ns_add_u32 s33, s44, {2*(131072 - 1024)}\ns_add_u32 s34, s44, {3*(131072 - 1024)}")
    a("v_xor_b32 v13, 0x80, v12")
    a("s_mov_b32 s46, s45")
    for k in range(4):
        a(f"v_bfe_u32 v10, v28, {2*k}, 1\nv_bfe_u32 v21, v28, {2*k+1}, 1\nv_lshl_or_b32 v{40+k}, v21, 16, v10")
    a("v_mul_u32_u24 v21, 272, v25\nv_lshl_add_u32 v21, v2, 3, v21\ns_lshl_b32 s45, s3, 5\nv_add_u32 v21, s45, v21")
    a("v_lshlrev_b32 v23, 4, v2")
    a("v_add_u32 v10, 0x10000, v11\nv_add_u32 v11, 0x20000, v11")
    a("s_mov_b32 s52, 0xaaaaaaaa\ns_mov_b32 s53, 0xaaaaaaaa")
    ts(9)
    a("s_barrier")
    for s in range(4):
        a(f"ds_read_b64_tr_b16 v[{96+4*s}:{97+4*s}], v10 offset:{(32*s)*256}")
        a(f"ds_read_b64_tr_b16 v[{98+4*s}:{99+4*s}], v10 offset:{(32*s+4)*256}")
    a("s_waitcnt lgkmcnt(4)")
    for s in range(4):
        a(f"ds_read_b64_tr_b16 v[{112+4*s}:{113+4*s}], v10 offset:{32768+(32*s)*256}")
        a(f"ds_read_b64_tr_b16 v[{114+4*s}:{115+4*s}], v10 offset:{32768+(32*s+4)*256}")
    a("s_cmp_lg_u32 s3, 0")
    a("s_cbranch_scc1 .LW_mlw")
    a("v_lshlrev_b32 v24, 11, v0")
    a(f"s_lshl_b32 s45, s42, 9\ns_lshl_b32 s47, s41, 4\ns_add_u32 s45, s45, s47\ns_add_u32 s45, s45, {WS_ML}\ns_add_u32 s47, s45, {64*2048}")
    budget()
    a("s_and_b32 s48, s2, 63")
    a("s_lshl_b64 exec, 1, s48")
    a(".LW_ml1:")
    spend(".LW_ml2")
    psleep()
    a("buffer_load_dwordx4 v[32:35], v24, s[8:11], s45 offen sc1")
    a("s_waitcnt vmcnt(0)")
    a("v_cmp_ne_u32 vcc, s40, v34")
    a("s_cbranch_vccnz .LW_ml1")
    a(".LW_ml2:")
    ts(3)
    budget()
    a("s_mov_b64 s[58:59], -1\ns_mov_b64 s[60:61], -1")
    a(".LW_mlp:")
    spend(".LW_mlx")
    a("s_mov_b64 exec, s[58:59]")
    a("s_cbranch_execz .LW_mls0")
    a("buffer_load_dwordx4 v[32:35], v24, s[8:11], s45 offen sc1")
    a(".LW_mls0:")
    a("s_mov_b64 exec, s[60:61]")
    a("s_cbranch_execz .LW_mls1")
    a("buffer_load_dwordx4 v[36:39], v24, s[8:11], s47 offen sc1")
    a(".LW_mls1:")
    a("s_mov_b64 exec, -1")
    a("s_waitcnt vmcnt(0)")
    a("v_cmp_ne_u32 s[58:59], s40, v34")
    a("v_cmp_ne_u32 s[60:61], s40, v38")
    a("s_or_b64 vcc, s[58:59], s[60:61]")
    a("s_cbranch_vccnz .LW_mlp")
    a(".LW_mlx:")
    a("s_mov_b64 exec, -1")
    def scales():
        a("v_mov_b32 v48, v32\nv_mov_b32 v49, v36")
        allreduce2(48, 49, 50, 51, "v_max_f32")
        a("v_sub_f32 v48, v32, v48\nv_sub_f32 v49, v36, v49")
        a("v_exp_f32 v48, v48\nv_exp_f32 v49, v49")
        if cfg.oswz: a("s_and_b32 s45, s50, 63\nv_xor_b32 v50, s45, v0\nv_lshlrev_b32 v50, 1, v50")
        else: a("v_lshlrev_b32 v50, 1, v0")
        a("v_mul_f32 v52, v48, v33\nv_mul_f32 v53, v49, v37")
        allreduce2(52, 53, 54, 55, "v_add_f32")
        a("v_rcp_f32 v52, v52\nv_rcp_f32 v53, v53")
        a("s_nop 0")
        a("v_mul_f32 v48, v48, v52\nv_mul_f32 v49, v49, v53")
        a("v_cvt_pk_bf16_f32 v48, v48, v49")
        a(f"ds_write_b16 v50, v48 offset:{SC}")
        a(f"ds_write_b16_d16_hi v50, v48 offset:{SC+128}")
    def paydma():
        a("s_mov_b32 m0, s46")
        for i in range(4):
            if i == 0: a("s_nop 0")
            a(f"buffer_load_dwordx4 v{12 if i < 2 else 13}, s[8:11], s{(44, 32, 33, 34)[i]} offen offset:{1024*i} sc1 lds")
    if cfg.sc_first:
        scales()
        a("s_waitcnt lgkmcnt(0)")
        a(".LW_mlw:")
        a("s_barrier")
        ts(10)
        paydma()
        for s_ in range(4): a(f"ds_read_b128 v[{48+4*s_}:{51+4*s_}], v23 offset:{SC+64*s_}")
    else:
        a(".LW_mlw:")
        a("s_barrier")
        ts(10)
        paydma()
        a("s_cmp_lg_u32 s3, 0")
        a("s_cbranch_scc1 .LW_scw")
        scales()
        a(".LW_scw:")
        if cfg.sc_pre:
            a("s_waitcnt lgkmcnt(0)")
            a("s_barrier")
            for s_ in range(4): a(f"ds_read_b128 v[{48+4*s_}:{51+4*s_}], v23 offset:{SC+64*s_}")
    budget()
    a(".LW_pv:")
    a("s_waitcnt vmcnt(0)")
    for i in range(4):
        a(f"ds_read_b128 v[{64+4*i}:{67+4*i}], v{14 if i < 2 else 15} offset:{1024*i}")
    for i in range(4):
        a(f"s_waitcnt lgkmcnt({3-i})")
        for k in range(4):
            a(f"v_xor_b32 v{44+i}, v{64+4*i}, v40" if k == 0 else f"v_bitop3_b32 v{44+i}, v{44+i}, v{64+4*i+k}, v{40+k} bitop3:0xf6")
    a("v_or3_b32 v39, v44, v45, v46\nv_or_b32 v39, v39, v47")
    a("v_and_b32 v39, 0x10001, v39")
    a("v_cmp_ne_u32 vcc, 0, v39")
    a("s_cbranch_vccz .LW_pk")
    spend(".LW_pk")
    if cfg.pay_sleep: a(f"s_sleep {cfg.pay_sleep}")
    for i in range(4):
        a(f"v_and_b32 v{44+i}, 0x10001, v{44+i}")
        a(f"v_cmp_ne_u32 vcc, 0, v{44+i}")
        a(f"s_cbranch_vccz .LW_pr{i}")
        a(f"buffer_load_dwordx4 v{12 if i < 2 else 13}, s[8:11], s{(44, 32, 33, 34)[i]} offen offset:{1024*i} sc1 lds")
        a(f".LW_pr{i}:")
    a("s_branch .LW_pv")
    a(".LW_pk:")
    ts(11)
    a("s_barrier")
    pre = cfg.sc_pre or cfg.sc_first
    for s in range(4):
        if not pre: a(f"ds_read_b128 v[{48+4*s}:{51+4*s}], v23 offset:{SC+64*s}")
        a(f"ds_read_b64_tr_b16 v[{64+4*s}:{65+4*s}], v11 offset:{(32*s)*256}")
        a(f"ds_read_b64_tr_b16 v[{66+4*s}:{67+4*s}], v11 offset:{(32*s+4)*256}")
    a(f"s_waitcnt lgkmcnt({6 if pre else 9})")
    a("v_mfma_f32_16x16x32_bf16 v[80:83], v[64:67], v[48:51], 0")
    a(f"s_waitcnt lgkmcnt({2 if pre else 3})")
    a("v_mfma_f32_16x16x32_bf16 v[84:87], v[72:75], v[56:59], 0")
    a("v_mfma_f32_16x16x32_bf16 v[80:83], v[68:71], v[52:55], v[80:83]")
    a("s_waitcnt lgkmcnt(0)")
    a("v_mfma_f32_16x16x32_bf16 v[84:87], v[76:79], v[60:63], v[84:87]")
    a("s_mov_b32 exec_lo, 0x00030003\ns_mov_b32 exec_hi, 0x00030003")
    a("s_nop 5")
    for k in range(4): a(f"v_cndmask_b32 v{80+k}, v{80+k}, v{84+k}, s[52:53]")
    a("v_cvt_pk_bf16_f32 v80, v80, v81\nv_cvt_pk_bf16_f32 v81, v82, v83")
    a(f"ds_write_b64 v21, v[80:81] offset:{XX}")
    a("s_mov_b64 exec, -1")
    a("s_waitcnt lgkmcnt(0)")
    a("s_barrier")
    ts(14)
    for s in range(4):
        a(f"ds_read_b128 v[{48+4*s}:{51+4*s}], v26 offset:{XX+64*s}")
    a("s_waitcnt lgkmcnt(2)")
    a("v_mfma_f32_16x16x32_bf16 v[80:83], v[96:99], v[48:51], 0")
    a("v_mfma_f32_16x16x32_bf16 v[84:87], v[100:103], v[52:55], 0")
    a("s_waitcnt lgkmcnt(0)")
    a("v_mfma_f32_16x16x32_bf16 v[80:83], v[104:107], v[56:59], v[80:83]")
    a("v_mfma_f32_16x16x32_bf16 v[84:87], v[108:111], v[60:63], v[84:87]")
    exchange(80, 84, WS_H4, ".LW_h4", YY)
    a("s_waitcnt lgkmcnt(0)")
    a(f"s_add_u32 s45, s51, {WS_S}")
    a("s_barrier")
    ts(15)
    for s in range(4):
        a(f"ds_read_b128 v[{48+4*s}:{51+4*s}], v26 offset:{YY+64*s}")
    a("s_waitcnt lgkmcnt(2)")
    a("v_mfma_f32_16x16x32_bf16 v[64:67], v[112:115], v[48:51], 0")
    a("v_mfma_f32_16x16x32_bf16 v[68:71], v[116:119], v[52:55], 0")
    a("s_waitcnt lgkmcnt(0)")
    a("v_mfma_f32_16x16x32_bf16 v[64:67], v[120:123], v[56:59], v[64:67]")
    a("v_mfma_f32_16x16x32_bf16 v[68:71], v[124:127], v[60:63], v[68:71]")
    a("s_mov_b32 exec_lo, 0x00030003\ns_mov_b32 exec_hi, 0x00030003")
    a("s_nop 5")
    for k in range(4): a(f"v_add_f32 v{64+k}, v{64+k}, v{68+k}")
    for k in range(4): a(f"v_bfi_b32 v{64+k}, s100, v{17+k}, v{64+k}")
    a("buffer_store_dwordx4 v[64:67], v16, s[8:11], s45 offen sc1")
    ts(12)
    if cfg.late_slow: slow_copy(80, 84, WS_H4)

    ts_flush()
    a("s_endpgm")

    QR = 131072
    MX = QR; LS = QR + 512; FLQ = QR + 1024; PX = QR + 2048
    FXN = QR + 16384; FG = FXN + 2304; FH = FG + 8192
    ZF, ZS = 0, 512
    def zprolog():
        a("v_and_b32 v3, 7, v0\nv_lshrrev_b32 v2, 3, v0")
        a("v_lshlrev_b32 v4, 12, v2\nv_lshl_add_u32 v4, v3, 4, v4")
        a("v_mov_b32 v10, s40")
        utags(10, 10)
    def zreduce():
        for k in range(4):
            a(f"v_add_f32_dpp v{32+k}, v{32+k}, v{32+k} row_ror:8 row_mask:0xf bank_mask:0xf")
        for sw in ("v_permlane16_swap_b32", "v_permlane32_swap_b32"):
            for k in range(4): a(f"v_mov_b32 v{36+k}, v{32+k}")
            a("s_nop 0")
            for k in range(4): a(f"{sw} v{32+k}, v{36+k}")
            for k in range(4): a(f"v_add_f32 v{32+k}, v{32+k}, v{36+k}")
    def zgather(n, sbase, lab, masks):
        budget()
        a(f"{lab}_1:")
        spend(f"{lab}_2")
        psleep()
        a(f"s_mov_b64 exec, s[{masks[0]}:{masks[0]+1}]")
        a(f"buffer_load_dwordx4 v[32:35], v4, s[8:11], {sbase} offen sc1")
        a("s_waitcnt vmcnt(0)")
        a("v_xor_b32 v20, v32, v10")
        for k in range(1, 4): a(f"v_bitop3_b32 v20, v20, v{32+k}, v{10+k} bitop3:0xf6")
        a("v_and_b32 v20, 0xff, v20")
        a(f"v_cmp_ne_u32 s[{masks[0]}:{masks[0]+1}], 0, v20")
        a(f"s_bcnt1_i32_b64 s48, s[{masks[0]}:{masks[0]+1}]")
        a(f"s_cmp_gt_u32 s48, {cfg.z_pre}")
        a(f"s_cbranch_scc1 {lab}_1")
        a(f"{lab}_2:")
        budget()
        a(f"{lab}_p:")
        spend(f"{lab}_ok")
        for i in range(n):
            a(f"s_mov_b64 exec, s[{masks[i]}:{masks[i]+1}]")
            a(f"s_cbranch_execz {lab}_s{i}")
            if i: a(f"s_add_u32 s48, {sbase}, {32768*i}")
            a(f"buffer_load_dwordx4 v[{32+4*i}:{35+4*i}], v4, s[8:11], {'s48' if i else sbase} offen sc1")
            a(f"{lab}_s{i}:")
        a("s_waitcnt vmcnt(0)")
        a("s_mov_b64 vcc, 0")
        a("s_mov_b64 exec, -1")
        for i in range(n):
            a(f"v_xor_b32 v{60+i}, v{32+4*i}, v10")
            for k in range(1, 4): a(f"v_bitop3_b32 v{60+i}, v{60+i}, v{32+4*i+k}, v{10+k} bitop3:0xf6")
        for i in range(n): a(f"v_and_b32 v{60+i}, 0xff, v{60+i}")
        for i in range(n):
            a(f"s_mov_b64 exec, s[{masks[i]}:{masks[i]+1}]")
            a(f"v_cmp_ne_u32 s[{masks[i]}:{masks[i]+1}], 0, v{60+i}")
            a(f"s_or_b64 vcc, vcc, s[{masks[i]}:{masks[i]+1}]")
        a(f"s_cbranch_vccnz {lab}_p")
        a(f"{lab}_ok:")
        a("s_mov_b64 exec, -1")
    cur[0] = "A"
    a(".L_A:")
    a("s_cmp_ge_u32 s2, 256")
    a("s_cbranch_scc1 .L_end")
    a("s_load_dwordx2 s[16:17], s[0:1], 8")
    a("s_load_dwordx2 s[4:5], s[0:1], 0")
    a("s_load_dwordx4 s[36:39], s[0:1], 56")
    a("s_load_dwordx2 s[12:13], s[0:1], 88")
    a("s_load_dwordx2 s[8:9], s[0:1], 96")
    a("s_load_dwordx2 s[28:29], s[0:1], 72")
    a("s_load_dwordx2 s[32:33], s[0:1], 80")
    a("v_lshrrev_b32 v1, 6, v0")
    a("v_and_b32 v0, 63, v0")
    a("v_readfirstlane_b32 s3, v1")
    a("s_sub_u32 s43, s2, 128")
    a("s_bfe_u32 s41, s43, 0x10002")
    a("s_lshr_b32 s42, s43, 3\ns_lshl_b32 s42, s42, 2\ns_and_b32 s44, s43, 3\ns_add_u32 s42, s42, s44")
    a("s_lshl_b32 s44, s41, 6\ns_add_u32 s42, s42, s44")
    srd(16, 16777216); srd(12, 256); srd(8, WS_SIZE); srd(4, 2048); srd(28, 1409024); srd(32, 2048)
    a("v_lshlrev_b32 v8, 4, v0")
    a("v_mov_b32 v9, 0")
    a("v_lshrrev_b32 v2, 4, v0\nv_and_b32 v3, 15, v0\nv_and_b32 v25, 1, v0")
    a("s_and_b32 s47, s3, 3")
    def pv_setup():
        a("v_lshrrev_b32 v7, 5, v0")
        a("v_bfe_u32 v4, v0, 2, 2")
        a("v_lshlrev_b32 v5, 10, v7\nv_lshl_add_u32 v5, v4, 8, v5\nv_lshl_add_u32 v5, v4, 6, v5")
        a("v_bfe_u32 v6, v0, 4, 1\nv_bfe_u32 v4, v0, 1, 1\nv_lshl_add_u32 v6, v6, 1, v4\nv_xor_b32 v6, v6, v7\nv_lshl_add_u32 v5, v6, 4, v5")
        a("v_lshl_add_u32 v5, v25, 3, v5")
        a("s_lshr_b32 s45, s3, 2\ns_lshl_b32 s45, s45, 7\nv_xor_b32 v5, s45, v5")
        a("s_lshl_b32 s44, s47, 15\nv_add_u32 v32, s44, v5")
        a("v_mov_b32 v54, 0")
        a("v_xor_b32 v33, 32, v32\nv_xor_b32 v34, 64, v32\nv_xor_b32 v35, 96, v32")
        a(f"v_add_u32 v51, {PX}, v8")
        hs = 17 if cfg.olay == "c" else 10
        a(f"v_bfe_u32 v4, v0, 4, 1\nv_lshl_add_u32 v5, v7, 2, v4\nv_lshlrev_b32 v36, {hs}, v5\nv_lshl_add_u32 v36, v3, 3, v36")
        if cfg.olay == "p":
            a("v_mov_b32 v37, v36\nv_mov_b32 v38, v36\nv_mov_b32 v39, v36")
            a(f"s_lshl_b32 s44, s47, 8\ns_add_u32 s44, s44, s45\ns_lshl_b32 s45, s42, 15\ns_add_u32 s44, s44, s45\ns_add_u32 s44, s44, {WS_O}")
        elif cfg.oswz:
            a("s_xor_b32 s57, s42, s47\nv_lshlrev_b32 v5, 2, v5\nv_xor_b32 v5, s57, v5\nv_lshl_add_u32 v36, v5, 8, v36")
            a("v_xor_b32 v37, 0x800, v36\nv_xor_b32 v38, 0x2000, v36\nv_xor_b32 v39, 0x2800, v36")
            a(f"s_add_u32 s44, s44, s45\ns_add_u32 s44, s44, {WS_O}")
        else:
            a("v_mov_b32 v37, v36\nv_mov_b32 v38, v36\nv_mov_b32 v39, v36")
            a(f"s_add_u32 s44, s44, s45\ns_lshl_b32 s45, s42, 8\ns_add_u32 s44, s44, s45\ns_add_u32 s44, s44, {WS_O}")
        for r in range(0, 16, 2):
            a(f"s_add_u32 s{48+r//2}, s44, {((r & 3) + 8 * (r >> 2)) << hs}")
        a("v_and_b32 v5, 7, v0\nv_lshl_add_u32 v4, v5, 1, v4\nv_lshlrev_b32 v4, 1, v4\nv_lshrrev_b32 v4, v4, v11\nv_and_b32 v5, 1, v4\nv_bfe_u32 v4, v4, 1, 1\nv_lshl_or_b32 v53, v4, 16, v5")
        a("s_mov_b32 s56, 0x00010001")
        if cfg.q8:
            a(f"s_lshl_b32 s60, s3, 12\ns_lshl_b32 s63, s41, 15\ns_add_u32 s63, s63, s60\ns_add_u32 s63, s63, {WS_Q}\ns_add_u32 s60, s60, {QR}")
            a("s_lshl_b32 s45, s47, 4\nv_xor_b32 v40, s45, v8\nv_add_u32 v41, s60, v40")
            a("v_and_b32 v4, 3, v0\nv_lshlrev_b32 v4, 3, v4\nv_lshrrev_b32 v4, v4, v11")
            for k in range(4):
                a(f"v_bfe_u32 v5, v4, {2*k}, 1\nv_bfe_u32 v6, v4, {2*k+1}, 1\nv_lshl_or_b32 v{42+k}, v6, 16, v5")
    def q8block(lab):
        a("s_mov_b32 m0, s60")
        budget()
        a("s_barrier")
        a(f"{lab}_l:")
        for i in range(4):
            if i: a(f"v_xor_b32 v10, {64*i}, v40")
            a(f"buffer_load_dwordx4 v{10 if i else 40}, s[8:11], s63 offen offset:{1024*i} sc1 lds")
        a("s_waitcnt vmcnt(0)")
        for i in range(4):
            if i: a(f"v_xor_b32 v10, {64*i}, v41")
            a(f"ds_read_b128 v[{64+4*i}:{67+4*i}], v{10 if i else 41} offset:{1024*i}")
        for i in range(4):
            a(f"s_waitcnt lgkmcnt({3-i})")
            for k in range(4):
                a("v_xor_b32 v46, v64, v42" if i == 0 and k == 0 else f"v_bitop3_b32 v46, v46, v{64+4*i+k}, v{42+k} bitop3:0xf6")
        a("v_and_b32 v46, s56, v46")
        a("v_cmp_ne_u32 vcc, 0, v46")
        a(f"s_cbranch_vccz {lab}_k")
        spend(f"{lab}_k")
        a(f"s_branch {lab}_l")
        a(f"{lab}_k:")
    def tread(n):
        k, j = n >> 1, n & 1
        off = (8 * (k >> 1) + 4 * (k & 1)) * 1024
        r = 96 + 4 * n
        a(f"ds_read_b64_tr_b16 v[{r}:{r+1}], v{32+2*j} offset:{off}")
        a(f"ds_read_b64_tr_b16 v[{r+2}:{r+3}], v{33+2*j} offset:{off+2048}")
    a("s_cmp_lt_u32 s3, 4")
    a("s_cbranch_scc1 .LA_comp")
    if cfg.pf:
        a("s_load_dwordx2 s[20:21], s[0:1], 24")
        srd(20, 4194304)
    a("s_lshl_b32 s46, s47, 13")
    a("s_lshl_b32 s44, s42, 17\ns_lshl_b32 s45, s47, 15\ns_add_u32 s44, s44, s45")
    a("v_lshlrev_b32 v4, 2, v2\nv_xor_b32 v4, v4, v3\nv_lshlrev_b32 v4, 4, v4\nv_lshl_add_u32 v4, v2, 10, v4")
    a("v_xor_b32 v5, 16, v4\nv_xor_b32 v6, 32, v4\nv_xor_b32 v7, 48, v4")
    a("s_mov_b32 m0, s46")
    a("s_waitcnt lgkmcnt(0)")
    ts(1)
    if cfg.pf:
        a("s_and_b32 s45, s43, 7\ns_lshl_b32 s45, s45, 2\ns_lshr_b32 s48, s43, 5\ns_add_u32 s45, s45, s48\ns_lshl_b32 s45, s45, 8")
        a("s_bfe_u32 s48, s43, 0x20003\ns_lshl_b32 s48, s48, 20\ns_add_u32 s45, s45, s48\ns_lshl_b32 s48, s47, 18\ns_add_u32 s45, s45, s48")
        a("v_lshlrev_b32 v10, 13, v2\nv_lshl_add_u32 v10, v3, 4, v10")
        a(f"s_add_u32 m0, s46, {QR}")
        if cfg.pf_pre: a("buffer_load_dword v12, v9, s[4:7], 0 offen\ns_waitcnt vmcnt(0)")
        else: a("s_nop 0")
        for i in range(8):
            a(f"buffer_load_dwordx4 v10, s[20:23], s45 offen {cfg.pf_nt} lds")
            if i < 7: a("s_add_u32 s45, s45, 32768")
        a("s_mov_b32 m0, s46")
    else:
        if cfg.f1_on == "H":
            a("v_lshlrev_b32 v26, 5, v0")
            a("buffer_load_dwordx4 v[12:15], v26, s[4:7], 0 offen")
            a("buffer_load_dwordx4 v[16:19], v26, s[4:7], 0 offen offset:16")
            a("s_and_b32 s97, s43, 7\ns_lshl_b32 s97, s97, 1\ns_lshr_b32 s45, s47, 1\ns_add_u32 s97, s97, s45")
            a("v_lshlrev_b32 v26, 10, v25\nv_lshl_add_u32 v26, v2, 4, v26\ns_lshl_b32 s45, s97, 6")
            a("buffer_load_dwordx4 v[20:23], v26, s[4:7], s45 offen")
        else:
            a("buffer_load_dword v12, v9, s[4:7], 0 offen")
    if cfg.corder == "col": pieces = [(rg, cq) for cq in range(4) for rg in range(8)]
    elif cfg.corder == "row": pieces = [(rg, cq) for rg in range(8) for cq in range(4)]
    else:
        k = cfg.skip1
        first = [(rg, cq) for rg in range(k) for cq in (0, 2, 3)]
        rest = [(rg, cq) for rg in range(k, 8) for cq in range(4)]
        late1 = [(rg, 1) for rg in range(k)]
        pieces = list(first)
        step = max(1, len(rest) // max(1, len(late1)))
        j = 0
        for n_, p_ in enumerate(rest):
            if n_ % step == 0 and j < len(late1): pieces.append(late1[j]); j += 1
            pieces.append(p_)
        pieces += late1[j:]
    assert sorted(pieces) == sorted((rg, cq) for rg in range(8) for cq in range(4))
    def crow(i):
        rg, cq = pieces[i]
        if i:
            prg, pcq = pieces[i - 1]
            dl = (cq - pcq) * 32768 + (rg - prg) * 1024; dg = (cq - pcq) * 256 + (rg - prg) * 4096
            a((f"s_add_u32 m0, m0, {dl}" if dl >= 0 else f"s_sub_u32 m0, m0, {-dl}") + "\n" + (f"s_add_u32 s44, s44, {dg}" if dg >= 0 else f"s_sub_u32 s44, s44, {-dg}"))
        a(f"buffer_load_dwordx4 v{4 + (rg & 3)}, s[16:19], s44 offen {NT} lds")
    a(f"s_add_u32 s60, s46, {QR}")
    a(f"s_lshl_b32 s63, s41, 15\ns_add_u32 s63, s63, s46\ns_add_u32 s63, s63, {WS_Q}")
    a("s_and_b32 s45, s47, 1\ns_lshl_b32 s45, s45, 5")
    a("v_xor_b32 v24, s45, v8")
    a("v_add_u32 v58, s60, v24")
    def qrows():
        a("s_mov_b32 s61, m0\ns_mov_b32 m0, s60\ns_mov_b32 s45, s63")
        for i in range(8):
            if i == 4: a("s_add_u32 m0, m0, 4096\ns_add_u32 s45, s45, 4096")
            a(f"v_xor_b32 v10, {16*(((i&3)<<2) | (i>>2))}, v24")
            a(f"buffer_load_dwordx4 v10, s[8:11], s45 offen offset:{1024*(i&3)} sc1 lds")
        a("s_mov_b32 m0, s61")
    if cfg.pf: a(f"s_waitcnt vmcnt({cfg.pf_cnt})")
    elif cfg.pf_delay: a("s_waitcnt vmcnt(0)")
    ts(2)
    issued = []
    def qdecide():
        a(f"s_waitcnt vmcnt({len(issued) - 1 - issued.index('f')})")
        a("s_mov_b32 s59, 0")
        a("v_cmp_ne_u32 vcc, s40, v13")
        a("s_bcnt1_i32_b32 s45, vcc_lo")
        a(f"s_cmp_gt_u32 s45, {cfg.q_thr}")
        a("s_cbranch_scc1 .LH_noearly")
        qrows()
        a("s_mov_b32 s59, 1")
        a(".LH_noearly:")
    for i in range(32):
        win = cfg.cwin1 if i < cfg.n1 else cfg.cwin
        if i == cfg.nonce_row:
            a("buffer_load_dword v11, v9, s[12:15], 0 offen offset:128 sc1"); issued.append("n")
        if i == cfg.go_row:
            k = len(issued) - 1 - issued.index("n")
            a(f"s_waitcnt vmcnt({min(k, 63)})")
            budget()
            a(".LH_nchk:")
            a("v_readfirstlane_b32 s40, v11")
            a("s_cmp_lg_u32 s40, 0")
            a("s_cbranch_scc1 .LH_ngot")
            spend(".LH_ngot")
            a("buffer_load_dword v11, v9, s[12:15], 0 offen offset:128 sc1")
            a("s_waitcnt vmcnt(0)")
            a("s_branch .LH_nchk")
            a(".LH_ngot:")
            if cfg.use_go:
                a(f"s_lshl_b32 s45, s43, 7\ns_add_u32 s45, s45, {WS_GO}")
                a("s_cmp_lg_u32 s3, 4")
                a("s_cbranch_scc1 .LH_nogo")
                a("s_mov_b64 exec, 1")
                a("buffer_store_dword v11, v9, s[8:11], s45 offen sc1")
                a("s_mov_b64 exec, -1")
                a(".LH_nogo:")
        if cfg.qhint and i == cfg.qs_row:
            a(f"v_and_b32 v13, 31, v0\nv_lshlrev_b32 v13, 7, v13\ns_lshl_b32 s45, s47, 12\ns_add_u32 s45, s45, {WS_QF}")
            a("buffer_load_dword v13, v13, s[8:11], s45 offen sc1"); issued.append("f")
        if cfg.qhint and i == cfg.qc_row: qdecide()
        if i == cfg.q_row:
            qrows(); issued += ["q"] * 8
        if win and i >= win: a(f"s_waitcnt vmcnt({win-1 + (8 if cfg.q_row <= i < cfg.q_row + cfg.q_ext else 0)})")
        crow(i); issued.append("c")
    if cfg.qhint and cfg.qc_row == 32: qdecide()
    if cfg.q_row >= 32 and not cfg.qhint and not cfg.q8:
        if cfg.q_wait is not None: a(f"s_waitcnt vmcnt({cfg.q_wait})")
        qrows(); issued += ["q"] * 8
    assert cfg.q_row >= 24
    ts(3)
    if cfg.f1_on == "H":
        a("s_mov_b32 s58, 0xaaaaaaaa\ns_mov_b32 s59, 0xaaaaaaaa")
        ln_stats(12, 32)
        ln_apply(20, 32)
        FS[:] = [100, 98, 22]
        fconsts(11)
        ftags(11, 28, 27, 26)
        a("v_lshrrev_b32 v26, 1, v2\nv_lshl_add_u32 v27, v26, 9, v27")
        a("s_bitcmp1_b32 s3, 0")
        a("s_cselect_b32 s24, s38, s36\ns_cselect_b32 s25, s39, s37")
        srd(24, 1409024)
        a("v_mul_u32_u24 v26, 22016, v2\nv_lshl_add_u32 v26, v3, 4, v26")
        a(f"s_mul_i32 s20, s97, {32*2752}\ns_lshr_b32 s45, s43, 3\ns_lshl_b32 s21, s45, 8\ns_add_u32 s20, s20, s21")
        a(f"s_lshl_b32 s21, s45, 15\ns_and_b32 s45, s47, 1\ns_lshl_b32 s45, s45, 14\ns_add_u32 s21, s21, s45\ns_lshl_b32 s45, s97, 10\ns_add_u32 s21, s21, s45\ns_add_u32 s21, s21, {WS_G}")
    pv_setup()
    a("v_and_b32 v10, 3, v0\nv_lshlrev_b32 v10, 3, v10\nv_lshrrev_b32 v12, v10, v11")
    for k in range(4):
        a(f"v_bfe_u32 v56, v12, {2*k}, 1\nv_bfe_u32 v57, v12, {2*k+1}, 1\nv_lshl_or_b32 v{60+k}, v57, 16, v56")
    a("v_lshlrev_b32 v5, 13, v2\nv_lshl_add_u32 v5, v3, 4, v5")
    a("s_sub_u32 s62, s43, 85\ns_lshl_b32 s46, s62, 15\ns_lshl_b32 s45, s47, 8\ns_add_u32 s46, s46, s45")
    if cfg.a_pf:
        a("s_load_dwordx2 s[24:25], s[0:1], 40")
        srd(24, 4194304)
        a("v_lshlrev_b32 v13, 10, v2\nv_lshl_add_u32 v13, v3, 4, v13")
        a("s_and_b32 s57, s43, 7\ns_lshl_b32 s57, s57, 2\ns_lshr_b32 s45, s43, 5\ns_add_u32 s57, s57, s45\ns_lshl_b32 s57, s57, 17")
        a(f"s_bfe_u32 s45, s43, 0x20003\ns_lshl_b32 s45, s45, 8\ns_add_u32 s57, s57, s45\ns_lshl_b32 s45, s47, 15\ns_add_u32 s57, s57, s45\ns_add_u32 s57, s57, {(8 - cfg.a_pf) * 4096}")
        a("s_waitcnt lgkmcnt(0)")
    def qcheck():
        for i in range(8):
            a(f"v_xor_b32 v10, {16*(((i&3)<<2) | (i>>2))}, v58")
            a(f"ds_read_b128 v[{64+4*i}:{67+4*i}], v10 offset:{1024*i}")
        for i in range(8):
            a(f"s_waitcnt lgkmcnt({7-i})")
            for k in range(4):
                a("v_xor_b32 v56, v64, v60" if i == 0 and k == 0 else f"v_bitop3_b32 v56, v56, v{64+4*i+k}, v{60+k} bitop3:0xf6")
        a("v_and_b32 v56, s56, v56")
        a("v_cmp_ne_u32 vcc, 0, v56")
    if cfg.q8:
        a(f"s_waitcnt vmcnt({cfg.q_wait})")
        ts(4)
        q8block(".LH_q")
        ts(7)
    elif cfg.qhint:
        budget()
        a("s_cmp_eq_u32 s59, 0")
        a("s_cbranch_scc1 .LH_qlate")
        a(f"s_waitcnt vmcnt({32 - cfg.qc_row})")
        a("s_branch .LH_qv")
        a(".LH_qlate:")
        a(f"s_waitcnt vmcnt({cfg.q_wait})")
        a(".LH_qre:")
        qrows()
        a("s_waitcnt vmcnt(0)")
        a(".LH_qv:")
        ts(7)
        qcheck()
        a("s_cbranch_vccz .LH_qk")
        spend(".LH_qk")
        a("s_branch .LH_qre")
        a(".LH_qk:")
        a("s_waitcnt vmcnt(0)")
        ts(4)
    else:
        a("s_waitcnt vmcnt(8)")
        ts(4)
        if cfg.cpre: a("s_barrier")
        budget()
        a(".LH_qv:")
        a("s_waitcnt vmcnt(0)")
        ts(7)
        qcheck()
        a("s_cbranch_vccz .LH_qk")
        spend(".LH_qk")
        qrows()
        a("s_branch .LH_qv")
        a(".LH_qk:")
    a("s_barrier")
    if cfg.f1_on == "H":
        a("s_cmp_ge_u32 s43, 88")
        a("s_cbranch_scc1 .LH_nof1")
        for i in range(8):
            a(f"buffer_load_dwordx4 v[{160+4*i}:{163+4*i}], v26, s[24:27], s20 offen {NT}")
            if i < 7: a("s_add_u32 s20, s20, 2752")
        a(".LH_nof1:")
    a("s_cmp_lt_u32 s43, 85")
    a("s_cbranch_scc1 .LH_now2")
    for i in range(8):
        if i == 4: a("s_add_u32 s46, s46, 4096")
        a(f"buffer_load_dwordx4 v[{208+4*i}:{211+4*i}], v5, s[28:31], s46 offen offset:{1024*(i&3)} {NT}")
    if cfg.a_pf:
        a("s_branch .LH_now3")
    a(".LH_now2:")
    if cfg.a_pf:
        for i in range(cfg.a_pf):
            a(f"buffer_load_dwordx4 v[{208+4*i}:{211+4*i}], v13, s[24:27], s57 offen {cfg.a_pf_nt}")
            if i < cfg.a_pf - 1: a("s_add_u32 s57, s57, 4096")
        a(".LH_now3:")
    if not cfg.cpre: a("s_barrier")
    for n in range(16):
        if n >= 7: a("s_waitcnt lgkmcnt(12)")
        tread(n)
        if n == 7 and not cfg.cpre: a("s_barrier")
    a("s_waitcnt lgkmcnt(0)")
    if cfg.cpre: a("s_barrier\ns_barrier")
    def hf1(lab):
        a("s_cmp_ge_u32 s43, 88")
        a(f"s_cbranch_scc1 {lab}")
        a("s_waitcnt vmcnt(8)" if False else "s_waitcnt vmcnt(0)")
        transpose8(160, 64)
        a("s_nop 0")
        gemv_out(20, 64, 27, 21, 28, acc=160, out=192)
        ts(5)
        a(f"{lab}:")
        FS[:] = [52, 54, 56]
    if cfg.f1_on == "H" and cfg.hf1_pre: hf1(".LH_nof2")
    a(f"s_setprio {cfg.hprio}")
    a("s_barrier")
    for k in range(8):
        a(f"ds_read_b128 v[{64+4*k}:{67+4*k}], v51 offset:{1024*k}")
    a("s_branch .LA_pv")

    a(".LA_comp:")
    a("s_waitcnt lgkmcnt(0)")
    ts(1)
    def a_nonce(lab):
        budget()
        a(f"{lab}p:")
        spend(f"{lab}g")
        a(f"s_sleep {cfg.a_nsleep}")
        a("buffer_load_dword v11, v9, s[12:15], 0 offen offset:128 sc1")
        a("s_waitcnt vmcnt(0)")
        a("v_readfirstlane_b32 s40, v11")
        a("s_cmp_eq_u32 s40, 0")
        a(f"s_cbranch_scc1 {lab}p")
        a(f"{lab}g:")
    if cfg.f1_on == "A":
        a("s_cmp_ge_u32 s43, 88")
        a("s_cbranch_scc1 .LA_nof1")
        a("v_lshlrev_b32 v4, 5, v0")
        a("buffer_load_dwordx4 v[12:15], v4, s[4:7], 0 offen")
        a("buffer_load_dwordx4 v[16:19], v4, s[4:7], 0 offen offset:16")
        a("s_and_b32 s50, s43, 7\ns_lshl_b32 s50, s50, 1\ns_lshr_b32 s51, s3, 1\ns_add_u32 s50, s50, s51")
        a("v_lshlrev_b32 v4, 10, v25\nv_lshl_add_u32 v4, v2, 4, v4\ns_lshl_b32 s45, s50, 6")
        a("buffer_load_dwordx4 v[20:23], v4, s[4:7], s45 offen")
        a("s_bitcmp1_b32 s3, 0")
        a("s_cselect_b32 s20, s38, s36\ns_cselect_b32 s21, s39, s37")
        srd(20, 1409024)
        a("v_mul_u32_u24 v4, 22016, v2\nv_lshl_add_u32 v4, v3, 4, v4")
        a(f"s_mul_i32 s45, s50, {32*2752}\ns_lshr_b32 s51, s43, 3\ns_lshl_b32 s44, s51, 8\ns_add_u32 s45, s45, s44")
        if cfg.f1_delay: a("s_waitcnt vmcnt(0)")
        for i in range(8):
            a(f"buffer_load_dwordx4 v[{96+4*i}:{99+4*i}], v4, s[20:23], s45 offen {NT}")
            if i < 7: a("s_add_u32 s45, s45, 2752")
        a(".LA_nof1:")
    if cfg.prefetch:
        a(f"s_cmp_ge_u32 s43, {cfg.pf_cus}")
        a("s_cbranch_scc1 .LA_nopf")
        a("s_getpc_b64 s[24:25]")
        a(".LA_pc:")
        a(f"s_sub_u32 s24, s24, .LA_pc-{K}\ns_subb_u32 s25, s25, 0")
        a(f"s_mov_b32 s26, .L_codeend-{K}\ns_mov_b32 s27, 0x20000")
        a("s_mul_i32 s45, s3, 5120")
        for i in range(5):
            a(f"buffer_load_dwordx4 v[28:31], v8, s[24:27], s45 offen")
            if i < 4: a("s_add_u32 s45, s45, 1024")
        a(".LA_nopf:")
    if cfg.f1_on == "A":
        a("s_cmp_ge_u32 s43, 88")
        a("s_cbranch_scc1 .LA_nof2")
        a("s_mov_b32 s58, 0xaaaaaaaa\ns_mov_b32 s59, 0xaaaaaaaa")
        a("s_waitcnt vmcnt(8)")
        ln_stats(12, 32)
        ln_apply(20, 32)
        fconsts(11)
        a(f"s_lshl_b32 s61, s51, 15\ns_and_b32 s45, s3, 1\ns_lshl_b32 s45, s45, 14\ns_add_u32 s61, s61, s45\ns_lshl_b32 s45, s50, 10\ns_add_u32 s61, s61, s45\ns_add_u32 s61, s61, {WS_G}")
        a("s_waitcnt vmcnt(0)")
        transpose8(96, 128)
        a_nonce(".LA_n1")
        ftags(11, 28, 27, 26)
        a("v_lshrrev_b32 v26, 1, v2\nv_lshl_add_u32 v27, v26, 9, v27")
        gemv_out(20, 128, 27, 61, 28, acc=160, out=192)
        ts(3)
        a("s_branch .LA_n2g")
        a(".LA_nof2:")
    a_nonce(".LA_n2")
    ts(2)
    pv_setup()
    a("v_lshrrev_b32 v2, 5, v0")
    a("v_and_b32 v3, 31, v0")
    a("v_and_b32 v4, 3, v3\nv_bfe_u32 v5, v3, 2, 2\nv_lshl_or_b32 v5, v4, 2, v5\nv_xor_b32 v5, v5, v2\nv_lshlrev_b32 v5, 4, v5")
    a("v_lshl_add_u32 v24, v3, 10, v5")
    a(f"v_add_u32 v24, {QR}, v24")
    a("v_lshl_add_u32 v5, v4, 8, v5\nv_lshrrev_b32 v4, 2, v3\nv_lshl_add_u32 v5, v4, 10, v5")
    a("s_lshl_b32 s45, s3, 13\nv_add_u32 v16, s45, v5")
    for k in range(1, 8):
        a(f"v_xor_b32 v{16+k}, {32*k}, v16\nv_xor_b32 v{24+k}, {32*k}, v24")
    a(f"s_lshl_b32 s45, s3, 7\ns_add_u32 s45, s45, {MX}")
    a("v_lshlrev_b32 v48, 2, v3")
    a(f"v_add_u32 v49, {MX}, v48")
    a("v_add_u32 v48, s45, v48")
    a(f"s_lshl_b32 s45, s3, 11\ns_add_u32 s45, s45, {PX}")
    a("v_add_u32 v50, s45, v8")
    a("v_lshlrev_b32 v54, 4, v3")
    a(f"s_lshl_b32 s46, s42, 11\ns_lshl_b32 s45, s3, 9\ns_add_u32 s46, s46, s45\ns_add_u32 s46, s46, {WS_ML}")
    a("v_mov_b32 v58, s40\nv_mov_b32 v59, 0")
    if cfg.cpre:
        ts(4)
        a("s_barrier")
        ts(12)
        for s_ in range(32):
            if s_ >= 15: a("s_waitcnt lgkmcnt(14)")
            a(f"ds_read_b128 v[{96+4*s_}:{99+4*s_}], v{16+(s_&7)} offset:{32768*((s_>>3)&1)}")
            if 8 <= s_ < 16: a(f"v_add_u32 v{16+(s_&7)}, 0x10000, v{16+(s_&7)}")
        a("s_waitcnt lgkmcnt(0)")
        a("s_barrier")
        ts(5)
        LA = 8
        def sread(s):
            r = 224 + 4 * (s % LA)
            a(f"ds_read_b128 v[{r}:{r+3}], v{24+(s&7)} offset:{256*(s>>3)}")
        for s in range(LA): sread(s)
        for s in range(32):
            r = 224 + 4 * (s % LA)
            outstanding = min(LA, 32 - s)
            a(f"s_waitcnt lgkmcnt({outstanding-1})")
            if s == 31: a("s_barrier")
            a(f"v_mfma_f32_32x32x16_bf16 v[64:79], v[{96+4*s}:{99+4*s}], v[{r}:{r+3}], {'0' if s == 0 else 'v[64:79]'}")
            if s + LA < 32: sread(s + LA)
    else:
        ts(4)
        if cfg.q8: q8block(".LA_q")
        a("s_barrier")
        ts(5)
        LA = 4
        def sread(s):
            r = 208 + 8 * (s % LA)
            a(f"ds_read_b128 v[{r}:{r+3}], v{16+(s&7)} offset:{32768*((s>>3)&1)}")
            a(f"ds_read_b128 v[{r+4}:{r+7}], v{24+(s&7)} offset:{256*(s>>3)}")
            if 8 <= s < 16: a(f"v_add_u32 v{16+(s&7)}, 0x10000, v{16+(s&7)}")
        for s in range(LA): sread(s)
        for s in range(32):
            r = 208 + 8 * (s % LA)
            outstanding = min(LA, 32 - s)
            a(f"s_waitcnt lgkmcnt({2*(outstanding-1)})")
            if s == 31: a("s_barrier")
            a(f"v_mfma_f32_32x32x16_bf16 v[64:79], v[{r}:{r+3}], v[{r+4}:{r+7}], {'0' if s == 0 else 'v[64:79]'}")
            if s + LA < 32: sread(s + LA)
    ts(6)
    a("s_nop 11" if not cfg.ts else "s_nop 10")
    a("v_max3_f32 v4, v64, v65, v66\nv_max3_f32 v5, v67, v68, v69\nv_max3_f32 v6, v70, v71, v72\nv_max3_f32 v7, v73, v74, v75")
    a("v_max3_f32 v4, v4, v76, v77\nv_max3_f32 v5, v5, v78, v79\nv_max3_f32 v4, v4, v6, v7\nv_max_f32 v4, v4, v5")
    a("v_mov_b32 v5, v4\ns_nop 1\nv_permlane32_swap_b32 v4, v5\nv_max_f32 v4, v4, v5")
    a("ds_write_b32 v48, v4")
    a("s_waitcnt lgkmcnt(0)")
    a("s_barrier")
    a("ds_read2_b32 v[4:5], v49 offset0:0 offset1:32")
    a("ds_read2_b32 v[6:7], v49 offset0:64 offset1:96")
    a("s_waitcnt lgkmcnt(0)")
    a("v_max3_f32 v4, v4, v5, v6\nv_max_f32 v56, v4, v7")
    for r in range(8): a(f"v_sub_f32 v{64+r}, v{64+r}, v56")
    for r in range(8):
        a(f"v_exp_f32 v{64+r}, v{64+r}")
        a(f"v_sub_f32 v{72+r}, v{72+r}, v56")
    for e in range(4):
        a(f"v_exp_f32 v{72+2*e}, v{72+2*e}\nv_exp_f32 v{73+2*e}, v{73+2*e}")
        a(f"v_cvt_pk_bf16_f32 v{80+e}, v{64+2*e}, v{65+2*e}")
    a("ds_write_b128 v50, v[80:83]")
    for e in range(4, 8): a(f"v_cvt_pk_bf16_f32 v{80+e}, v{64+2*e}, v{65+2*e}")
    a("ds_write_b128 v50, v[84:87] offset:1024")
    for e in range(0, 8, 2): a(f"v_pk_add_f32 v[{64+e}:{65+e}], v[{64+e}:{65+e}], v[{72+e}:{73+e}]")
    for e in range(0, 4, 2): a(f"v_pk_add_f32 v[{64+e}:{65+e}], v[{64+e}:{65+e}], v[{68+e}:{69+e}]")
    a("v_pk_add_f32 v[64:65], v[64:65], v[66:67]\nv_add_f32 v64, v64, v65")
    a("v_mov_b32 v65, v64\ns_nop 1\nv_permlane32_swap_b32 v64, v65\nv_add_f32 v64, v64, v65")
    a("ds_write_b32 v48, v64 offset:512")
    for n in range(cfg.pv_pre): tread(n)
    a(f"s_waitcnt lgkmcnt({2*cfg.pv_pre})")
    a("s_barrier")
    ts(7)
    a(f"s_waitcnt lgkmcnt({min(2*cfg.pv_pre, 5)})")
    a("ds_read2_b32 v[4:5], v49 offset0:128 offset1:160")
    a("ds_read2_b32 v[6:7], v49 offset0:192 offset1:224")
    for k in range(8):
        a(f"ds_read_b128 v[{64+4*k}:{67+4*k}], v51 offset:{1024*k}")
    a("s_waitcnt lgkmcnt(8)")
    a("v_add_f32 v4, v4, v5\nv_add_f32 v6, v6, v7\nv_add_f32 v57, v4, v6")
    def mlstore():
        a("s_mov_b32 exec_hi, 0")
        a("buffer_store_dwordx4 v[56:59], v54, s[8:11], s46 offen sc1")
        a("s_mov_b64 exec, -1")
    if cfg.ml_at == 0: mlstore()
    for n in range(cfg.pv_pre, 16):
        a("s_waitcnt lgkmcnt(12)")
        tread(n)
    if cfg.ml_at == 1: mlstore()
    ts(15)
    a("s_waitcnt lgkmcnt(0)")
    a(".LA_pv:")
    ts(13)
    for n in range(16):
        k, j = n >> 1, n & 1
        if j == 0: a(f"s_waitcnt lgkmcnt({7-k})")
        acc = 160 + 16 * j
        a(f"v_mfma_f32_32x32x16_bf16 v[{acc}:{acc+15}], v[{64+4*k}:{67+4*k}], v[{96+4*n}:{99+4*n}], {'0' if k == 0 else f'v[{acc}:{acc+15}]'}")
    a("s_setprio 0")
    if cfg.ml_at == 2:
        a("s_cmp_gt_u32 s3, 3")
        a("s_cbranch_scc1 .LA_noml")
        mlstore()
        a(".LA_noml:")
    ts(14)
    def epiA(pr):
        t = 192 + 2 * pr; r = 2 * pr
        a(f"v_cvt_pk_bf16_f32 v{t}, v{160+r}, v{176+r}")
        a(f"v_cvt_pk_bf16_f32 v{t+1}, v{161+r}, v{177+r}")
        a(f"v_bfi_b32 v{t}, s56, v53, v{t}")
        a(f"v_bfi_b32 v{t+1}, s56, v53, v{t+1}")
    def epiB(pr):
        t = 192 + 2 * pr
        a(f"v_permlane16_swap_b32 v{t}, v{t+1}")
        if not cfg.nostore: a(f"buffer_store_dwordx2 v[{t}:{t+1}], v{36 + (pr & 3)}, s[8:11], s{48+pr} offen {cfg.ost}")
    a("s_nop 10" if not cfg.ts else "s_nop 9")
    epiA(0)
    for pr in range(8):
        if pr < 7: epiA(pr + 1)
        else: a("s_nop 1")
        epiB(pr)
    ts(8)
    if cfg.ml_at >= 3:
        a("s_cmp_gt_u32 s3, 3")
        a("s_cbranch_scc1 .LA_noml")
        if cfg.ml_at == 4: a("s_waitcnt vmcnt(0)")
        mlstore()
        a(".LA_noml:")
    if cfg.ts and cfg.drts:
        a("s_waitcnt vmcnt(0)")
        ts(9)
    a("s_cmp_lt_u32 s3, 4")
    a("s_cbranch_scc1 .LA_zq")
    a("s_cmp_ge_u32 s43, 85")
    a("s_cbranch_scc1 .LH_F2")
    a("s_cmp_ge_u32 s43, 32")
    a("s_cbranch_scc1 .LA_exit")
    a("s_cmp_lg_u32 s3, 4")
    a("s_cbranch_scc1 .LA_exit")
    zprolog()
    a(f"s_lshl_b32 s46, s43, 7\ns_add_u32 s46, s46, {WS_F}")
    for k in range(4): a(f"v_mov_b32 v{52+k}, 0")
    for m in (50, 52, 54, 56, 58): a(f"s_mov_b64 s[{m}:{m+1}], -1")
    a("s_mov_b64 s[60:61], 0xffffff")
    zgather(6, "s46", ".LZ_f", [50, 52, 54, 56, 58, 60])
    for i in range(1, 6):
        for k in range(4): a(f"v_add_f32 v{32+k}, v{32+k}, v{32+4*i+k}")
    a("s_nop 0")
    zreduce()
    a("v_cvt_pk_bf16_f32 v32, v32, v33\nv_cvt_pk_bf16_f32 v34, v34, v35")
    a("v_lshlrev_b32 v24, 16, v32\nv_and_b32 v25, 0xffff0000, v32\nv_lshlrev_b32 v26, 16, v34\nv_and_b32 v27, 0xffff0000, v34")
    for k in range(4): a(f"v_mul_f32 v{32+k}, {hex(f2u(-LOG2E))}, v{24+k}")
    for k in range(4): a(f"v_exp_f32 v{32+k}, v{32+k}")
    a("s_nop 0")
    for k in range(4): a(f"v_add_f32 v{32+k}, 1.0, v{32+k}")
    for k in range(4): a(f"v_rcp_f32 v{32+k}, v{32+k}")
    a("s_nop 0")
    for k in range(4): a(f"v_mul_f32 v{24+k}, v{24+k}, v{32+k}")
    a("v_cvt_pk_bf16_f32 v32, v24, v25\nv_cvt_pk_bf16_f32 v34, v26, v27")
    a("v_lshlrev_b32 v24, 16, v32\nv_and_b32 v25, 0xffff0000, v32\nv_lshlrev_b32 v26, 16, v34\nv_and_b32 v27, 0xffff0000, v34")
    a(f"v_lshlrev_b32 v15, 4, v3\nv_add_u32 v15, {QR+12288}, v15")
    a("s_mov_b64 exec, 0xff")
    a("ds_write_b128 v15, v[24:27]")
    a("s_waitcnt lgkmcnt(0)")
    ts(6)
    a("s_branch .LA_exit")
    a(".LH_F2:")
    a("v_lshrrev_b32 v7, 3, v0\nv_lshlrev_b32 v7, 9, v7\nv_and_b32 v10, 7, v0\nv_lshl_add_u32 v7, v10, 4, v7")
    a(f"s_lshr_b32 s44, s62, 2\ns_lshl_b32 s44, s44, 15\ns_and_b32 s45, s62, 3\ns_lshl_b32 s45, s45, 7\ns_add_u32 s44, s44, s45\ns_add_u32 s44, s44, {WS_G}")
    def gloads():
        a("s_mov_b32 s45, s44")
        for i in range(8):
            a(f"buffer_load_dwordx4 v[{32+4*i}:{35+4*i}], v7, s[8:11], s45 offen sc1")
            if i < 7: a("s_add_u32 s45, s45, 4096")
    gloads()
    fconsts(11)
    ftags(11, 28, 27, 26)
    utags(11, 12)
    a("s_movk_i32 s100, 0xff")
    a("v_lshlrev_b32 v16, 5, v25\nv_lshl_add_u32 v16, v2, 3, v16\nv_add_u32 v17, 4, v16")
    a("v_lshrrev_b32 v26, 1, v2\nv_lshl_add_u32 v6, v26, 11, v27")
    a(f"s_lshl_b32 s61, s62, 12\ns_lshl_b32 s45, s47, 9\ns_add_u32 s61, s61, s45\ns_add_u32 s61, s61, {WS_F}")
    a("s_waitcnt vmcnt(16)")
    transpose8(208, 128)
    budget()
    a(".LF_gp:")
    a("s_waitcnt vmcnt(0)")
    for i in range(8):
        for k in range(4):
            if i == 0 and k == 0: a("v_xor_b32 v18, v32, v12")
            else: a(f"v_bitop3_b32 v18, v18, v{32+4*i+k}, v{12+k} bitop3:0xf6")
    a("v_and_b32 v18, 0xff, v18")
    a("v_cmp_ne_u32 vcc, 0, v18")
    a("s_cbranch_vccz .LF_g2")
    spend(".LF_g2")
    a("s_sleep 2")
    gloads()
    a("s_branch .LF_gp")
    a(".LF_g2:")
    for i in range(8):
        if i & 3:
            for k in range(4): a(f"v_add_f32 v{32+16*(i>>2)+k}, v{32+16*(i>>2)+k}, v{32+4*i+k}")
    for sw in ("v_permlane16_swap_b32", "v_permlane32_swap_b32"):
        for k in range(4): a(f"v_mov_b32 v{36+k}, v{32+k}\nv_mov_b32 v{52+k}, v{48+k}")
        a("s_nop 0")
        for k in range(4): a(f"{sw} v{32+k}, v{36+k}\n{sw} v{48+k}, v{52+k}")
        for k in range(4): a(f"v_add_f32 v{32+k}, v{32+k}, v{36+k}\nv_add_f32 v{48+k}, v{48+k}, v{52+k}")
    for k in range(4): a(f"v_cvt_pk_bf16_f32 v{32+k}, v{32+k}, v{48+k}")
    for k in range(4): a(f"v_and_b32 v{48+k}, 0xffff0000, v{32+k}\nv_lshlrev_b32 v{32+k}, 16, v{32+k}")
    for k in range(4): a(f"v_mul_f32 v{36+k}, {hex(f2u(-LOG2E))}, v{32+k}")
    for k in range(4): a(f"v_exp_f32 v{36+k}, v{36+k}")
    a("s_nop 0")
    for k in range(4): a(f"v_add_f32 v{36+k}, 1.0, v{36+k}")
    for k in range(4): a(f"v_rcp_f32 v{36+k}, v{36+k}")
    a("s_nop 0")
    for k in range(4): a(f"v_mul_f32 v{32+k}, v{32+k}, v{36+k}")
    a("v_cvt_pk_bf16_f32 v32, v32, v33\nv_cvt_pk_bf16_f32 v34, v34, v35")
    a("v_and_b32 v33, 0xffff0000, v32\nv_lshlrev_b32 v32, 16, v32\nv_and_b32 v35, 0xffff0000, v34\nv_lshlrev_b32 v34, 16, v34")
    for k in range(4): a(f"v_mul_f32 v{32+k}, v{32+k}, v{48+k}")
    a("v_cvt_pk_bf16_f32 v32, v32, v33\nv_cvt_pk_bf16_f32 v33, v34, v35")
    a("ds_bpermute_b32 v20, v16, v32\nds_bpermute_b32 v21, v16, v33\nds_bpermute_b32 v22, v17, v32\nds_bpermute_b32 v23, v17, v33")
    a("s_waitcnt lgkmcnt(0)")
    gemv_out(20, 128, 6, 61, 28)
    ts(6)
    a("s_branch .LA_exit")
    a(".LA_zq:")
    a("s_cmp_ge_u32 s43, 32")
    a("s_cbranch_scc1 .LA_exit")
    a("s_cmp_lg_u32 s3, 0")
    a("s_cbranch_scc1 .LA_exit")
    zprolog()
    a("s_lshl_b32 s45, s43, 6")
    a("v_lshlrev_b32 v14, 3, v3")
    a("buffer_load_dwordx2 v[16:17], v14, s[4:7], s45 offen")
    a(f"s_bfe_u32 s46, s43, 0x20002\ns_lshl_b32 s46, s46, 10\ns_lshr_b32 s48, s43, 4\ns_lshl_b32 s48, s48, 9\ns_add_u32 s46, s46, s48")
    a(f"s_and_b32 s48, s43, 3\ns_lshl_b32 s48, s48, 7\ns_add_u32 s46, s46, s48\ns_add_u32 s46, s46, {WS_S}")
    a(f"v_lshlrev_b32 v15, 4, v3\nv_add_u32 v15, {QR+12288}, v15")
    a("s_mov_b64 s[50:51], -1\ns_mov_b64 s[52:53], -1\ns_mov_b64 s[54:55], -1\ns_mov_b64 s[56:57], -1")
    a("s_waitcnt vmcnt(0)")
    a("v_lshlrev_b32 v28, 16, v16\nv_and_b32 v29, 0xffff0000, v16\nv_lshlrev_b32 v30, 16, v17\nv_and_b32 v31, 0xffff0000, v17")
    zgather(4, "s46", ".LZ_s", [50, 52, 54, 56])
    ts(10)
    a("s_barrier")
    a("ds_read_b128 v[24:27], v15")
    for k in range(4): a(f"v_add_f32 v{32+k}, v{32+k}, v{36+k}\nv_add_f32 v{40+k}, v{40+k}, v{44+k}")
    for k in range(4): a(f"v_add_f32 v{32+k}, v{32+k}, v{40+k}")
    zreduce()
    a("v_cvt_pk_bf16_f32 v32, v32, v33\nv_cvt_pk_bf16_f32 v34, v34, v35")
    a("v_and_b32 v33, 0xffff0000, v32\nv_lshlrev_b32 v32, 16, v32\nv_and_b32 v35, 0xffff0000, v34\nv_lshlrev_b32 v34, 16, v34")
    a("s_waitcnt lgkmcnt(0)")
    for k in range(4): a(f"v_mul_f32 v{32+k}, v{32+k}, v{24+k}")
    a("v_cvt_pk_bf16_f32 v32, v32, v33\nv_cvt_pk_bf16_f32 v34, v34, v35")
    a("v_and_b32 v33, 0xffff0000, v32\nv_lshlrev_b32 v32, 16, v32\nv_and_b32 v35, 0xffff0000, v34\nv_lshlrev_b32 v34, 16, v34")
    for k in range(4): a(f"v_add_f32 v{32+k}, v{32+k}, v{28+k}")
    a("v_cvt_pk_bf16_f32 v32, v32, v33\nv_cvt_pk_bf16_f32 v33, v34, v35")
    a("s_mov_b64 exec, 0xff")
    a(f"buffer_store_dwordx2 v[32:33], v14, s[32:35], s45 offen {cfg.outst}")
    if cfg.dbgt:
        a("s_memrealtime s[48:49]")
        a("s_waitcnt lgkmcnt(0)")
        a("v_mov_b32 v10, s48")
        a("s_lshl_b32 s45, s43, 2")
        a("s_mov_b64 exec, 1")
        a("buffer_store_dword v10, v9, s[12:15], s45 offen offset:8")
        if cfg.amp:
            a("buffer_load_dword v10, v9, s[12:15], 0 offen offset:4 sc1")
            a("s_waitcnt vmcnt(0)")
            a("v_readfirstlane_b32 s50, v10")
            a("s_sub_u32 s51, s48, s50")
            a("s_min_u32 s51, s51, 10000")
            a(f"s_mul_i32 s51, s51, {cfg.amp}")
            a("s_add_u32 s51, s51, s48")
            a(".LZ_amp:")
            a("s_memrealtime s[48:49]")
            a("s_waitcnt lgkmcnt(0)")
            a("s_sub_u32 s52, s48, s51")
            a("s_cmp_lt_i32 s52, 0")
            a("s_cbranch_scc1 .LZ_amp")
    ts(11)
    a(".LA_exit:")
    ts_flush()
    a(".L_end:")
    a("s_endpgm")
    for i, lab in enumerate(stubs, 1):
        a(f".Lstub{i}:")
        a("s_mov_b64 s[94:95], exec\ns_mov_b64 exec, 1")
        a(f"s_lshl_b32 s93, s2, 8\ns_or_b32 s93, s93, s3\ns_or_b32 s93, s93, 0x10000\nv_mov_b32 v255, s93\nv_mov_b32 v254, {160 + 4*i}")
        a("buffer_store_dword v255, v254, s[12:15], 0 offen sc1")
        a("s_mov_b64 exec, s[94:95]")
        a(f"s_branch {lab}")
    if cfg.dbgspin: print("stubs", list(enumerate(stubs, 1)))
    a(".L_codeend:")
    body = a.text()
    return assemble([(K, 256, 512, 163840)], [(K, body, 256, 102, 256, "")]), body

if __name__ == "__main__":
    import argparse
    ap = argparse.ArgumentParser()
    ap.add_argument("-o", default="k.s")
    ap.add_argument("--set", action="append", default=[])
    args = ap.parse_args()
    for s in args.set:
        k, v = s.split("=")
        setattr(Cfg, k, eval(v))
    txt, body = gen(Cfg)
    open(args.o, "w").write(txt)
    for p in hazard.check(txt): print("HAZARD", p)
```

```python
import sys
from asmlib import *
import hazard

WS_H1 = 0x000000
WS_H4 = 0x020000
WS_SLOW = 0x040000
WS_Q  = 0x080000
WS_QF = 0x0A0000
WS_GO = 0x0B0000
WS_ML = 0x100000
WS_S  = 0x200000
WS_F  = 0x300000
WS_G  = 0x380000
WS_O  = 0x400000
WS_TS = 0x1000000
WS_SIZE = 268435456
LOG2E = 1.4426950408889634
QSCALE = LOG2E * 128 ** -0.5
import struct
def f2u(x): return struct.unpack("<I", struct.pack("<f", x))[0]

class Cfg:
    ts = False
    npre = 2
    go_cnt = 8
    cwin = 12
    nsamp = 7
    samp_sleep = 3
    prefetch = True
    poll_sleep = 1
    nt = "nt"
    nt_wo = ""
    spin = 4000000
    dbgt = False
    amp = 0
    wuk_wait = 3
    fast_tries = 14
    slow_now = True
    tlbw = 0
    ns_cnt = 6
    h4ts = False
    f1_on = 'W'
    ml_pos = 4
    use_go = True
    pf_pre = False
    q_wait = 1
    xts = None
    w2_late = False
    f2_base = 85
    q_time = 0
    q_lvls = (8, 6, 4, 2, 1)
    probe = None
    skip1 = 3
    w_pf = 0
    w_pf_nt = ''
    q8 = False
    qhint = False
    cpre = False
    qs_row = 16
    qc_row = 26
    q_thr = 0
    outst = ''
    corder = 'row'
    oswz = False
    olay = 'c'
    sc_first = False
    pay_sleep = 0
    drts = False
    x_sleep = 1
    late_slow = False
    go_wave = 4
    ml_at = 0
    uv_early = False
    sc_pre = False
    dbgspin = False
    ml_sleep = 2
    hf1_pre = True
    f1_early = False
    go_skip = True
    f1_rot = 64
    a_pf = 0
    a_pf_nt = ''
    f1_first = True
    fld = 'sc1'
    nowarm = False
    wld = 'sc1'
    fst = ''
    f1_gate = 0
    pf_nt = ''
    pf_cus = 16
    f1_delay = False
    nostore = False
    ost = 'sc1'
    nof1 = False
    h1ts = False
    a_nsleep = 20
    go_sleep = 4
    pre_rows = 1
    pf_wave = 1
    nt_wq = ''
    wq_wait = None
    nt_wuk = 'nt'
    pf_cnt = 6
    pf_delay = True
    wq_first = 1
    cwin1 = 4
    n1 = 8
    wo_wait = None
    nchain = 1
    q_row = 32
    q_ext = 0
    go_row = 14
    nonce_row = 4
    ml_early = 16
    pf = False
    z_pre = 32
    wo_bar = True
    go_group = True
    pv_pre = 0
    hprio = 2

def gen(cfg=Cfg):
    a = Asm()
    K = NAME + "_kernel"
    NT = cfg.nt
    tsn = [0]
    cur = ["W"]
    def ts(idx):
        if cfg.ts:
            a(f"s_memrealtime s[{64+2*idx}:{65+2*idx}]")
        elif cfg.probe and cfg.probe[1] == idx and (cfg.probe[0] == "W") == (cur[0] == "W"):
            a("s_memrealtime s[64:65]")
    def ts_flush(nmax=16):
        if cfg.probe and (cfg.probe[0] == "W") == (cur[0] == "W"):
            lab = f".Lprobe{cur[0]}"
            if cfg.probe[0] == "C": a(f"s_cmp_gt_u32 s3, 3\ns_cbranch_scc1 {lab}_e")
            if cfg.probe[0] == "H": a(f"s_cmp_lt_u32 s3, 4\ns_cbranch_scc1 {lab}_e")
            a("s_waitcnt lgkmcnt(0)")
            a(f"s_cmp_eq_u32 s64, 0\ns_cbranch_scc1 {lab}_e")
            a("s_mov_b64 exec, 1\nv_mov_b32 v9, 0")
            a("buffer_load_dword v10, v9, s[12:15], 0 offen offset:132 sc1")
            a("s_waitcnt vmcnt(0)")
            a("v_readfirstlane_b32 s66, v10")
            a("s_sub_u32 s67, s64, s66\ns_min_i32 s67, s67, 3000")
            a(f"s_mul_i32 s67, s67, {cfg.probe[2]}\ns_add_u32 s67, s67, s66\ns_add_u32 s67, s67, 2500")
            a(f"{lab}_l:\ns_sleep 2\ns_memrealtime s[68:69]\ns_waitcnt lgkmcnt(0)\ns_sub_u32 s70, s68, s67\ns_cmp_lt_i32 s70, 0\ns_cbranch_scc1 {lab}_l")
            a(f"{lab}_e:")
        if not cfg.ts: return
        a("s_waitcnt lgkmcnt(0)")
        a("s_lshl_b32 s44, s2, 3\ns_add_u32 s44, s44, s3\ns_lshl_b32 s44, s44, 6")
        a(f"s_add_u32 s44, s44, {WS_TS}")
        a("s_mov_b64 exec, 1")
        a("v_mov_b32 v1, 0")
        for q in range(4):
            for k in range(4):
                a(f"v_mov_b32 v{4+k}, s{64+2*(4*q+k)}")
            a(f"buffer_store_dwordx4 v[4:7], v1, s[8:11], s44 offen offset:{16*q}")
            a("s_nop 1")
        a("s_waitcnt vmcnt(0)")
    def srd(base, size):
        a(f"s_mov_b32 s{base+2}, {size}\ns_mov_b32 s{base+3}, 0x20000")
    def allreduce16(v, t, op):
        for r in (8, 4, 2, 1):
            a("s_nop 1")
            a(f"{op}_dpp v{v}, v{v}, v{v} row_ror:{r} row_mask:0xf bank_mask:0xf")
        for sw in ("v_permlane16_swap_b32", "v_permlane32_swap_b32"):
            a(f"v_mov_b32 v{t}, v{v}")
            a("s_nop 1")
            a(f"{sw} v{v}, v{t}")
            a(f"{op} v{v}, v{v}, v{t}")
    def allreduce2(v, w, t, u, op):
        for r in (8, 4, 2, 1):
            a("s_nop 0")
            a(f"{op}_dpp v{v}, v{v}, v{v} row_ror:{r} row_mask:0xf bank_mask:0xf")
            a(f"{op}_dpp v{w}, v{w}, v{w} row_ror:{r} row_mask:0xf bank_mask:0xf")
        for sw in ("v_permlane16_swap_b32", "v_permlane32_swap_b32"):
            a(f"v_mov_b32 v{t}, v{v}\nv_mov_b32 v{u}, v{w}\ns_nop 0")
            a(f"{sw} v{v}, v{t}\n{sw} v{w}, v{u}")
            a(f"{op} v{v}, v{v}, v{t}\n{op} v{w}, v{w}, v{u}")
    def quador(v):
        for qp in ("[1,0,3,2]", "[2,3,0,1]"):
            a("s_nop 1")
            a(f"v_or_b32_dpp v{v}, v{v}, v{v} quad_perm:{qp} row_mask:0xf bank_mask:0xf")
    def halfreduce(v, t):
        for r in (8, 4, 2, 1):
            a("s_nop 1")
            a(f"v_add_f32_dpp v{v}, v{v}, v{v} row_ror:{r} row_mask:0xf bank_mask:0xf")
        a(f"v_mov_b32 v{t}, v{v}\ns_nop 1\nv_permlane16_swap_b32 v{v}, v{t}\nv_add_f32 v{v}, v{v}, v{t}")
    def ln_stats(vx, vt):
        m, t, q, u = vt + 16, vt + 17, vt + 18, vt + 19
        for i in range(8):
            a(f"v_lshlrev_b32 v{vt+2*i}, 16, v{vx+i}")
            a(f"v_and_b32 v{vt+1+2*i}, 0xffff0000, v{vx+i}")
        a(f"v_add_f32 v{m}, v{vt}, v{vt+1}\nv_add_f32 v{t}, v{vt+2}, v{vt+3}")
        for i in range(4, 16, 2): a(f"v_add_f32 v{m}, v{m}, v{vt+i}\nv_add_f32 v{t}, v{t}, v{vt+i+1}")
        a(f"v_add_f32 v{m}, v{m}, v{t}")
        halfreduce(m, t)
        a(f"v_mul_f32 v{m}, {hex(f2u(1/512))}, v{m}")
        a(f"v_sub_f32 v{t}, v{vt}, v{m}\nv_sub_f32 v{u}, v{vt+1}, v{m}\nv_mul_f32 v{q}, v{t}, v{t}\nv_fmac_f32 v{q}, v{u}, v{u}")
        for i in range(2, 16, 2): a(f"v_sub_f32 v{t}, v{vt+i}, v{m}\nv_sub_f32 v{u}, v{vt+i+1}, v{m}\nv_fmac_f32 v{q}, v{t}, v{t}\nv_fmac_f32 v{q}, v{u}, v{u}")
        halfreduce(q, t)
        a(f"v_mul_f32 v{q}, {hex(f2u(1/512))}, v{q}")
        a(f"v_cvt_pk_bf16_f32 v{m}, v{m}, v{q}")
        a(f"v_mov_b32 v{t}, v{m}\ns_nop 1\nv_permlane32_swap_b32 v{m}, v{t}")
        a(f"v_cndmask_b32 v{m}, v{m}, v{t}, s[58:59]")
        a(f"v_and_b32 v{q}, 0xffff0000, v{m}\nv_lshlrev_b32 v{m}, 16, v{m}")
        a(f"v_add_f32 v{q}, {hex(f2u(1e-5))}, v{q}")
        a(f"v_cvt_pk_bf16_f32 v{q}, v{q}, v{q}\nv_and_b32 v{q}, 0xffff0000, v{q}\nv_sqrt_f32 v{q}, v{q}\ns_nop 0")
        a(f"v_cvt_pk_bf16_f32 v{q}, v{q}, v{q}\nv_and_b32 v{q}, 0xffff0000, v{q}\nv_rcp_f32 v{q}, v{q}")
    def ln_apply(vf, vt):
        m, q = vt + 16, vt + 18
        for i in range(4):
            a(f"v_lshlrev_b32 v{vt+2*i}, 16, v{vf+i}")
            a(f"v_and_b32 v{vt+1+2*i}, 0xffff0000, v{vf+i}")
        for i in range(8): a(f"v_sub_f32 v{vt+i}, v{vt+i}, v{m}")
        for i in range(4): a(f"v_cvt_pk_bf16_f32 v{vf+i}, v{vt+2*i}, v{vt+1+2*i}")
        for i in range(4):
            a(f"v_lshlrev_b32 v{vt+2*i}, 16, v{vf+i}")
            a(f"v_and_b32 v{vt+1+2*i}, 0xffff0000, v{vf+i}")
        for i in range(8): a(f"v_mul_f32 v{vt+i}, v{vt+i}, v{q}")
        for i in range(4): a(f"v_cvt_pk_bf16_f32 v{vf+i}, v{vt+2*i}, v{vt+1+2*i}")
    def layernorm(vx, vo, vt):
        f = [vt + i for i in range(8)]
        s_, t, u = vt + 8, vt + 9, vt + 10
        for i in range(4):
            a(f"v_lshlrev_b32 v{f[2*i]}, 16, v{vx+i}")
            a(f"v_and_b32 v{f[2*i+1]}, 0xffff0000, v{vx+i}")
        a(f"v_add_f32 v{s_}, v{f[0]}, v{f[1]}\nv_add_f32 v{t}, v{f[2]}, v{f[3]}\nv_add_f32 v{u}, v{f[4]}, v{f[5]}")
        a(f"v_add_f32 v{s_}, v{s_}, v{f[6]}\nv_add_f32 v{t}, v{t}, v{f[7]}\nv_add_f32 v{s_}, v{s_}, v{u}\nv_add_f32 v{s_}, v{s_}, v{t}")
        allreduce16(s_, t, "v_add_f32")
        a(f"v_mul_f32 v{s_}, {hex(f2u(1/512))}, v{s_}")
        m2 = vt + 11
        a(f"v_sub_f32 v{t}, v{f[0]}, v{s_}\nv_mul_f32 v{m2}, v{t}, v{t}")
        for i in range(1, 8):
            a(f"v_sub_f32 v{t}, v{f[i]}, v{s_}\nv_fmac_f32 v{m2}, v{t}, v{t}")
        allreduce16(m2, t, "v_add_f32")
        a(f"v_mul_f32 v{m2}, {hex(f2u(1/512))}, v{m2}")
        a(f"v_cvt_pk_bf16_f32 v{t}, v{s_}, v{m2}")
        a(f"v_lshlrev_b32 v{s_}, 16, v{t}\nv_and_b32 v{m2}, 0xffff0000, v{t}")
        a(f"v_add_f32 v{m2}, {hex(f2u(1e-5))}, v{m2}")
        a(f"v_cvt_pk_bf16_f32 v{m2}, v{m2}, v{m2}\nv_and_b32 v{m2}, 0xffff0000, v{m2}\nv_sqrt_f32 v{m2}, v{m2}")
        for i in range(8): a(f"v_sub_f32 v{f[i]}, v{f[i]}, v{s_}")
        a(f"v_cvt_pk_bf16_f32 v{m2}, v{m2}, v{m2}\nv_and_b32 v{m2}, 0xffff0000, v{m2}\nv_rcp_f32 v{m2}, v{m2}")
        for i in range(4): a(f"v_cvt_pk_bf16_f32 v{vo+i}, v{f[2*i]}, v{f[2*i+1]}")
        for i in range(4):
            a(f"v_lshlrev_b32 v{f[2*i]}, 16, v{vo+i}\nv_and_b32 v{f[2*i+1]}, 0xffff0000, v{vo+i}")
        for i in range(8): a(f"v_mul_f32 v{f[i]}, v{f[i]}, v{m2}")
        for i in range(4): a(f"v_cvt_pk_bf16_f32 v{vo+i}, v{f[2*i]}, v{f[2*i+1]}")
    FS = [52, 54, 56]
    def fconsts(vN):
        a(f"s_mov_b32 s{FS[0]}, 0x05040100\ns_mov_b32 s{FS[0]+1}, 0x07060302")
        a(f"s_mov_b32 s{FS[1]}, 0xffff0000\ns_mov_b32 s{FS[1]+1}, 0xffff0000")
        a(f"s_mov_b32 s{FS[2]}, 0\ns_mov_b32 s{FS[2]+1}, -1")
    def transpose8(src, dst):
        for j in range(8):
            for e in range(4):
                a(f"v_perm_b32 v{dst+4*j+e}, v{src+4*(2*e+1)+(j>>1)}, v{src+4*(2*e)+(j>>1)}, s{FS[0]+(j&1)}")
    def gemv_out(afrag, wfrag, voff, soff, tag, acc=32, out=64):
        for j in range(8):
            a(f"v_mfma_f32_16x16x32_bf16 v[{acc+4*j}:{acc+3+4*j}], v[{afrag}:{afrag+3}], v[{wfrag+4*j}:{wfrag+3+4*j}], 0")
        a("s_nop 4")
        for k in range(4):
            a(f"v_cndmask_b32 v{out+k}, v{acc+4*k}, v{acc+4*(4+k)}, s[{FS[1]}:{FS[1]+1}]")
        for k in range(4):
            a(f"v_cndmask_b32 v{out+4+k}, v{acc+1+4*k}, v{acc+1+4*(4+k)}, s[{FS[1]}:{FS[1]+1}]")
        for k in range(4):
            a(f"v_cndmask_b32 v{out+k}, v{out+k}, v{out+4+k}, s[{FS[2]}:{FS[2]+1}]")
        for k in range(4):
            a(f"v_bfi_b32 v{out+k}, s100, v{tag+k}, v{out+k}")
        a(f"buffer_store_dwordx4 v[{out}:{out+3}], v{voff}, s[8:11], s{soff} offen sc1")
    def utags(vN, tag):
        if tag != vN: a(f"v_mov_b32 v{tag}, v{vN}")
        a(f"v_lshrrev_b32 v{tag+1}, 8, v{vN}\nv_lshrrev_b32 v{tag+2}, 16, v{vN}\nv_lshrrev_b32 v{tag+3}, 24, v{vN}")
    def ftags(vN, tag, voff, t):
        a(f"v_and_b32 v{t}, 1, v2\nv_lshlrev_b32 v{voff}, 5, v3\nv_lshl_add_u32 v{voff}, v{t}, 4, v{voff}")
        utags(vN, tag)
    def psleep():
        if cfg.poll_sleep: a(f"s_sleep {cfg.poll_sleep}")
    def budget():
        a(f"s_mov_b32 s96, {cfg.spin}")
    stubs = []
    def spend(exit_label):
        a("s_sub_u32 s96, s96, 1")
        if cfg.dbgspin:
            stubs.append(exit_label)
            a(f"s_cbranch_scc1 .Lstub{len(stubs)}")
        else:
            a(f"s_cbranch_scc1 {exit_label}")

    if cfg.ts:
        for i in range(1, 16): a(f"s_mov_b32 s{64+2*i}, 0")
    ts(0)
    if cfg.probe: a("s_mov_b32 s64, 0")
    a("s_cmp_ge_u32 s2, 128")
    a("s_cbranch_scc1 .L_A")
    XN = 0x20000; XNS = 1088
    QV = 0; QS = 1024; SC = 2048; XX = 2560; YY = 3200
    a("s_load_dwordx2 s[12:13], s[0:1], 88")
    a("s_memrealtime s[48:49]")
    a("s_load_dwordx2 s[16:17], s[0:1], 16")
    a("s_load_dwordx2 s[4:5], s[0:1], 0")
    a("s_load_dwordx2 s[20:21], s[0:1], 24")
    a("s_load_dwordx2 s[8:9], s[0:1], 96")
    a("v_lshrrev_b32 v1, 6, v0")
    a("v_and_b32 v0, 63, v0")
    a("v_readfirstlane_b32 s3, v1")
    a("s_and_b32 s41, s2, 7\ns_lshl_b32 s41, s41, 2\ns_lshr_b32 s43, s2, 5\ns_add_u32 s41, s41, s43")
    a("s_bfe_u32 s42, s2, 0x20003")
    srd(16, 4194304); srd(4, 2048); srd(12, 256); srd(20, 4194304); srd(8, WS_SIZE)
    a("v_lshrrev_b32 v2, 4, v0")
    a("v_and_b32 v3, 15, v0")
    a("v_lshlrev_b32 v4, 1, v2")
    a("v_xor_b32 v4, v3, v4")
    a("v_lshlrev_b32 v4, 4, v4")
    a("v_lshl_add_u32 v5, v2, 13, v4")
    a("v_xor_b32 v6, 0x80, v5")
    a("s_lshl_b32 s44, s42, 20\ns_lshl_b32 s43, s3, 17\ns_add_u32 s44, s44, s43\ns_lshl_b32 s45, s41, 8\ns_add_u32 s44, s44, s45")
    a("s_lshl_b32 s46, s3, 12")
    a("v_lshlrev_b32 v8, 4, v0")
    a("v_mov_b32 v9, 0")
    a("s_lshl_b32 s47, s3, 10")
    a("s_mov_b32 m0, s46")
    a("s_or_b32 s45, s2, s3")
    a("s_cmp_lg_u32 s45, 0")
    a("s_waitcnt lgkmcnt(0)")
    ts(1)
    a("s_cbranch_scc1 .LW_nogen")
    if cfg.dbgt or cfg.probe:
        a("v_mov_b32 v12, s48")
        a(f"buffer_store_dword v12, v9, s[12:15], 0 offen offset:{132 if cfg.probe else 4} sc1")
    a("s_mul_i32 s48, s48, 0x9E3779B1")
    a("s_lshr_b32 s49, s48, 15\ns_xor_b32 s48, s48, s49")
    a("s_mul_i32 s48, s48, 0x85EBCA6B")
    a("s_lshr_b32 s49, s48, 13\ns_xor_b32 s48, s48, s49")
    a("s_max_u32 s48, s48, 1")
    a("v_mov_b32 v12, s48")
    a("v_lshlrev_b32 v13, 7, v0")
    a("s_mov_b64 exec, 3")
    a("buffer_store_dword v12, v13, s[12:15], 0 offen sc1")
    a("s_mov_b64 exec, -1")
    a(".LW_nogen:")
    a("s_lshl_b32 s49, s41, 12")
    a("s_cmp_gt_u32 s3, 1")
    a("s_cbranch_scc1 .LW_nox")
    a("buffer_load_dwordx4 v[12:15], v8, s[4:7], s47 offen")
    a(".LW_nox:")
    a("s_mov_b32 s45, s44")
    for i in range(4):
        if i: a("s_add_u32 m0, m0, 1024\ns_add_u32 s45, s45, 32768")
        a(f"buffer_load_dwordx4 v{5 if i < 2 else 6}, s[16:19], s45 offen {NT} lds")
    a("s_cmp_lg_u32 s3, 2")
    a("s_cbranch_scc1 .LW_nowarm")
    a(f"s_lshl_b32 s45, s42, 10\ns_add_u32 s45, s45, s49")
    if WS_H1: a(f"s_add_u32 s45, s45, {WS_H1}")
    a("buffer_load_dwordx4 v[12:15], v8, s[8:11], s45 offen sc1")
    a(".LW_nowarm:")
    a("v_xor_b32 v7, v3, v2\nv_lshlrev_b32 v7, 4, v7\nv_lshl_add_u32 v7, v2, 13, v7")
    a("s_add_u32 m0, s46, 0x8000")
    a("s_mov_b32 s45, s44")
    for i in range(4):
        if i: a(f"v_xor_b32 v10, {64*i}, v7\ns_add_u32 m0, m0, 1024\ns_add_u32 s45, s45, 32768")
        a(f"buffer_load_dwordx4 v{10 if i else 7}, s[20:23], s45 offen {NT} lds")
    ts(2)
    a("s_load_dwordx2 s[24:25], s[0:1], 32")
    a("s_load_dwordx2 s[28:29], s[0:1], 40")
    a("s_load_dwordx4 s[36:39], s[0:1], 56")
    if cfg.w_pf:
        a("s_load_dwordx2 s[16:17], s[0:1], 8")
        a("s_mov_b32 s18, 16777216")
    srd(24, 4194304); srd(28, 4194304)
    a("v_and_b32 v25, 1, v0")
    a("s_cmp_gt_u32 s3, 1")
    a("s_cbranch_scc1 .LW_noln")
    a("s_waitcnt vmcnt(8)")
    layernorm(12, 16, 40)
    a(f"s_mul_i32 s45, s3, {XNS}\ns_add_u32 s45, s45, {XN}")
    a("v_add_u32 v10, s45, v8")
    a("ds_write_b128 v10, v[16:19]")
    a(".LW_noln:")
    a(f"s_sub_u32 s97, s2, {cfg.f1_rot}\ns_and_b32 s97, s97, 127")
    a("s_cmp_lt_u32 s97, 88\ns_cselect_b32 s62, s3, 4\ns_lshr_b32 s62, s62, 2\ns_xor_b32 s62, s62, 1")
    if cfg.nof1 or cfg.f1_on != "W": a("s_mov_b32 s62, 0")
    a("s_and_b32 s63, s2, 7\ns_lshl_b32 s63, s63, 1\ns_bfe_u32 s45, s3, 0x10001\ns_add_u32 s63, s63, s45")
    a(f"v_mul_u32_u24 v26, {XNS}, v25\nv_lshl_add_u32 v26, v2, 4, v26")
    a(f"s_lshl_b32 s45, s63, 6\ns_add_u32 s45, s45, {XN}\nv_add_u32 v23, s45, v26")
    a(f"s_lshl_b32 s45, s42, 8\ns_add_u32 s45, s45, {XN}\nv_add_u32 v24, s45, v26")
    a("v_lshrrev_b32 v20, 2, v3\nv_and_b32 v21, 1, v2\nv_lshlrev_b32 v21, 3, v21\nv_lshl_add_u32 v21, v20, 1, v21")
    a("v_bfe_u32 v22, v0, 1, 1\ns_lshl_b32 s45, s3, 1\nv_add_u32 v22, s45, v22\nv_xor_b32 v22, v22, v21\nv_lshlrev_b32 v22, 4, v22")
    a("v_lshl_add_u32 v20, v2, 3, v20\nv_lshl_add_u32 v22, v20, 8, v22\nv_lshl_add_u32 v11, v25, 3, v22")
    a("v_lshlrev_b32 v16, 9, v25\nv_lshl_add_u32 v16, v2, 4, v16")
    a("s_lshl_b32 s51, s42, 10\ns_lshl_b32 s45, s3, 6\ns_add_u32 s51, s51, s45\ns_add_u32 s51, s51, s49")
    a("s_lshl_b32 s50, s41, 2\ns_add_u32 s50, s50, s42")
    a("v_mul_u32_u24 v26, 272, v25\nv_lshl_add_u32 v26, v2, 4, v26")
    a("v_lshrrev_b32 v21, 3, v0\nv_lshlrev_b32 v1, 10, v21\nv_cmp_ne_u32 s[98:99], s42, v21\nv_bfe_u32 v21, v0, 2, 1\nv_lshl_add_u32 v1, v21, 9, v1\nv_and_b32 v22, 3, v0\nv_lshl_add_u32 v1, v22, 4, v1")
    a("s_mov_b32 s99, 0")
    a("v_lshl_add_u32 v29, v22, 4, v21\nv_lshlrev_b32 v29, 2, v29")
    a("v_mul_u32_u24 v21, 272, v21\nv_lshl_add_u32 v22, v22, 3, v21\ns_lshl_b32 s45, s3, 5\nv_add_u32 v22, s45, v22")
    a("s_lshl_b32 s57, s3, 6\ns_add_u32 s57, s57, s49")
    a("v_xor_b32 v21, v2, v3\nv_lshlrev_b32 v21, 4, v21\nv_lshl_add_u32 v21, v3, 8, v21\nv_add_u32 v21, s46, v21")
    a(f"s_waitcnt vmcnt({cfg.ns_cnt})")
    a("s_load_dword s40, s[12:13], 0")
    a("s_waitcnt vmcnt(4) lgkmcnt(0)")
    budget()
    a(".LW_nchk:")
    a("s_cmp_lg_u32 s40, 0")
    a("s_cbranch_scc1 .LW_ngot")
    spend(".LW_ngot")
    a("buffer_load_dword v27, v9, s[12:15], 0 offen offset:128 sc1")
    a("s_waitcnt vmcnt(0)")
    a("v_readfirstlane_b32 s40, v27")
    a("s_branch .LW_nchk")
    a(".LW_ngot:")
    a("v_mov_b32 v27, s40")
    ts(4)
    a("s_barrier")
    ts(5)
    for s in range(4):
        a(f"ds_read_b128 v[{32+4*s}:{35+4*s}], v24 offset:{64*s}")
        a(f"ds_read_b64_tr_b16 v[{48+4*s}:{49+4*s}], v11 offset:{(32*s)*256}")
        a(f"ds_read_b64_tr_b16 v[{50+4*s}:{51+4*s}], v11 offset:{(32*s+4)*256}")
    a("ds_read_b128 v[128:131], v23")
    a("v_add_u32 v23, 0x10000, v22\nv_add_u32 v24, 0x10000, v26")
    utags(27, 17)
    a("s_getreg_b32 s101, hwreg(HW_REG_XCC_ID, 0, 4)\ns_add_u32 s101, s101, 1")
    for k in range(4): a(f"v_xor_b32 v{200+k}, s101, v{17+k}")
    a("s_movk_i32 s100, 0xff")
    a("v_and_b32 v28, 3, v0\nv_lshlrev_b32 v28, 3, v28\nv_lshrrev_b32 v28, v28, v27")
    a("s_waitcnt lgkmcnt(10)")
    a("v_mfma_f32_16x16x32_bf16 v[192:195], v[48:51], v[32:35], 0")
    a("s_waitcnt lgkmcnt(7)")
    a("v_mfma_f32_16x16x32_bf16 v[196:199], v[52:55], v[36:39], 0")
    a("s_waitcnt lgkmcnt(4)")
    a("v_mfma_f32_16x16x32_bf16 v[192:195], v[56:59], v[40:43], v[192:195]")
    a("s_waitcnt lgkmcnt(1)")
    a("v_mfma_f32_16x16x32_bf16 v[196:199], v[60:63], v[44:47], v[196:199]")
    def f1loads():
        a("s_cmp_eq_u32 s62, 0")
        a("s_cbranch_scc1 .LW_nof1")
        a("s_bitcmp1_b32 s3, 0")
        a("s_cselect_b32 s32, s38, s36\ns_cselect_b32 s33, s39, s37")
        srd(32, 1409024)
        a("v_mul_u32_u24 v46, 22016, v2\nv_lshl_add_u32 v46, v3, 4, v46")
        a(f"s_mul_i32 s48, s63, {32*2752}\ns_lshr_b32 s44, s97, 3\ns_lshl_b32 s44, s44, 8\ns_add_u32 s48, s48, s44")
        for i in range(8):
            a(f"buffer_load_dwordx4 v[{132+4*i}:{135+4*i}], v46, s[32:35], s48 offen {NT}")
            if i < 7: a("s_add_u32 s48, s48, 2752")
        a(".LW_nof1:")
    def exchange(acc, acc2, area, lab, dst, wreg=22, hook=None):
        a(f"s_add_u32 s45, s51, {area}" if area else "s_mov_b32 s45, s51")
        a(f"s_add_u32 s47, s57, {area}" if area else "s_mov_b32 s47, s57")
        budget()
        for k in range(4): a(f"v_mov_b32 v{204+k}, v{200+k}")
        a("s_nop 0")
        for k in range(4): a(f"v_add_f32 v{acc+k}, v{acc+k}, v{acc2+k}")
        a("s_mov_b32 exec_lo, 0x00030003\ns_mov_b32 exec_hi, 0x00030003")
        for k in range(4): a(f"v_bfi_b32 v{acc2+k}, s100, v{200+k}, v{acc+k}")
        a(f"buffer_store_dwordx4 v[{acc2}:{acc2+3}], v16, s[8:11], s45 offen {cfg.fst}")
        a("s_mov_b64 exec, -1")
        if cfg.xts == lab: ts(1)
        if hook: hook()
        for k in range(4): a(f"ds_bpermute_b32 v{40+k}, v29, v{acc+k}")
        a("s_mov_b64 exec, s[98:99]")
        a(f"{lab}_p:")
        a(f"buffer_load_dwordx4 v[32:35], v1, s[8:11], s47 offen {cfg.fld}")
        a("s_waitcnt vmcnt(0)")
        a("v_xor_b32 v36, v32, v204")
        for k in range(1, 4): a(f"v_bitop3_b32 v36, v36, v{32+k}, v{204+k} bitop3:0xf6")
        a("v_and_b32 v36, 0xff, v36")
        a("v_cmp_ne_u32 vcc, 0, v36")
        a(f"s_cbranch_vccz {lab}_g")
        spend(f"{lab}_g")
        if cfg.x_sleep: a(f"s_sleep {cfg.x_sleep}")
        a(f"s_cmp_gt_u32 s96, {cfg.spin - cfg.fast_tries}")
        a(f"s_cbranch_scc1 {lab}_p")
        a(f"s_xor_b32 s47, s47, {WS_SLOW}")
        for k in range(4): a(f"v_xor_b32 v{204+k}, s101, v{204+k}")
        a(f"s_cmp_lg_u32 s96, {cfg.spin - cfg.fast_tries}")
        a(f"s_cbranch_scc1 {lab}_p")
        slow_copy(acc, acc2, area)
        a("s_mov_b64 exec, s[98:99]")
        a(f"s_branch {lab}_p")
        a(f"{lab}_g:")
        a("s_mov_b64 exec, -1")
        if cfg.xts == lab and cfg.ts:
            ts(2)
            a(f"s_sub_u32 s72, {cfg.spin}, s96\ns_mul_i32 s72, s72, 100\ns_add_u32 s72, s72, s64\ns_add_u32 s72, s72, 100")
        a("s_waitcnt lgkmcnt(0)")
        for k in range(4): a(f"v_cndmask_b32 v{32+k}, v{40+k}, v{32+k}, s[98:99]")
        for k in range(4): a(f"v_add_f32_dpp v{32+k}, v{32+k}, v{32+k} row_ror:8 row_mask:0xf bank_mask:0xf")
        for k in range(4): a(f"v_mov_b32 v{36+k}, v{32+k}")
        for k in range(4): a(f"v_permlane16_swap_b32 v{32+k}, v{36+k}")
        for k in range(4): a(f"v_add_f32 v{32+k}, v{32+k}, v{36+k}")
        a("s_mov_b64 exec, 0xff")
        a("v_cvt_pk_bf16_f32 v32, v32, v33\nv_cvt_pk_bf16_f32 v33, v34, v35")
        a(f"ds_write_b64 v{wreg}, v[32:33] offset:{dst}")
        a("s_mov_b64 exec, -1")
    def slow_copy(acc, acc2, area):
        a(f"s_add_u32 s45, s51, {area + WS_SLOW}")
        a("s_mov_b32 exec_lo, 0x00030003\ns_mov_b32 exec_hi, 0x00030003")
        for k in range(4): a(f"v_bfi_b32 v{acc2+k}, s100, v{17+k}, v{acc+k}")
        a(f"buffer_store_dwordx4 v[{acc2}:{acc2+3}], v16, s[8:11], s45 offen sc1")
        a("s_mov_b64 exec, -1")
    exchange(192, 196, WS_H1, ".LW_h1", QV, 23, f1loads if cfg.f1_early == 2 else None)
    ts(6)
    for sq in range(4):
        if sq: a(f"v_xor_b32 v10, {64*sq}, v21")
        a(f"ds_read_b128 v[{48+4*sq}:{51+4*sq}], v{10 if sq else 21} offset:32768")
    a("s_and_b32 s45, s3, 1\ns_lshl_b32 s45, s45, 4")
    a("v_lshl_add_u32 v10, v2, 2, s45")
    a("v_lshrrev_b32 v10, v10, v27")
    for r in range(4):
        a(f"v_bfe_u32 v{72+r}, v10, {r}, 1\nv_lshlrev_b32 v{72+r}, 16, v{72+r}")
    for r in range(4): a(f"v_xor_b32 v{76+r}, 0x10000, v{72+r}")
    a("v_lshlrev_b32 v10, 8, v25\nv_lshl_add_u32 v10, v2, 3, v10\ns_lshl_b32 s45, s3, 5\nv_add_u32 v10, s45, v10")
    a(f"s_mov_b32 s47, {hex(f2u(QSCALE))}\ns_mov_b32 s53, 0xfffe0000\ns_mov_b32 s52, 0x07060302")
    a("s_waitcnt lgkmcnt(0)")
    a("s_barrier")
    for sq in range(4):
        a(f"ds_read_b128 v[{32+4*sq}:{35+4*sq}], v24 offset:{QV+64*sq}")
    a("s_waitcnt lgkmcnt(2)")
    a("v_mfma_f32_16x16x32_bf16 v[64:67], v[48:51], v[32:35], 0")
    a("v_mfma_f32_16x16x32_bf16 v[68:71], v[52:55], v[36:39], 0")
    a("s_waitcnt lgkmcnt(0)")
    a("v_mfma_f32_16x16x32_bf16 v[64:67], v[56:59], v[40:43], v[64:67]")
    a("v_mfma_f32_16x16x32_bf16 v[68:71], v[60:63], v[44:47], v[68:71]")
    a("s_mov_b32 exec_lo, 0x00030003\ns_mov_b32 exec_hi, 0x00030003")
    a("s_nop 5")
    for k in range(4): a(f"v_add_f32 v{64+k}, v{64+k}, v{68+k}")
    for k in range(4): a(f"v_mul_f32 v{64+k}, s47, v{64+k}")
    for k in range(4): a(f"v_add_u32 v{64+k}, v{64+k}, v{76+k}")
    for k in range(4): a(f"v_and_or_b32 v{64+k}, v{64+k}, s53, v{72+k}")
    a("v_perm_b32 v64, v65, v64, s52\nv_perm_b32 v65, v67, v66, s52")
    a(f"ds_write_b64 v10, v[64:65] offset:{QS}")
    a("s_mov_b64 exec, -1")
    a("s_waitcnt lgkmcnt(0)")
    def uvprep():
        a("v_and_b32 v12, 1, v2\nv_lshlrev_b32 v12, 5, v12\nv_lshrrev_b32 v13, 1, v2\nv_lshl_add_u32 v12, v13, 4, v12")
        a("v_lshl_add_u32 v12, v12, 13, v4\nv_xor_b32 v13, 0x80, v12")
        a("s_and_b32 s48, s3, 3")
        a("s_lshl_b32 s44, s42, 20\ns_lshl_b32 s45, s48, 15\ns_add_u32 s44, s44, s45\ns_lshl_b32 s45, s41, 8\ns_add_u32 s44, s44, s45")
    def uvload():
        for i in range(8):
            if i == 4: a(f"s_add_u32 m0, m0, {16384 - 3072}\ns_add_u32 s44, s44, {64*8192 - 3*8192}")
            elif i: a("s_add_u32 m0, m0, 1024\ns_add_u32 s44, s44, 8192")
            a(f"buffer_load_dwordx4 v{12 if (i & 3) < 2 else 13}, s[24:27], s44 offen {NT} lds")
    if cfg.uv_early: uvprep()
    a("s_barrier")
    a("s_cmp_lg_u32 s3, 4")
    a("s_cbranch_scc1 .LW_noq")
    a(f"ds_read_b128 v[32:35], v8 offset:{QS}")
    a("v_lshlrev_b32 v36, 15, v2\nv_lshl_add_u32 v36, v3, 4, v36")
    a(f"s_lshl_b32 s45, s41, 10\ns_lshl_b32 s47, s42, 8\ns_add_u32 s45, s45, s47\ns_add_u32 s45, s45, {WS_Q}")
    a("s_mov_b32 exec_hi, 0")
    a("s_waitcnt lgkmcnt(0)")
    a("buffer_store_dwordx4 v[32:35], v36, s[8:11], s45 offen sc1")
    if cfg.qhint:
        a(f"s_lshl_b32 s45, s50, 7\ns_add_u32 s45, s45, {WS_QF}\ns_mov_b64 exec, 1")
        a("buffer_store_dword v27, v9, s[8:11], s45 offen sc1")
    a("s_mov_b64 exec, -1")
    ts(7)
    a(".LW_noq:")
    if cfg.w_pf:
        a("s_cmp_gt_u32 s3, 3")
        a("s_cbranch_scc1 .LW_nocpf")
        a("s_bfe_u32 s45, s2, 0x10002\ns_lshl_b32 s45, s45, 6\ns_lshr_b32 s47, s2, 3\ns_lshl_b32 s47, s47, 2\ns_add_u32 s45, s45, s47\ns_and_b32 s47, s2, 3\ns_add_u32 s45, s45, s47")
        a(f"s_lshl_b32 s45, s45, 17\ns_lshl_b32 s47, s3, 15\ns_add_u32 s45, s45, s47\ns_add_u32 s45, s45, {31 * 1024}")
        for i in range(cfg.w_pf):
            a(f"buffer_load_dwordx4 v[{208+4*(i&7)}:{211+4*(i&7)}], v8, s[16:19], s45 offen {cfg.w_pf_nt}")
            if i < cfg.w_pf - 1: a("s_sub_u32 s45, s45, 1024")
        a(".LW_nocpf:")
    if cfg.uv_early:
        a("s_cmp_lt_u32 s3, 4")
        a("s_cbranch_scc1 .LW_nouv")
        a("s_lshl_b32 s45, s48, 12\ns_add_u32 m0, s45, 0x10000\ns_nop 0")
        uvload()
        a(".LW_nouv:")
    if cfg.use_go:
        a(f"s_cmp_lg_u32 s3, {cfg.go_wave}")
        a("s_cbranch_scc1 .LW_go")
        if cfg.go_skip:
            a("s_lshr_b32 s45, s2, 5\ns_cmp_eq_u32 s45, 1\ns_cbranch_scc1 .LW_go")
        a(f"s_lshl_b32 s45, s2, 7\ns_add_u32 s45, s45, {WS_GO}")
        a("s_mov_b64 exec, 1")
        budget()
        a(".LW_gop:")
        spend(".LW_gog")
        a("buffer_load_dword v37, v9, s[8:11], s45 offen sc1")
        a("s_waitcnt vmcnt(0)")
        a("v_readfirstlane_b32 s47, v37")
        a("s_cmp_eq_u32 s47, s40")
        a("s_cbranch_scc1 .LW_gog")
        a(f"s_sleep {cfg.go_sleep}")
        a("s_branch .LW_gop")
        a(".LW_gog:")
        a("s_mov_b64 exec, -1")
    a(".LW_go:")
    if cfg.tlbw:
        a(f"s_cmp_lg_u32 s3, 5")
        a("s_cbranch_scc1 .LW_notlb")
        a("s_waitcnt lgkmcnt(0)")
        a(f"v_lshlrev_b32 v44, {cfg.tlbw}, v0")
        n = (1 << 20) >> cfg.tlbw
        a(f"s_mov_b64 exec, {(1 << min(n, 32)) - 1}" if n < 64 else "s_nop 0")
        a("s_lshl_b32 s45, s42, 20")
        a("buffer_load_dword v45, v44, s[24:27], s45 offen")
        a("s_mov_b32 s32, s36\ns_mov_b32 s33, s37")
        srd(32, 1409024)
        a("s_and_b32 s45, s2, 7\ns_mul_i32 s45, s45, 176128")
        a(f"s_mov_b64 exec, {(1 << max(1, min(n // 4, 32))) - 1}")
        a("buffer_load_dword v45, v44, s[32:35], s45 offen")
        a("s_mov_b32 s32, s38\ns_mov_b32 s33, s39")
        a("buffer_load_dword v45, v44, s[32:35], s45 offen")
        a("s_lshl_b32 s45, s41, 17")
        a(f"s_mov_b64 exec, {(1 << max(1, min(n // 8, 32))) - 1}")
        a("buffer_load_dword v45, v44, s[28:31], s45 offen")
        a("s_mov_b64 exec, 1")
        a(f"s_lshl_b32 s45, s41, 17\ns_add_u32 s45, s45, {WS_O}")
        a("buffer_load_dword v45, v9, s[8:11], s45 offen offset:0")
        a(f"s_mov_b32 s45, {WS_S + 0x40000}")
        a("buffer_load_dword v45, v9, s[8:11], s45 offen")
        a(f"s_mov_b32 s45, {WS_ML + 0x40000}")
        a("buffer_load_dword v45, v9, s[8:11], s45 offen")
        a("s_mov_b64 exec, -1")
        a(".LW_notlb:")
    def f1proc(skip):
        a("s_cmp_eq_u32 s62, 0")
        a(f"s_cbranch_scc1 {skip}")
        fconsts(27)
        ftags(27, 40, 44, 45)
        a("v_lshrrev_b32 v45, 1, v2\nv_lshl_add_u32 v44, v45, 9, v44")
        a(f"s_lshr_b32 s61, s97, 3\ns_lshl_b32 s61, s61, 15\ns_and_b32 s45, s3, 1\ns_lshl_b32 s45, s45, 14\ns_add_u32 s61, s61, s45\ns_lshl_b32 s45, s63, 10\ns_add_u32 s61, s61, s45\ns_add_u32 s61, s61, {WS_G}")
        a("s_waitcnt vmcnt(0)")
        transpose8(132, 164)
        a("s_nop 0")
        gemv_out(128, 164, 44, 61, 40, acc=64, out=96)
        ts(13)
        a("s_lshl_b32 s57, s3, 6\ns_add_u32 s57, s57, s49")
    if cfg.f1_early == 1: f1loads()
    if cfg.f1_early == 2:
        f1proc(".LW_nof3")
        a(".LW_nof3:")
    if not cfg.uv_early: uvprep()
    a("v_lshl_add_u32 v14, v2, 10, v4\nv_xor_b32 v15, 0x80, v14")
    a("s_lshl_b32 s43, s41, 17\ns_lshl_b32 s45, s48, 14\ns_add_u32 s43, s43, s45\ns_lshl_b32 s45, s42, 8\ns_add_u32 s43, s43, s45")
    a("s_lshl_b32 s48, s48, 12\ns_add_u32 m0, s48, 0x10000")
    a("s_barrier")
    ts(8)
    if cfg.late_slow: slow_copy(192, 196, WS_H1)
    a("s_cmp_lt_u32 s3, 4")
    a("s_cbranch_scc1 .LW_f1")
    if not cfg.uv_early: uvload()
    a("s_add_u32 m0, s48, 0x18000")
    for i in range(8):
        if i == 4: a(f"s_add_u32 m0, m0, {16384 - 3072}\ns_add_u32 s43, s43, {65536 - 3*4096}")
        elif i: a("s_add_u32 m0, m0, 1024\ns_add_u32 s43, s43, 4096")
        else: a("s_nop 0")
        a(f"buffer_load_dwordx4 v{14 if (i & 3) < 2 else 15}, s[28:31], s43 offen {NT} lds")
    a("s_cmp_lg_u32 s3, 6")
    a("s_cbranch_scc1 .LW_nowarm2")
    a(f"s_lshl_b32 s45, s42, 10\ns_add_u32 s45, s45, s49\ns_add_u32 s45, s45, {WS_H4}")
    a(f"buffer_load_dwordx4 v[32:35], v8, s[8:11], s45 offen sc1")
    a(".LW_nowarm2:")
    a("s_waitcnt vmcnt(0)")
    a("s_branch .LW_nof2")
    a(".LW_f1:")
    if cfg.f1_on == "W":
        if not cfg.f1_early: f1loads()
        if cfg.f1_early != 2: f1proc(".LW_nof2")
    a(".LW_nof2:")
    a("v_lshl_add_u32 v12, v2, 8, v4")
    a("s_add_u32 s45, s46, 0x20000\nv_add_u32 v14, s45, v12\nv_xor_b32 v15, 0x80, v14")
    if cfg.olay == "c":
        a(f"s_lshl_b32 s44, s50, 15\ns_add_u32 s44, s44, s46\ns_add_u32 s44, s44, {WS_O}")
        a("s_mov_b32 s32, s44\ns_mov_b32 s33, s44\ns_mov_b32 s34, s44")
    else:
        a("v_lshl_add_u32 v12, v2, 15, v4")
        a(f"s_lshl_b32 s44, s50, 8\ns_lshl_b32 s32, s3, 19\ns_add_u32 s44, s44, s32\ns_add_u32 s44, s44, {WS_O}")
        a(f"s_add_u32 s32, s44, {131072 - 1024}\ns_add_u32 s33, s44, {2*(131072 - 1024)}\ns_add_u32 s34, s44, {3*(131072 - 1024)}")
    a("v_xor_b32 v13, 0x80, v12")
    a("s_mov_b32 s46, s45")
    for k in range(4):
        a(f"v_bfe_u32 v10, v28, {2*k}, 1\nv_bfe_u32 v21, v28, {2*k+1}, 1\nv_lshl_or_b32 v{40+k}, v21, 16, v10")
    a("v_mul_u32_u24 v21, 272, v25\nv_lshl_add_u32 v21, v2, 3, v21\ns_lshl_b32 s45, s3, 5\nv_add_u32 v21, s45, v21")
    a("v_lshlrev_b32 v23, 4, v2")
    a("v_add_u32 v10, 0x10000, v11\nv_add_u32 v11, 0x20000, v11")
    a("s_mov_b32 s52, 0xaaaaaaaa\ns_mov_b32 s53, 0xaaaaaaaa")
    ts(9)
    a("s_barrier")
    for s in range(4):
        a(f"ds_read_b64_tr_b16 v[{96+4*s}:{97+4*s}], v10 offset:{(32*s)*256}")
        a(f"ds_read_b64_tr_b16 v[{98+4*s}:{99+4*s}], v10 offset:{(32*s+4)*256}")
    a("s_waitcnt lgkmcnt(4)")
    for s in range(4):
        a(f"ds_read_b64_tr_b16 v[{112+4*s}:{113+4*s}], v10 offset:{32768+(32*s)*256}")
        a(f"ds_read_b64_tr_b16 v[{114+4*s}:{115+4*s}], v10 offset:{32768+(32*s+4)*256}")
    a("s_cmp_lg_u32 s3, 0")
    a("s_cbranch_scc1 .LW_mlw")
    a("v_lshlrev_b32 v24, 11, v0")
    a(f"s_lshl_b32 s45, s42, 9\ns_lshl_b32 s47, s41, 4\ns_add_u32 s45, s45, s47\ns_add_u32 s45, s45, {WS_ML}\ns_add_u32 s47, s45, {64*2048}")
    budget()
    a("s_and_b32 s48, s2, 63")
    a("s_lshl_b64 exec, 1, s48")
    a(".LW_ml1:")
    spend(".LW_ml2")
    psleep()
    a("buffer_load_dwordx4 v[32:35], v24, s[8:11], s45 offen sc1")
    a("s_waitcnt vmcnt(0)")
    a("v_cmp_ne_u32 vcc, s40, v34")
    a("s_cbranch_vccnz .LW_ml1")
    a(".LW_ml2:")
    ts(3)
    budget()
    a("s_mov_b64 s[58:59], -1\ns_mov_b64 s[60:61], -1")
    a(".LW_mlp:")
    spend(".LW_mlx")
    a("s_mov_b64 exec, s[58:59]")
    a("s_cbranch_execz .LW_mls0")
    a("buffer_load_dwordx4 v[32:35], v24, s[8:11], s45 offen sc1")
    a(".LW_mls0:")
    a("s_mov_b64 exec, s[60:61]")
    a("s_cbranch_execz .LW_mls1")
    a("buffer_load_dwordx4 v[36:39], v24, s[8:11], s47 offen sc1")
    a(".LW_mls1:")
    a("s_mov_b64 exec, -1")
    a("s_waitcnt vmcnt(0)")
    a("v_cmp_ne_u32 s[58:59], s40, v34")
    a("v_cmp_ne_u32 s[60:61], s40, v38")
    a("s_or_b64 vcc, s[58:59], s[60:61]")
    a("s_cbranch_vccnz .LW_mlp")
    a(".LW_mlx:")
    a("s_mov_b64 exec, -1")
    def scales():
        a("v_mov_b32 v48, v32\nv_mov_b32 v49, v36")
        allreduce2(48, 49, 50, 51, "v_max_f32")
        a("v_sub_f32 v48, v32, v48\nv_sub_f32 v49, v36, v49")
        a("v_exp_f32 v48, v48\nv_exp_f32 v49, v49")
        if cfg.oswz: a("s_and_b32 s45, s50, 63\nv_xor_b32 v50, s45, v0\nv_lshlrev_b32 v50, 1, v50")
        else: a("v_lshlrev_b32 v50, 1, v0")
        a("v_mul_f32 v52, v48, v33\nv_mul_f32 v53, v49, v37")
        allreduce2(52, 53, 54, 55, "v_add_f32")
        a("v_rcp_f32 v52, v52\nv_rcp_f32 v53, v53")
        a("s_nop 0")
        a("v_mul_f32 v48, v48, v52\nv_mul_f32 v49, v49, v53")
        a("v_cvt_pk_bf16_f32 v48, v48, v49")
        a(f"ds_write_b16 v50, v48 offset:{SC}")
        a(f"ds_write_b16_d16_hi v50, v48 offset:{SC+128}")
    def paydma():
        a("s_mov_b32 m0, s46")
        for i in range(4):
            if i == 0: a("s_nop 0")
            a(f"buffer_load_dwordx4 v{12 if i < 2 else 13}, s[8:11], s{(44, 32, 33, 34)[i]} offen offset:{1024*i} sc1 lds")
    if cfg.sc_first:
        scales()
        a("s_waitcnt lgkmcnt(0)")
        a(".LW_mlw:")
        a("s_barrier")
        ts(10)
        paydma()
        for s_ in range(4): a(f"ds_read_b128 v[{48+4*s_}:{51+4*s_}], v23 offset:{SC+64*s_}")
    else:
        a(".LW_mlw:")
        a("s_barrier")
        ts(10)
        paydma()
        a("s_cmp_lg_u32 s3, 0")
        a("s_cbranch_scc1 .LW_scw")
        scales()
        a(".LW_scw:")
        if cfg.sc_pre:
            a("s_waitcnt lgkmcnt(0)")
            a("s_barrier")
            for s_ in range(4): a(f"ds_read_b128 v[{48+4*s_}:{51+4*s_}], v23 offset:{SC+64*s_}")
    budget()
    a(".LW_pv:")
    a("s_waitcnt vmcnt(0)")
    for i in range(4):
        a(f"ds_read_b128 v[{64+4*i}:{67+4*i}], v{14 if i < 2 else 15} offset:{1024*i}")
    for i in range(4):
        a(f"s_waitcnt lgkmcnt({3-i})")
        for k in range(4):
            a(f"v_xor_b32 v{44+i}, v{64+4*i}, v40" if k == 0 else f"v_bitop3_b32 v{44+i}, v{44+i}, v{64+4*i+k}, v{40+k} bitop3:0xf6")
    a("v_or3_b32 v39, v44, v45, v46\nv_or_b32 v39, v39, v47")
    a("v_and_b32 v39, 0x10001, v39")
    a("v_cmp_ne_u32 vcc, 0, v39")
    a("s_cbranch_vccz .LW_pk")
    spend(".LW_pk")
    if cfg.pay_sleep: a(f"s_sleep {cfg.pay_sleep}")
    for i in range(4):
        a(f"v_and_b32 v{44+i}, 0x10001, v{44+i}")
        a(f"v_cmp_ne_u32 vcc, 0, v{44+i}")
        a(f"s_cbranch_vccz .LW_pr{i}")
        a(f"buffer_load_dwordx4 v{12 if i < 2 else 13}, s[8:11], s{(44, 32, 33, 34)[i]} offen offset:{1024*i} sc1 lds")
        a(f".LW_pr{i}:")
    a("s_branch .LW_pv")
    a(".LW_pk:")
    ts(11)
    a("s_barrier")
    pre = cfg.sc_pre or cfg.sc_first
    for s in range(4):
        if not pre: a(f"ds_read_b128 v[{48+4*s}:{51+4*s}], v23 offset:{SC+64*s}")
        a(f"ds_read_b64_tr_b16 v[{64+4*s}:{65+4*s}], v11 offset:{(32*s)*256}")
        a(f"ds_read_b64_tr_b16 v[{66+4*s}:{67+4*s}], v11 offset:{(32*s+4)*256}")
    a(f"s_waitcnt lgkmcnt({6 if pre else 9})")
    a("v_mfma_f32_16x16x32_bf16 v[80:83], v[64:67], v[48:51], 0")
    a(f"s_waitcnt lgkmcnt({2 if pre else 3})")
    a("v_mfma_f32_16x16x32_bf16 v[84:87], v[72:75], v[56:59], 0")
    a("v_mfma_f32_16x16x32_bf16 v[80:83], v[68:71], v[52:55], v[80:83]")
    a("s_waitcnt lgkmcnt(0)")
    a("v_mfma_f32_16x16x32_bf16 v[84:87], v[76:79], v[60:63], v[84:87]")
    a("s_mov_b32 exec_lo, 0x00030003\ns_mov_b32 exec_hi, 0x00030003")
    a("s_nop 5")
    for k in range(4): a(f"v_cndmask_b32 v{80+k}, v{80+k}, v{84+k}, s[52:53]")
    a("v_cvt_pk_bf16_f32 v80, v80, v81\nv_cvt_pk_bf16_f32 v81, v82, v83")
    a(f"ds_write_b64 v21, v[80:81] offset:{XX}")
    a("s_mov_b64 exec, -1")
    a("s_waitcnt lgkmcnt(0)")
    a("s_barrier")
    ts(14)
    for s in range(4):
        a(f"ds_read_b128 v[{48+4*s}:{51+4*s}], v26 offset:{XX+64*s}")
    a("s_waitcnt lgkmcnt(2)")
    a("v_mfma_f32_16x16x32_bf16 v[80:83], v[96:99], v[48:51], 0")
    a("v_mfma_f32_16x16x32_bf16 v[84:87], v[100:103], v[52:55], 0")
    a("s_waitcnt lgkmcnt(0)")
    a("v_mfma_f32_16x16x32_bf16 v[80:83], v[104:107], v[56:59], v[80:83]")
    a("v_mfma_f32_16x16x32_bf16 v[84:87], v[108:111], v[60:63], v[84:87]")
    exchange(80, 84, WS_H4, ".LW_h4", YY)
    a("s_waitcnt lgkmcnt(0)")
    a(f"s_add_u32 s45, s51, {WS_S}")
    a("s_barrier")
    ts(15)
    for s in range(4):
        a(f"ds_read_b128 v[{48+4*s}:{51+4*s}], v26 offset:{YY+64*s}")
    a("s_waitcnt lgkmcnt(2)")
    a("v_mfma_f32_16x16x32_bf16 v[64:67], v[112:115], v[48:51], 0")
    a("v_mfma_f32_16x16x32_bf16 v[68:71], v[116:119], v[52:55], 0")
    a("s_waitcnt lgkmcnt(0)")
    a("v_mfma_f32_16x16x32_bf16 v[64:67], v[120:123], v[56:59], v[64:67]")
    a("v_mfma_f32_16x16x32_bf16 v[68:71], v[124:127], v[60:63], v[68:71]")
    a("s_mov_b32 exec_lo, 0x00030003\ns_mov_b32 exec_hi, 0x00030003")
    a("s_nop 5")
    for k in range(4): a(f"v_add_f32 v{64+k}, v{64+k}, v{68+k}")
    for k in range(4): a(f"v_bfi_b32 v{64+k}, s100, v{17+k}, v{64+k}")
    a("buffer_store_dwordx4 v[64:67], v16, s[8:11], s45 offen sc1")
    ts(12)
    if cfg.late_slow: slow_copy(80, 84, WS_H4)

    ts_flush()
    a("s_endpgm")

    QR = 131072
    MX = QR; LS = QR + 512; FLQ = QR + 1024; PX = QR + 2048
    FXN = QR + 16384; FG = FXN + 2304; FH = FG + 8192
    ZF, ZS = 0, 512
    def zprolog():
        a("v_and_b32 v3, 7, v0\nv_lshrrev_b32 v2, 3, v0")
        a("v_lshlrev_b32 v4, 12, v2\nv_lshl_add_u32 v4, v3, 4, v4")
        a("v_mov_b32 v10, s40")
        utags(10, 10)
    def zreduce():
        for k in range(4):
            a(f"v_add_f32_dpp v{32+k}, v{32+k}, v{32+k} row_ror:8 row_mask:0xf bank_mask:0xf")
        for sw in ("v_permlane16_swap_b32", "v_permlane32_swap_b32"):
            for k in range(4): a(f"v_mov_b32 v{36+k}, v{32+k}")
            a("s_nop 0")
            for k in range(4): a(f"{sw} v{32+k}, v{36+k}")
            for k in range(4): a(f"v_add_f32 v{32+k}, v{32+k}, v{36+k}")
    def zgather(n, sbase, lab, masks):
        budget()
        a(f"{lab}_1:")
        spend(f"{lab}_2")
        psleep()
        a(f"s_mov_b64 exec, s[{masks[0]}:{masks[0]+1}]")
        a(f"buffer_load_dwordx4 v[32:35], v4, s[8:11], {sbase} offen sc1")
        a("s_waitcnt vmcnt(0)")
        a("v_xor_b32 v20, v32, v10")
        for k in range(1, 4): a(f"v_bitop3_b32 v20, v20, v{32+k}, v{10+k} bitop3:0xf6")
        a("v_and_b32 v20, 0xff, v20")
        a(f"v_cmp_ne_u32 s[{masks[0]}:{masks[0]+1}], 0, v20")
        a(f"s_bcnt1_i32_b64 s48, s[{masks[0]}:{masks[0]+1}]")
        a(f"s_cmp_gt_u32 s48, {cfg.z_pre}")
        a(f"s_cbranch_scc1 {lab}_1")
        a(f"{lab}_2:")
        budget()
        a(f"{lab}_p:")
        spend(f"{lab}_ok")
        for i in range(n):
            a(f"s_mov_b64 exec, s[{masks[i]}:{masks[i]+1}]")
            a(f"s_cbranch_execz {lab}_s{i}")
            if i: a(f"s_add_u32 s48, {sbase}, {32768*i}")
            a(f"buffer_load_dwordx4 v[{32+4*i}:{35+4*i}], v4, s[8:11], {'s48' if i else sbase} offen sc1")
            a(f"{lab}_s{i}:")
        a("s_waitcnt vmcnt(0)")
        a("s_mov_b64 vcc, 0")
        a("s_mov_b64 exec, -1")
        for i in range(n):
            a(f"v_xor_b32 v{60+i}, v{32+4*i}, v10")
            for k in range(1, 4): a(f"v_bitop3_b32 v{60+i}, v{60+i}, v{32+4*i+k}, v{10+k} bitop3:0xf6")
        for i in range(n): a(f"v_and_b32 v{60+i}, 0xff, v{60+i}")
        for i in range(n):
            a(f"s_mov_b64 exec, s[{masks[i]}:{masks[i]+1}]")
            a(f"v_cmp_ne_u32 s[{masks[i]}:{masks[i]+1}], 0, v{60+i}")
            a(f"s_or_b64 vcc, vcc, s[{masks[i]}:{masks[i]+1}]")
        a(f"s_cbranch_vccnz {lab}_p")
        a(f"{lab}_ok:")
        a("s_mov_b64 exec, -1")
    cur[0] = "A"
    a(".L_A:")
    a("s_cmp_ge_u32 s2, 256")
    a("s_cbranch_scc1 .L_end")
    a("s_load_dwordx2 s[16:17], s[0:1], 8")
    if cfg.q_time: a("s_memrealtime s[22:23]")
    a("s_load_dwordx2 s[4:5], s[0:1], 0")
    a("s_load_dwordx4 s[36:39], s[0:1], 56")
    a("s_load_dwordx2 s[12:13], s[0:1], 88")
    a("s_load_dwordx2 s[8:9], s[0:1], 96")
    a("s_load_dwordx2 s[28:29], s[0:1], 72")
    a("s_load_dwordx2 s[32:33], s[0:1], 80")
    a("v_lshrrev_b32 v1, 6, v0")
    a("v_and_b32 v0, 63, v0")
    a("v_readfirstlane_b32 s3, v1")
    a("s_sub_u32 s43, s2, 128")
    a("s_bfe_u32 s41, s43, 0x10002")
    a("s_lshr_b32 s42, s43, 3\ns_lshl_b32 s42, s42, 2\ns_and_b32 s44, s43, 3\ns_add_u32 s42, s42, s44")
    a("s_lshl_b32 s44, s41, 6\ns_add_u32 s42, s42, s44")
    srd(16, 16777216); srd(12, 256); srd(8, WS_SIZE); srd(4, 2048); srd(28, 1409024); srd(32, 2048)
    a("v_lshlrev_b32 v8, 4, v0")
    a("v_mov_b32 v9, 0")
    a("v_lshrrev_b32 v2, 4, v0\nv_and_b32 v3, 15, v0\nv_and_b32 v25, 1, v0")
    a("s_and_b32 s47, s3, 3")
    def pv_setup():
        a("v_lshrrev_b32 v7, 5, v0")
        a("v_bfe_u32 v4, v0, 2, 2")
        a("v_lshlrev_b32 v5, 10, v7\nv_lshl_add_u32 v5, v4, 8, v5\nv_lshl_add_u32 v5, v4, 6, v5")
        a("v_bfe_u32 v6, v0, 4, 1\nv_bfe_u32 v4, v0, 1, 1\nv_lshl_add_u32 v6, v6, 1, v4\nv_xor_b32 v6, v6, v7\nv_lshl_add_u32 v5, v6, 4, v5")
        a("v_lshl_add_u32 v5, v25, 3, v5")
        a("s_lshr_b32 s45, s3, 2\ns_lshl_b32 s45, s45, 7\nv_xor_b32 v5, s45, v5")
        a("s_lshl_b32 s44, s47, 15\nv_add_u32 v32, s44, v5")
        a("v_mov_b32 v54, 0")
        a("v_xor_b32 v33, 32, v32\nv_xor_b32 v34, 64, v32\nv_xor_b32 v35, 96, v32")
        a(f"v_add_u32 v51, {PX}, v8")
        hs = 17 if cfg.olay == "c" else 10
        a(f"v_bfe_u32 v4, v0, 4, 1\nv_lshl_add_u32 v5, v7, 2, v4\nv_lshlrev_b32 v36, {hs}, v5\nv_lshl_add_u32 v36, v3, 3, v36")
        if cfg.olay == "p":
            a("v_mov_b32 v37, v36\nv_mov_b32 v38, v36\nv_mov_b32 v39, v36")
            a(f"s_lshl_b32 s44, s47, 8\ns_add_u32 s44, s44, s45\ns_lshl_b32 s45, s42, 15\ns_add_u32 s44, s44, s45\ns_add_u32 s44, s44, {WS_O}")
        elif cfg.oswz:
            a("s_xor_b32 s57, s42, s47\nv_lshlrev_b32 v5, 2, v5\nv_xor_b32 v5, s57, v5\nv_lshl_add_u32 v36, v5, 8, v36")
            a("v_xor_b32 v37, 0x800, v36\nv_xor_b32 v38, 0x2000, v36\nv_xor_b32 v39, 0x2800, v36")
            a(f"s_add_u32 s44, s44, s45\ns_add_u32 s44, s44, {WS_O}")
        else:
            a("v_mov_b32 v37, v36\nv_mov_b32 v38, v36\nv_mov_b32 v39, v36")
            a(f"s_add_u32 s44, s44, s45\ns_lshl_b32 s45, s42, 8\ns_add_u32 s44, s44, s45\ns_add_u32 s44, s44, {WS_O}")
        for r in range(0, 16, 2):
            a(f"s_add_u32 s{48+r//2}, s44, {((r & 3) + 8 * (r >> 2)) << hs}")
        a("v_and_b32 v5, 7, v0\nv_lshl_add_u32 v4, v5, 1, v4\nv_lshlrev_b32 v4, 1, v4\nv_lshrrev_b32 v4, v4, v11\nv_and_b32 v5, 1, v4\nv_bfe_u32 v4, v4, 1, 1\nv_lshl_or_b32 v53, v4, 16, v5")
        a("s_mov_b32 s56, 0x00010001")
        if cfg.q8:
            a(f"s_lshl_b32 s60, s3, 12\ns_lshl_b32 s63, s41, 15\ns_add_u32 s63, s63, s60\ns_add_u32 s63, s63, {WS_Q}\ns_add_u32 s60, s60, {QR}")
            a("s_lshl_b32 s45, s47, 4\nv_xor_b32 v40, s45, v8\nv_add_u32 v41, s60, v40")
            a("v_and_b32 v4, 3, v0\nv_lshlrev_b32 v4, 3, v4\nv_lshrrev_b32 v4, v4, v11")
            for k in range(4):
                a(f"v_bfe_u32 v5, v4, {2*k}, 1\nv_bfe_u32 v6, v4, {2*k+1}, 1\nv_lshl_or_b32 v{42+k}, v6, 16, v5")
    def q8block(lab):
        a("s_mov_b32 m0, s60")
        budget()
        a("s_barrier")
        a(f"{lab}_l:")
        for i in range(4):
            if i: a(f"v_xor_b32 v10, {64*i}, v40")
            a(f"buffer_load_dwordx4 v{10 if i else 40}, s[8:11], s63 offen offset:{1024*i} sc1 lds")
        a("s_waitcnt vmcnt(0)")
        for i in range(4):
            if i: a(f"v_xor_b32 v10, {64*i}, v41")
            a(f"ds_read_b128 v[{64+4*i}:{67+4*i}], v{10 if i else 41} offset:{1024*i}")
        for i in range(4):
            a(f"s_waitcnt lgkmcnt({3-i})")
            for k in range(4):
                a("v_xor_b32 v46, v64, v42" if i == 0 and k == 0 else f"v_bitop3_b32 v46, v46, v{64+4*i+k}, v{42+k} bitop3:0xf6")
        a("v_and_b32 v46, s56, v46")
        a("v_cmp_ne_u32 vcc, 0, v46")
        a(f"s_cbranch_vccz {lab}_k")
        spend(f"{lab}_k")
        a(f"s_branch {lab}_l")
        a(f"{lab}_k:")
    def tread(n):
        k, j = n >> 1, n & 1
        off = (8 * (k >> 1) + 4 * (k & 1)) * 1024
        r = 96 + 4 * n
        a(f"ds_read_b64_tr_b16 v[{r}:{r+1}], v{32+2*j} offset:{off}")
        a(f"ds_read_b64_tr_b16 v[{r+2}:{r+3}], v{33+2*j} offset:{off+2048}")
    a("s_cmp_lt_u32 s3, 4")
    a("s_cbranch_scc1 .LA_comp")
    if cfg.pf:
        a("s_load_dwordx2 s[20:21], s[0:1], 24")
        srd(20, 4194304)
    a("s_lshl_b32 s46, s47, 13")
    a("s_lshl_b32 s44, s42, 17\ns_lshl_b32 s45, s47, 15\ns_add_u32 s44, s44, s45")
    a("v_lshlrev_b32 v4, 2, v2\nv_xor_b32 v4, v4, v3\nv_lshlrev_b32 v4, 4, v4\nv_lshl_add_u32 v4, v2, 10, v4")
    a("v_xor_b32 v5, 16, v4\nv_xor_b32 v6, 32, v4\nv_xor_b32 v7, 48, v4")
    a("s_mov_b32 m0, s46")
    a("s_waitcnt lgkmcnt(0)")
    ts(1)
    if cfg.pf:
        a("s_and_b32 s45, s43, 7\ns_lshl_b32 s45, s45, 2\ns_lshr_b32 s48, s43, 5\ns_add_u32 s45, s45, s48\ns_lshl_b32 s45, s45, 8")
        a("s_bfe_u32 s48, s43, 0x20003\ns_lshl_b32 s48, s48, 20\ns_add_u32 s45, s45, s48\ns_lshl_b32 s48, s47, 18\ns_add_u32 s45, s45, s48")
        a("v_lshlrev_b32 v10, 13, v2\nv_lshl_add_u32 v10, v3, 4, v10")
        a(f"s_add_u32 m0, s46, {QR}")
        if cfg.pf_pre: a("buffer_load_dword v12, v9, s[4:7], 0 offen\ns_waitcnt vmcnt(0)")
        else: a("s_nop 0")
        for i in range(8):
            a(f"buffer_load_dwordx4 v10, s[20:23], s45 offen {cfg.pf_nt} lds")
            if i < 7: a("s_add_u32 s45, s45, 32768")
        a("s_mov_b32 m0, s46")
    else:
        if cfg.f1_on == "H":
            a("v_lshlrev_b32 v26, 5, v0")
            a("buffer_load_dwordx4 v[12:15], v26, s[4:7], 0 offen")
            a("buffer_load_dwordx4 v[16:19], v26, s[4:7], 0 offen offset:16")
            a("s_and_b32 s97, s43, 7\ns_lshl_b32 s97, s97, 1\ns_lshr_b32 s45, s47, 1\ns_add_u32 s97, s97, s45")
            a("v_lshlrev_b32 v26, 10, v25\nv_lshl_add_u32 v26, v2, 4, v26\ns_lshl_b32 s45, s97, 6")
            a("buffer_load_dwordx4 v[20:23], v26, s[4:7], s45 offen")
        else:
            a("buffer_load_dword v12, v9, s[4:7], 0 offen")
    if cfg.corder == "col": pieces = [(rg, cq) for cq in range(4) for rg in range(8)]
    elif cfg.corder == "row": pieces = [(rg, cq) for rg in range(8) for cq in range(4)]
    else:
        k = cfg.skip1
        first = [(rg, cq) for rg in range(k) for cq in (0, 2, 3)]
        rest = [(rg, cq) for rg in range(k, 8) for cq in range(4)]
        late1 = [(rg, 1) for rg in range(k)]
        pieces = list(first)
        step = max(1, len(rest) // max(1, len(late1)))
        j = 0
        for n_, p_ in enumerate(rest):
            if n_ % step == 0 and j < len(late1): pieces.append(late1[j]); j += 1
            pieces.append(p_)
        pieces += late1[j:]
    assert sorted(pieces) == sorted((rg, cq) for rg in range(8) for cq in range(4))
    def crow(i):
        rg, cq = pieces[i]
        if i:
            prg, pcq = pieces[i - 1]
            dl = (cq - pcq) * 32768 + (rg - prg) * 1024; dg = (cq - pcq) * 256 + (rg - prg) * 4096
            a((f"s_add_u32 m0, m0, {dl}" if dl >= 0 else f"s_sub_u32 m0, m0, {-dl}") + "\n" + (f"s_add_u32 s44, s44, {dg}" if dg >= 0 else f"s_sub_u32 s44, s44, {-dg}"))
        a(f"buffer_load_dwordx4 v{4 + (rg & 3)}, s[16:19], s44 offen {NT} lds")
    a(f"s_add_u32 s60, s46, {QR}")
    a(f"s_lshl_b32 s63, s41, 15\ns_add_u32 s63, s63, s46\ns_add_u32 s63, s63, {WS_Q}")
    a("s_and_b32 s45, s47, 1\ns_lshl_b32 s45, s45, 5")
    a("v_xor_b32 v24, s45, v8")
    a("v_add_u32 v58, s60, v24")
    def qrows():
        a("s_mov_b32 s61, m0\ns_mov_b32 m0, s60\ns_mov_b32 s45, s63")
        for i in range(8):
            if i == 4: a("s_add_u32 m0, m0, 4096\ns_add_u32 s45, s45, 4096")
            a(f"v_xor_b32 v10, {16*(((i&3)<<2) | (i>>2))}, v24")
            a(f"buffer_load_dwordx4 v10, s[8:11], s45 offen offset:{1024*(i&3)} sc1 lds")
        a("s_mov_b32 m0, s61")
    if cfg.pf: a(f"s_waitcnt vmcnt({cfg.pf_cnt})")
    elif cfg.pf_delay: a("s_waitcnt vmcnt(0)")
    ts(2)
    issued = []
    def qdecide():
        a(f"s_waitcnt vmcnt({len(issued) - 1 - issued.index('f')})")
        a("s_mov_b32 s59, 0")
        a("v_cmp_ne_u32 vcc, s40, v13")
        a("s_bcnt1_i32_b32 s45, vcc_lo")
        a(f"s_cmp_gt_u32 s45, {cfg.q_thr}")
        a("s_cbranch_scc1 .LH_noearly")
        qrows()
        a("s_mov_b32 s59, 1")
        a(".LH_noearly:")
    for i in range(32):
        win = cfg.cwin1 if i < cfg.n1 else cfg.cwin
        if i == cfg.nonce_row:
            a("buffer_load_dword v11, v9, s[12:15], 0 offen offset:128 sc1"); issued.append("n")
        if i == cfg.go_row:
            k = len(issued) - 1 - issued.index("n")
            a(f"s_waitcnt vmcnt({min(k, 63)})")
            budget()
            a(".LH_nchk:")
            a("v_readfirstlane_b32 s40, v11")
            a("s_cmp_lg_u32 s40, 0")
            a("s_cbranch_scc1 .LH_ngot")
            spend(".LH_ngot")
            a("buffer_load_dword v11, v9, s[12:15], 0 offen offset:128 sc1")
            a("s_waitcnt vmcnt(0)")
            a("s_branch .LH_nchk")
            a(".LH_ngot:")
            if cfg.use_go:
                a(f"s_lshl_b32 s45, s43, 7\ns_add_u32 s45, s45, {WS_GO}")
                a("s_cmp_lg_u32 s3, 4")
                a("s_cbranch_scc1 .LH_nogo")
                a("s_mov_b64 exec, 1")
                a("buffer_store_dword v11, v9, s[8:11], s45 offen sc1")
                a("s_mov_b64 exec, -1")
                a(".LH_nogo:")
        if cfg.qhint and i == cfg.qs_row:
            a(f"v_and_b32 v13, 31, v0\nv_lshlrev_b32 v13, 7, v13\ns_lshl_b32 s45, s47, 12\ns_add_u32 s45, s45, {WS_QF}")
            a("buffer_load_dword v13, v13, s[8:11], s45 offen sc1"); issued.append("f")
        if cfg.qhint and i == cfg.qc_row: qdecide()
        if i == cfg.q_row:
            qrows(); issued += ["q"] * 8
        if win and i >= win: a(f"s_waitcnt vmcnt({win-1 + (8 if cfg.q_row <= i < cfg.q_row + cfg.q_ext else 0)})")
        crow(i); issued.append("c")
    if cfg.qhint and cfg.qc_row == 32: qdecide()
    if cfg.q_row >= 32 and not cfg.qhint and not cfg.q8:
        if cfg.q_time:
            for lvl in cfg.q_lvls:
                a("s_memrealtime s[58:59]\ns_waitcnt lgkmcnt(0)\ns_sub_u32 s58, s58, s22")
                a(f"s_cmp_ge_u32 s58, {cfg.q_time}\ns_cbranch_scc1 .LH_qnow")
                a(f"s_waitcnt vmcnt({lvl})")
            a(".LH_qnow:")
        elif cfg.q_wait is not None: a(f"s_waitcnt vmcnt({cfg.q_wait})")
        qrows(); issued += ["q"] * 8
    assert cfg.q_row >= 24
    ts(3)
    if cfg.f1_on == "H":
        a("s_mov_b32 s58, 0xaaaaaaaa\ns_mov_b32 s59, 0xaaaaaaaa")
        ln_stats(12, 32)
        ln_apply(20, 32)
        FS[:] = [100, 98, 22]
        fconsts(11)
        ftags(11, 28, 27, 26)
        a("v_lshrrev_b32 v26, 1, v2\nv_lshl_add_u32 v27, v26, 9, v27")
        a("s_bitcmp1_b32 s3, 0")
        a("s_cselect_b32 s24, s38, s36\ns_cselect_b32 s25, s39, s37")
        srd(24, 1409024)
        a("v_mul_u32_u24 v26, 22016, v2\nv_lshl_add_u32 v26, v3, 4, v26")
        a(f"s_mul_i32 s20, s97, {32*2752}\ns_lshr_b32 s45, s43, 3\ns_lshl_b32 s21, s45, 8\ns_add_u32 s20, s20, s21")
        a(f"s_lshl_b32 s21, s45, 15\ns_and_b32 s45, s47, 1\ns_lshl_b32 s45, s45, 14\ns_add_u32 s21, s21, s45\ns_lshl_b32 s45, s97, 10\ns_add_u32 s21, s21, s45\ns_add_u32 s21, s21, {WS_G}")
    pv_setup()
    a("v_and_b32 v10, 3, v0\nv_lshlrev_b32 v10, 3, v10\nv_lshrrev_b32 v12, v10, v11")
    for k in range(4):
        a(f"v_bfe_u32 v56, v12, {2*k}, 1\nv_bfe_u32 v57, v12, {2*k+1}, 1\nv_lshl_or_b32 v{60+k}, v57, 16, v56")
    a("v_lshlrev_b32 v5, 13, v2\nv_lshl_add_u32 v5, v3, 4, v5")
    a("s_sub_u32 s62, s43, 85\ns_lshl_b32 s46, s62, 15\ns_lshl_b32 s45, s47, 8\ns_add_u32 s46, s46, s45")
    if cfg.a_pf:
        a("s_load_dwordx2 s[24:25], s[0:1], 40")
        srd(24, 4194304)
        a("v_lshlrev_b32 v13, 10, v2\nv_lshl_add_u32 v13, v3, 4, v13")
        a("s_and_b32 s57, s43, 7\ns_lshl_b32 s57, s57, 2\ns_lshr_b32 s45, s43, 5\ns_add_u32 s57, s57, s45\ns_lshl_b32 s57, s57, 17")
        a(f"s_bfe_u32 s45, s43, 0x20003\ns_lshl_b32 s45, s45, 8\ns_add_u32 s57, s57, s45\ns_lshl_b32 s45, s47, 15\ns_add_u32 s57, s57, s45\ns_add_u32 s57, s57, {(8 - cfg.a_pf) * 4096}")
        a("s_waitcnt lgkmcnt(0)")
    def qcheck():
        for i in range(8):
            a(f"v_xor_b32 v10, {16*(((i&3)<<2) | (i>>2))}, v58")
            a(f"ds_read_b128 v[{64+4*i}:{67+4*i}], v10 offset:{1024*i}")
        for i in range(8):
            a(f"s_waitcnt lgkmcnt({7-i})")
            for k in range(4):
                a("v_xor_b32 v56, v64, v60" if i == 0 and k == 0 else f"v_bitop3_b32 v56, v56, v{64+4*i+k}, v{60+k} bitop3:0xf6")
        a("v_and_b32 v56, s56, v56")
        a("v_cmp_ne_u32 vcc, 0, v56")
    if cfg.q8:
        a(f"s_waitcnt vmcnt({cfg.q_wait})")
        ts(4)
        q8block(".LH_q")
        ts(7)
    elif cfg.qhint:
        budget()
        a("s_cmp_eq_u32 s59, 0")
        a("s_cbranch_scc1 .LH_qlate")
        a(f"s_waitcnt vmcnt({32 - cfg.qc_row})")
        a("s_branch .LH_qv")
        a(".LH_qlate:")
        a(f"s_waitcnt vmcnt({cfg.q_wait})")
        a(".LH_qre:")
        qrows()
        a("s_waitcnt vmcnt(0)")
        a(".LH_qv:")
        ts(7)
        qcheck()
        a("s_cbranch_vccz .LH_qk")
        spend(".LH_qk")
        a("s_branch .LH_qre")
        a(".LH_qk:")
        a("s_waitcnt vmcnt(0)")
        ts(4)
    else:
        a("s_waitcnt vmcnt(8)")
        ts(4)
        if cfg.cpre: a("s_barrier")
        budget()
        a(".LH_qv:")
        a("s_waitcnt vmcnt(0)")
        ts(7)
        qcheck()
        a("s_cbranch_vccz .LH_qk")
        spend(".LH_qk")
        qrows()
        a("s_branch .LH_qv")
        a(".LH_qk:")
    a("s_barrier")
    if cfg.f1_on == "H":
        a("s_cmp_ge_u32 s43, 88")
        a("s_cbranch_scc1 .LH_nof1")
        for i in range(8):
            a(f"buffer_load_dwordx4 v[{160+4*i}:{163+4*i}], v26, s[24:27], s20 offen {NT}")
            if i < 7: a("s_add_u32 s20, s20, 2752")
        a(".LH_nof1:")
    def w2loads():
        for i in range(8):
            if i == 4: a("s_add_u32 s46, s46, 4096")
            a(f"buffer_load_dwordx4 v[{208+4*i}:{211+4*i}], v5, s[28:31], s46 offen offset:{1024*(i&3)} {NT}")
    a("s_cmp_lt_u32 s43, 85")
    a("s_cbranch_scc1 .LH_now2")
    if not cfg.w2_late: w2loads()
    if cfg.a_pf:
        a("s_branch .LH_now3")
    a(".LH_now2:")
    if cfg.a_pf:
        for i in range(cfg.a_pf):
            a(f"buffer_load_dwordx4 v[{208+4*i}:{211+4*i}], v13, s[24:27], s57 offen {cfg.a_pf_nt}")
            if i < cfg.a_pf - 1: a("s_add_u32 s57, s57, 4096")
        a(".LH_now3:")
    if not cfg.cpre: a("s_barrier")
    for n in range(16):
        if n >= 7: a("s_waitcnt lgkmcnt(12)")
        tread(n)
        if n == 7 and not cfg.cpre: a("s_barrier")
    a("s_waitcnt lgkmcnt(0)")
    if cfg.cpre: a("s_barrier\ns_barrier")
    def hf1(lab):
        a("s_cmp_ge_u32 s43, 88")
        a(f"s_cbranch_scc1 {lab}")
        a("s_waitcnt vmcnt(8)" if False else "s_waitcnt vmcnt(0)")
        transpose8(160, 64)
        a("s_nop 0")
        gemv_out(20, 64, 27, 21, 28, acc=160, out=192)
        ts(5)
        a(f"{lab}:")
        FS[:] = [52, 54, 56]
    if cfg.f1_on == "H" and cfg.hf1_pre: hf1(".LH_nof2")
    a(f"s_setprio {cfg.hprio}")
    a("s_barrier")
    for k in range(8):
        a(f"ds_read_b128 v[{64+4*k}:{67+4*k}], v51 offset:{1024*k}")
    a("s_branch .LA_pv")

    a(".LA_comp:")
    a("s_waitcnt lgkmcnt(0)")
    ts(1)
    def a_nonce(lab):
        budget()
        a(f"{lab}p:")
        spend(f"{lab}g")
        a(f"s_sleep {cfg.a_nsleep}")
        a("buffer_load_dword v11, v9, s[12:15], 0 offen offset:128 sc1")
        a("s_waitcnt vmcnt(0)")
        a("v_readfirstlane_b32 s40, v11")
        a("s_cmp_eq_u32 s40, 0")
        a(f"s_cbranch_scc1 {lab}p")
        a(f"{lab}g:")
    if cfg.f1_on == "A":
        a("s_cmp_ge_u32 s43, 88")
        a("s_cbranch_scc1 .LA_nof1")
        a("v_lshlrev_b32 v4, 5, v0")
        a("buffer_load_dwordx4 v[12:15], v4, s[4:7], 0 offen")
        a("buffer_load_dwordx4 v[16:19], v4, s[4:7], 0 offen offset:16")
        a("s_and_b32 s50, s43, 7\ns_lshl_b32 s50, s50, 1\ns_lshr_b32 s51, s3, 1\ns_add_u32 s50, s50, s51")
        a("v_lshlrev_b32 v4, 10, v25\nv_lshl_add_u32 v4, v2, 4, v4\ns_lshl_b32 s45, s50, 6")
        a("buffer_load_dwordx4 v[20:23], v4, s[4:7], s45 offen")
        a("s_bitcmp1_b32 s3, 0")
        a("s_cselect_b32 s20, s38, s36\ns_cselect_b32 s21, s39, s37")
        srd(20, 1409024)
        a("v_mul_u32_u24 v4, 22016, v2\nv_lshl_add_u32 v4, v3, 4, v4")
        a(f"s_mul_i32 s45, s50, {32*2752}\ns_lshr_b32 s51, s43, 3\ns_lshl_b32 s44, s51, 8\ns_add_u32 s45, s45, s44")
        if cfg.f1_delay: a("s_waitcnt vmcnt(0)")
        for i in range(8):
            a(f"buffer_load_dwordx4 v[{96+4*i}:{99+4*i}], v4, s[20:23], s45 offen {NT}")
            if i < 7: a("s_add_u32 s45, s45, 2752")
        a(".LA_nof1:")
    if cfg.prefetch:
        a(f"s_cmp_ge_u32 s43, {cfg.pf_cus}")
        a("s_cbranch_scc1 .LA_nopf")
        a("s_getpc_b64 s[24:25]")
        a(".LA_pc:")
        a(f"s_sub_u32 s24, s24, .LA_pc-{K}\ns_subb_u32 s25, s25, 0")
        a(f"s_mov_b32 s26, .L_codeend-{K}\ns_mov_b32 s27, 0x20000")
        a("s_mul_i32 s45, s3, 5120")
        for i in range(5):
            a(f"buffer_load_dwordx4 v[28:31], v8, s[24:27], s45 offen")
            if i < 4: a("s_add_u32 s45, s45, 1024")
        a(".LA_nopf:")
    if cfg.f1_on == "A":
        a("s_cmp_ge_u32 s43, 88")
        a("s_cbranch_scc1 .LA_nof2")
        a("s_mov_b32 s58, 0xaaaaaaaa\ns_mov_b32 s59, 0xaaaaaaaa")
        a("s_waitcnt vmcnt(8)")
        ln_stats(12, 32)
        ln_apply(20, 32)
        fconsts(11)
        a(f"s_lshl_b32 s61, s51, 15\ns_and_b32 s45, s3, 1\ns_lshl_b32 s45, s45, 14\ns_add_u32 s61, s61, s45\ns_lshl_b32 s45, s50, 10\ns_add_u32 s61, s61, s45\ns_add_u32 s61, s61, {WS_G}")
        a("s_waitcnt vmcnt(0)")
        transpose8(96, 128)
        a_nonce(".LA_n1")
        ftags(11, 28, 27, 26)
        a("v_lshrrev_b32 v26, 1, v2\nv_lshl_add_u32 v27, v26, 9, v27")
        gemv_out(20, 128, 27, 61, 28, acc=160, out=192)
        ts(3)
        a("s_branch .LA_n2g")
        a(".LA_nof2:")
    a_nonce(".LA_n2")
    ts(2)
    pv_setup()
    a("v_lshrrev_b32 v2, 5, v0")
    a("v_and_b32 v3, 31, v0")
    a("v_and_b32 v4, 3, v3\nv_bfe_u32 v5, v3, 2, 2\nv_lshl_or_b32 v5, v4, 2, v5\nv_xor_b32 v5, v5, v2\nv_lshlrev_b32 v5, 4, v5")
    a("v_lshl_add_u32 v24, v3, 10, v5")
    a(f"v_add_u32 v24, {QR}, v24")
    a("v_lshl_add_u32 v5, v4, 8, v5\nv_lshrrev_b32 v4, 2, v3\nv_lshl_add_u32 v5, v4, 10, v5")
    a("s_lshl_b32 s45, s3, 13\nv_add_u32 v16, s45, v5")
    for k in range(1, 8):
        a(f"v_xor_b32 v{16+k}, {32*k}, v16\nv_xor_b32 v{24+k}, {32*k}, v24")
    a(f"s_lshl_b32 s45, s3, 7\ns_add_u32 s45, s45, {MX}")
    a("v_lshlrev_b32 v48, 2, v3")
    a(f"v_add_u32 v49, {MX}, v48")
    a("v_add_u32 v48, s45, v48")
    a(f"s_lshl_b32 s45, s3, 11\ns_add_u32 s45, s45, {PX}")
    a("v_add_u32 v50, s45, v8")
    a("v_lshlrev_b32 v54, 4, v3")
    a(f"s_lshl_b32 s46, s42, 11\ns_lshl_b32 s45, s3, 9\ns_add_u32 s46, s46, s45\ns_add_u32 s46, s46, {WS_ML}")
    a("v_mov_b32 v58, s40\nv_mov_b32 v59, 0")
    if cfg.cpre:
        ts(4)
        a("s_barrier")
        ts(12)
        for s_ in range(32):
            if s_ >= 15: a("s_waitcnt lgkmcnt(14)")
            a(f"ds_read_b128 v[{96+4*s_}:{99+4*s_}], v{16+(s_&7)} offset:{32768*((s_>>3)&1)}")
            if 8 <= s_ < 16: a(f"v_add_u32 v{16+(s_&7)}, 0x10000, v{16+(s_&7)}")
        a("s_waitcnt lgkmcnt(0)")
        a("s_barrier")
        ts(5)
        LA = 8
        def sread(s):
            r = 224 + 4 * (s % LA)
            a(f"ds_read_b128 v[{r}:{r+3}], v{24+(s&7)} offset:{256*(s>>3)}")
        for s in range(LA): sread(s)
        for s in range(32):
            r = 224 + 4 * (s % LA)
            outstanding = min(LA, 32 - s)
            a(f"s_waitcnt lgkmcnt({outstanding-1})")
            if s == 31: a("s_barrier")
            a(f"v_mfma_f32_32x32x16_bf16 v[64:79], v[{96+4*s}:{99+4*s}], v[{r}:{r+3}], {'0' if s == 0 else 'v[64:79]'}")
            if s + LA < 32: sread(s + LA)
    else:
        ts(4)
        if cfg.q8: q8block(".LA_q")
        a("s_barrier")
        ts(5)
        LA = 4
        def sread(s):
            r = 208 + 8 * (s % LA)
            a(f"ds_read_b128 v[{r}:{r+3}], v{16+(s&7)} offset:{32768*((s>>3)&1)}")
            a(f"ds_read_b128 v[{r+4}:{r+7}], v{24+(s&7)} offset:{256*(s>>3)}")
            if 8 <= s < 16: a(f"v_add_u32 v{16+(s&7)}, 0x10000, v{16+(s&7)}")
        for s in range(LA): sread(s)
        for s in range(32):
            r = 208 + 8 * (s % LA)
            outstanding = min(LA, 32 - s)
            a(f"s_waitcnt lgkmcnt({2*(outstanding-1)})")
            if s == 31: a("s_barrier")
            a(f"v_mfma_f32_32x32x16_bf16 v[64:79], v[{r}:{r+3}], v[{r+4}:{r+7}], {'0' if s == 0 else 'v[64:79]'}")
            if s + LA < 32: sread(s + LA)
    ts(6)
    a("s_nop 11" if not cfg.ts else "s_nop 10")
    a("v_max3_f32 v4, v64, v65, v66\nv_max3_f32 v5, v67, v68, v69\nv_max3_f32 v6, v70, v71, v72\nv_max3_f32 v7, v73, v74, v75")
    a("v_max3_f32 v4, v4, v76, v77\nv_max3_f32 v5, v5, v78, v79\nv_max3_f32 v4, v4, v6, v7\nv_max_f32 v4, v4, v5")
    a("v_mov_b32 v5, v4\ns_nop 1\nv_permlane32_swap_b32 v4, v5\nv_max_f32 v4, v4, v5")
    a("ds_write_b32 v48, v4")
    a("s_waitcnt lgkmcnt(0)")
    a("s_barrier")
    a("ds_read2_b32 v[4:5], v49 offset0:0 offset1:32")
    a("ds_read2_b32 v[6:7], v49 offset0:64 offset1:96")
    a("s_waitcnt lgkmcnt(0)")
    a("v_max3_f32 v4, v4, v5, v6\nv_max_f32 v56, v4, v7")
    for r in range(8): a(f"v_sub_f32 v{64+r}, v{64+r}, v56")
    for r in range(8):
        a(f"v_exp_f32 v{64+r}, v{64+r}")
        a(f"v_sub_f32 v{72+r}, v{72+r}, v56")
    for e in range(4):
        a(f"v_exp_f32 v{72+2*e}, v{72+2*e}\nv_exp_f32 v{73+2*e}, v{73+2*e}")
        a(f"v_cvt_pk_bf16_f32 v{80+e}, v{64+2*e}, v{65+2*e}")
    a("ds_write_b128 v50, v[80:83]")
    for e in range(4, 8): a(f"v_cvt_pk_bf16_f32 v{80+e}, v{64+2*e}, v{65+2*e}")
    a("ds_write_b128 v50, v[84:87] offset:1024")
    for e in range(0, 8, 2): a(f"v_pk_add_f32 v[{64+e}:{65+e}], v[{64+e}:{65+e}], v[{72+e}:{73+e}]")
    for e in range(0, 4, 2): a(f"v_pk_add_f32 v[{64+e}:{65+e}], v[{64+e}:{65+e}], v[{68+e}:{69+e}]")
    a("v_pk_add_f32 v[64:65], v[64:65], v[66:67]\nv_add_f32 v64, v64, v65")
    a("v_mov_b32 v65, v64\ns_nop 1\nv_permlane32_swap_b32 v64, v65\nv_add_f32 v64, v64, v65")
    a("ds_write_b32 v48, v64 offset:512")
    for n in range(cfg.pv_pre): tread(n)
    a(f"s_waitcnt lgkmcnt({2*cfg.pv_pre})")
    a("s_barrier")
    ts(7)
    a(f"s_waitcnt lgkmcnt({min(2*cfg.pv_pre, 5)})")
    a("ds_read2_b32 v[4:5], v49 offset0:128 offset1:160")
    a("ds_read2_b32 v[6:7], v49 offset0:192 offset1:224")
    for k in range(8):
        a(f"ds_read_b128 v[{64+4*k}:{67+4*k}], v51 offset:{1024*k}")
    a("s_waitcnt lgkmcnt(8)")
    a("v_add_f32 v4, v4, v5\nv_add_f32 v6, v6, v7\nv_add_f32 v57, v4, v6")
    def mlstore():
        a("s_mov_b32 exec_hi, 0")
        a("buffer_store_dwordx4 v[56:59], v54, s[8:11], s46 offen sc1")
        a("s_mov_b64 exec, -1")
    if cfg.ml_at == 0: mlstore()
    for n in range(cfg.pv_pre, 16):
        a("s_waitcnt lgkmcnt(12)")
        tread(n)
    if cfg.ml_at == 1: mlstore()
    ts(15)
    a("s_waitcnt lgkmcnt(0)")
    a(".LA_pv:")
    ts(13)
    for n in range(16):
        k, j = n >> 1, n & 1
        if j == 0: a(f"s_waitcnt lgkmcnt({7-k})")
        acc = 160 + 16 * j
        a(f"v_mfma_f32_32x32x16_bf16 v[{acc}:{acc+15}], v[{64+4*k}:{67+4*k}], v[{96+4*n}:{99+4*n}], {'0' if k == 0 else f'v[{acc}:{acc+15}]'}")
    a("s_setprio 0")
    if cfg.ml_at == 2:
        a("s_cmp_gt_u32 s3, 3")
        a("s_cbranch_scc1 .LA_noml")
        mlstore()
        a(".LA_noml:")
    ts(14)
    def epiA(pr):
        t = 192 + 2 * pr; r = 2 * pr
        a(f"v_cvt_pk_bf16_f32 v{t}, v{160+r}, v{176+r}")
        a(f"v_cvt_pk_bf16_f32 v{t+1}, v{161+r}, v{177+r}")
        a(f"v_bfi_b32 v{t}, s56, v53, v{t}")
        a(f"v_bfi_b32 v{t+1}, s56, v53, v{t+1}")
    def epiB(pr):
        t = 192 + 2 * pr
        a(f"v_permlane16_swap_b32 v{t}, v{t+1}")
        if not cfg.nostore: a(f"buffer_store_dwordx2 v[{t}:{t+1}], v{36 + (pr & 3)}, s[8:11], s{48+pr} offen {cfg.ost}")
    a("s_nop 10" if not cfg.ts else "s_nop 9")
    epiA(0)
    for pr in range(8):
        if pr < 7: epiA(pr + 1)
        else: a("s_nop 1")
        epiB(pr)
    ts(8)
    if cfg.ml_at >= 3:
        a("s_cmp_gt_u32 s3, 3")
        a("s_cbranch_scc1 .LA_noml")
        if cfg.ml_at == 4: a("s_waitcnt vmcnt(0)")
        mlstore()
        a(".LA_noml:")
    if cfg.ts and cfg.drts:
        a("s_waitcnt vmcnt(0)")
        ts(9)
    a("s_cmp_lt_u32 s3, 4")
    a("s_cbranch_scc1 .LA_zq")
    a("s_cmp_ge_u32 s43, 85")
    a("s_cbranch_scc1 .LH_F2")
    a("s_cmp_ge_u32 s43, 32")
    a("s_cbranch_scc1 .LA_exit")
    a("s_cmp_lg_u32 s3, 4")
    a("s_cbranch_scc1 .LA_exit")
    zprolog()
    a(f"s_lshl_b32 s46, s43, 7\ns_add_u32 s46, s46, {WS_F}")
    for k in range(4): a(f"v_mov_b32 v{52+k}, 0")
    for m in (50, 52, 54, 56, 58): a(f"s_mov_b64 s[{m}:{m+1}], -1")
    a("s_mov_b64 s[60:61], 0xffffff")
    zgather(6, "s46", ".LZ_f", [50, 52, 54, 56, 58, 60])
    for i in range(1, 6):
        for k in range(4): a(f"v_add_f32 v{32+k}, v{32+k}, v{32+4*i+k}")
    a("s_nop 0")
    zreduce()
    a("v_cvt_pk_bf16_f32 v32, v32, v33\nv_cvt_pk_bf16_f32 v34, v34, v35")
    a("v_lshlrev_b32 v24, 16, v32\nv_and_b32 v25, 0xffff0000, v32\nv_lshlrev_b32 v26, 16, v34\nv_and_b32 v27, 0xffff0000, v34")
    for k in range(4): a(f"v_mul_f32 v{32+k}, {hex(f2u(-LOG2E))}, v{24+k}")
    for k in range(4): a(f"v_exp_f32 v{32+k}, v{32+k}")
    a("s_nop 0")
    for k in range(4): a(f"v_add_f32 v{32+k}, 1.0, v{32+k}")
    for k in range(4): a(f"v_rcp_f32 v{32+k}, v{32+k}")
    a("s_nop 0")
    for k in range(4): a(f"v_mul_f32 v{24+k}, v{24+k}, v{32+k}")
    a("v_cvt_pk_bf16_f32 v32, v24, v25\nv_cvt_pk_bf16_f32 v34, v26, v27")
    a("v_lshlrev_b32 v24, 16, v32\nv_and_b32 v25, 0xffff0000, v32\nv_lshlrev_b32 v26, 16, v34\nv_and_b32 v27, 0xffff0000, v34")
    a(f"v_lshlrev_b32 v15, 4, v3\nv_add_u32 v15, {QR+12288}, v15")
    a("s_mov_b64 exec, 0xff")
    a("ds_write_b128 v15, v[24:27]")
    a("s_waitcnt lgkmcnt(0)")
    ts(6)
    a("s_branch .LA_exit")
    a(".LH_F2:")
    a("v_lshrrev_b32 v7, 3, v0\nv_lshlrev_b32 v7, 9, v7\nv_and_b32 v10, 7, v0\nv_lshl_add_u32 v7, v10, 4, v7")
    a(f"s_lshr_b32 s44, s62, 2\ns_lshl_b32 s44, s44, 15\ns_and_b32 s45, s62, 3\ns_lshl_b32 s45, s45, 7\ns_add_u32 s44, s44, s45\ns_add_u32 s44, s44, {WS_G}")
    def gloads():
        a("s_mov_b32 s45, s44")
        for i in range(8):
            a(f"buffer_load_dwordx4 v[{32+4*i}:{35+4*i}], v7, s[8:11], s45 offen sc1")
            if i < 7: a("s_add_u32 s45, s45, 4096")
    if cfg.w2_late: w2loads()
    gloads()
    fconsts(11)
    ftags(11, 28, 27, 26)
    utags(11, 12)
    a("s_movk_i32 s100, 0xff")
    a("v_lshlrev_b32 v16, 5, v25\nv_lshl_add_u32 v16, v2, 3, v16\nv_add_u32 v17, 4, v16")
    a("v_lshrrev_b32 v26, 1, v2\nv_lshl_add_u32 v6, v26, 11, v27")
    a(f"s_lshl_b32 s61, s62, 12\ns_lshl_b32 s45, s47, 9\ns_add_u32 s61, s61, s45\ns_add_u32 s61, s61, {WS_F}")
    a("s_waitcnt vmcnt(8)" if cfg.w2_late else "s_waitcnt vmcnt(16)")
    transpose8(208, 128)
    budget()
    a(".LF_gp:")
    a("s_waitcnt vmcnt(0)")
    for i in range(8):
        for k in range(4):
            if i == 0 and k == 0: a("v_xor_b32 v18, v32, v12")
            else: a(f"v_bitop3_b32 v18, v18, v{32+4*i+k}, v{12+k} bitop3:0xf6")
    a("v_and_b32 v18, 0xff, v18")
    a("v_cmp_ne_u32 vcc, 0, v18")
    a("s_cbranch_vccz .LF_g2")
    spend(".LF_g2")
    a("s_sleep 2")
    gloads()
    a("s_branch .LF_gp")
    a(".LF_g2:")
    for i in range(8):
        if i & 3:
            for k in range(4): a(f"v_add_f32 v{32+16*(i>>2)+k}, v{32+16*(i>>2)+k}, v{32+4*i+k}")
    for sw in ("v_permlane16_swap_b32", "v_permlane32_swap_b32"):
        for k in range(4): a(f"v_mov_b32 v{36+k}, v{32+k}\nv_mov_b32 v{52+k}, v{48+k}")
        a("s_nop 0")
        for k in range(4): a(f"{sw} v{32+k}, v{36+k}\n{sw} v{48+k}, v{52+k}")
        for k in range(4): a(f"v_add_f32 v{32+k}, v{32+k}, v{36+k}\nv_add_f32 v{48+k}, v{48+k}, v{52+k}")
    for k in range(4): a(f"v_cvt_pk_bf16_f32 v{32+k}, v{32+k}, v{48+k}")
    for k in range(4): a(f"v_and_b32 v{48+k}, 0xffff0000, v{32+k}\nv_lshlrev_b32 v{32+k}, 16, v{32+k}")
    for k in range(4): a(f"v_mul_f32 v{36+k}, {hex(f2u(-LOG2E))}, v{32+k}")
    for k in range(4): a(f"v_exp_f32 v{36+k}, v{36+k}")
    a("s_nop 0")
    for k in range(4): a(f"v_add_f32 v{36+k}, 1.0, v{36+k}")
    for k in range(4): a(f"v_rcp_f32 v{36+k}, v{36+k}")
    a("s_nop 0")
    for k in range(4): a(f"v_mul_f32 v{32+k}, v{32+k}, v{36+k}")
    a("v_cvt_pk_bf16_f32 v32, v32, v33\nv_cvt_pk_bf16_f32 v34, v34, v35")
    a("v_and_b32 v33, 0xffff0000, v32\nv_lshlrev_b32 v32, 16, v32\nv_and_b32 v35, 0xffff0000, v34\nv_lshlrev_b32 v34, 16, v34")
    for k in range(4): a(f"v_mul_f32 v{32+k}, v{32+k}, v{48+k}")
    a("v_cvt_pk_bf16_f32 v32, v32, v33\nv_cvt_pk_bf16_f32 v33, v34, v35")
    a("ds_bpermute_b32 v20, v16, v32\nds_bpermute_b32 v21, v16, v33\nds_bpermute_b32 v22, v17, v32\nds_bpermute_b32 v23, v17, v33")
    a("s_waitcnt lgkmcnt(0)")
    gemv_out(20, 128, 6, 61, 28)
    ts(6)
    a("s_branch .LA_exit")
    a(".LA_zq:")
    a("s_cmp_ge_u32 s43, 32")
    a("s_cbranch_scc1 .LA_exit")
    a("s_cmp_lg_u32 s3, 0")
    a("s_cbranch_scc1 .LA_exit")
    zprolog()
    a("s_lshl_b32 s45, s43, 6")
    a("v_lshlrev_b32 v14, 3, v3")
    a("buffer_load_dwordx2 v[16:17], v14, s[4:7], s45 offen")
    a(f"s_bfe_u32 s46, s43, 0x20002\ns_lshl_b32 s46, s46, 10\ns_lshr_b32 s48, s43, 4\ns_lshl_b32 s48, s48, 9\ns_add_u32 s46, s46, s48")
    a(f"s_and_b32 s48, s43, 3\ns_lshl_b32 s48, s48, 7\ns_add_u32 s46, s46, s48\ns_add_u32 s46, s46, {WS_S}")
    a(f"v_lshlrev_b32 v15, 4, v3\nv_add_u32 v15, {QR+12288}, v15")
    a("s_mov_b64 s[50:51], -1\ns_mov_b64 s[52:53], -1\ns_mov_b64 s[54:55], -1\ns_mov_b64 s[56:57], -1")
    a("s_waitcnt vmcnt(0)")
    a("v_lshlrev_b32 v28, 16, v16\nv_and_b32 v29, 0xffff0000, v16\nv_lshlrev_b32 v30, 16, v17\nv_and_b32 v31, 0xffff0000, v17")
    zgather(4, "s46", ".LZ_s", [50, 52, 54, 56])
    ts(10)
    a("s_barrier")
    a("ds_read_b128 v[24:27], v15")
    for k in range(4): a(f"v_add_f32 v{32+k}, v{32+k}, v{36+k}\nv_add_f32 v{40+k}, v{40+k}, v{44+k}")
    for k in range(4): a(f"v_add_f32 v{32+k}, v{32+k}, v{40+k}")
    zreduce()
    a("v_cvt_pk_bf16_f32 v32, v32, v33\nv_cvt_pk_bf16_f32 v34, v34, v35")
    a("v_and_b32 v33, 0xffff0000, v32\nv_lshlrev_b32 v32, 16, v32\nv_and_b32 v35, 0xffff0000, v34\nv_lshlrev_b32 v34, 16, v34")
    a("s_waitcnt lgkmcnt(0)")
    for k in range(4): a(f"v_mul_f32 v{32+k}, v{32+k}, v{24+k}")
    a("v_cvt_pk_bf16_f32 v32, v32, v33\nv_cvt_pk_bf16_f32 v34, v34, v35")
    a("v_and_b32 v33, 0xffff0000, v32\nv_lshlrev_b32 v32, 16, v32\nv_and_b32 v35, 0xffff0000, v34\nv_lshlrev_b32 v34, 16, v34")
    for k in range(4): a(f"v_add_f32 v{32+k}, v{32+k}, v{28+k}")
    a("v_cvt_pk_bf16_f32 v32, v32, v33\nv_cvt_pk_bf16_f32 v33, v34, v35")
    a("s_mov_b64 exec, 0xff")
    a(f"buffer_store_dwordx2 v[32:33], v14, s[32:35], s45 offen {cfg.outst}")
    if cfg.dbgt:
        a("s_memrealtime s[48:49]")
        a("s_waitcnt lgkmcnt(0)")
        a("v_mov_b32 v10, s48")
        a("s_lshl_b32 s45, s43, 2")
        a("s_mov_b64 exec, 1")
        a("buffer_store_dword v10, v9, s[12:15], s45 offen offset:8")
        if cfg.amp:
            a("buffer_load_dword v10, v9, s[12:15], 0 offen offset:4 sc1")
            a("s_waitcnt vmcnt(0)")
            a("v_readfirstlane_b32 s50, v10")
            a("s_sub_u32 s51, s48, s50")
            a("s_min_u32 s51, s51, 10000")
            a(f"s_mul_i32 s51, s51, {cfg.amp}")
            a("s_add_u32 s51, s51, s48")
            a(".LZ_amp:")
            a("s_memrealtime s[48:49]")
            a("s_waitcnt lgkmcnt(0)")
            a("s_sub_u32 s52, s48, s51")
            a("s_cmp_lt_i32 s52, 0")
            a("s_cbranch_scc1 .LZ_amp")
    ts(11)
    a(".LA_exit:")
    ts_flush()
    a(".L_end:")
    a("s_endpgm")
    for i, lab in enumerate(stubs, 1):
        a(f".Lstub{i}:")
        a("s_mov_b64 s[94:95], exec\ns_mov_b64 exec, 1")
        a(f"s_lshl_b32 s93, s2, 8\ns_or_b32 s93, s93, s3\ns_or_b32 s93, s93, 0x10000\nv_mov_b32 v255, s93\nv_mov_b32 v254, {160 + 4*i}")
        a("buffer_store_dword v255, v254, s[12:15], 0 offen sc1")
        a("s_mov_b64 exec, s[94:95]")
        a(f"s_branch {lab}")
    if cfg.dbgspin: print("stubs", list(enumerate(stubs, 1)))
    a(".L_codeend:")
    body = a.text()
    return assemble([(K, 256, 512, 163840)], [(K, body, 256, 102, 256, "")]), body

if __name__ == "__main__":
    import argparse
    ap = argparse.ArgumentParser()
    ap.add_argument("-o", default="k.s")
    ap.add_argument("--set", action="append", default=[])
    args = ap.parse_args()
    for s in args.set:
        k, v = s.split("=")
        setattr(Cfg, k, eval(v))
    txt, body = gen(Cfg)
    open(args.o, "w").write(txt)
    for p in hazard.check(txt): print("HAZARD", p)
```
